```python
import torch

def _softmax(x, axis=-1):
    return torch.softmax(x, dim=axis)
def _gelu(x):
    return torch.nn.functional.gelu(x, approximate="tanh")
def _silu(x):
    return torch.nn.functional.silu(x)
def _sigmoid(x):
    return torch.sigmoid(x)
def _layernorm(x, axis=-1, eps=1e-5):
    m = x.mean(dim=axis, keepdim=True)
    v = x.var(dim=axis, keepdim=True, unbiased=False)
    return (x - m) / torch.sqrt(v + eps)
def _scatter_add(tgt, idx, src, axis=0):
    return tgt.clone().index_add_(axis, idx, src)
def _segment_sum(src, seg, n):
    out = torch.zeros((n,) + src.shape[1:], dtype=src.dtype)
    return out.index_add_(0, seg, src)
def _pad(x, pw):
    flat = tuple(v for pair in reversed(pw) for v in pair)
    return torch.nn.functional.pad(x, flat)

kernel_name = 'concat_heads__linear_kernel_hedgehog__ssm_conv_s4__prompt'

def setup_inputs():

    _w = (lambda a: (lambda t: t.to(torch.bfloat16) if t.is_floating_point() else t)(torch.as_tensor(a)))
    def _A_setup():
        B, S, D, H = 1, 2048, 512, 32
        Dh = D // H
        return {
            "x": _w((lambda *s: torch.randn(*s, dtype=torch.bfloat16) * 0.4)(B, S, D)),
            "wqkv": _w((lambda *s: torch.randn(*s, dtype=torch.bfloat16) * 0.4)(D, 3 * D)),
            "w_phi": _w((lambda *s: torch.randn(*s, dtype=torch.bfloat16) * 0.4)(H, Dh, Dh) * (Dh ** -0.5)),
            "wo": _w((lambda *s: torch.randn(*s, dtype=torch.bfloat16) * 0.05)(D, D)),
        }
    _A_in = _A_setup()

    def _B_setup():
        B, L, D, N = 1, 2048, 512, 128
        A_re = -(lambda _x: torch.exp(torch.as_tensor(_x)))((lambda *s: torch.randn(*s, dtype=torch.bfloat16) * 6.4)(D, N))
        A_im = torch.pi * (lambda *s: torch.randn(*s, dtype=torch.bfloat16) * 0.1)(D, N)
        B_re = (lambda *s: torch.randn(*s, dtype=torch.bfloat16) * 0.2)(D, N)
        B_im = (lambda *s: torch.randn(*s, dtype=torch.bfloat16) * 0.2)(D, N)
        C_re = (lambda *s: torch.randn(*s, dtype=torch.bfloat16) * 0.2)(D, N)
        C_im = (lambda *s: torch.randn(*s, dtype=torch.bfloat16) * 0.2)(D, N)
        log_dt = (lambda *s: torch.randn(*s, dtype=torch.bfloat16) * 0.1)(D) * 0.5 - 4.0
        Dskip = (lambda *s: torch.randn(*s, dtype=torch.bfloat16) * 0.1)(D)
        return {
            "u": _w((lambda *s: torch.randn(*s, dtype=torch.bfloat16) * 0.05)(B, L, D)),
            "A_re": _w(A_re),
            "A_im": _w(A_im),
            "B_re": _w(B_re),
            "B_im": _w(B_im),
            "C_re": _w(C_re),
            "C_im": _w(C_im),
            "log_dt": _w(log_dt),
            "Dskip": _w(Dskip),
        }
    _B_in = _B_setup()

    return {
        "A_x": _A_in["x"],
        "A_wqkv": _A_in["wqkv"],
        "A_w_phi": _A_in["w_phi"],
        "A_wo": _A_in["wo"],
        "B_u": _B_in["u"],
        "B_A_re": _B_in["A_re"],
        "B_A_im": _B_in["A_im"],
        "B_B_re": _B_in["B_re"],
        "B_B_im": _B_in["B_im"],
        "B_C_re": _B_in["C_re"],
        "B_C_im": _B_in["C_im"],
        "B_log_dt": _B_in["log_dt"],
        "B_Dskip": _B_in["Dskip"],
    }

def reference(A_x, A_wqkv, A_w_phi, A_wo, B_u, B_A_re, B_A_im, B_B_re, B_B_im, B_C_re, B_C_im, B_log_dt, B_Dskip):
    def _A_ref(x, wqkv, w_phi, wo):
        B, S, D = x.shape
        H = 32; Dh = D // H
        qkv = (lambda x, *d: x.permute(*d))((x @ wqkv).reshape(B, S, 3, H, Dh), 2, 0, 3, 1, 4)
        q, k, v = qkv[0], qkv[1], qkv[2]
        pq = torch.einsum("bhsd,hdf->bhsf", q, w_phi)
        pk = torch.einsum("bhsd,hdf->bhsf", k, w_phi)
        phi_q = torch.concatenate([_softmax(pq, axis=-1), _softmax(-pq, axis=-1)], axis=-1)
        phi_k = torch.concatenate([_softmax(pk, axis=-1), _softmax(-pk, axis=-1)], axis=-1)
        kv = torch.einsum("bhsf,bhsd->bhfd", phi_k, v)
        z  = torch.einsum("bhsf->bhf", phi_k)
        num = torch.einsum("bhqf,bhfd->bhqd", phi_q, kv)
        den = torch.einsum("bhqf,bhf->bhq", phi_q, z)[..., None] + 1e-6
        o = num / den
        return (lambda x, *d: x.permute(*d))(o, 0, 2, 1, 3).reshape(B, S, D) @ wo

    def _B_ref(u, A_re, A_im, B_re, B_im, C_re, C_im, log_dt, Dskip):
        Bsz, L, D = u.shape
        dt = torch.exp(log_dt)[:, None]
        A = A_re + 1j * A_im
        Bc = B_re + 1j * B_im
        Cc = C_re + 1j * C_im
        logdA = dt * A
        dB = dt * Bc
        l = (lambda x, dt: x.to(dt))(torch.arange(L), A_re.dtype)
        P = torch.exp(logdA[:, :, None] * l[None, None, :])
        K = torch.einsum("dn,dnl,dn->dl", Cc, P, dB).real
        L2 = 2 * L
        Kp = _pad(K, ((0, 0), (0, L)))
        up = (lambda x, *d: x.permute(*d))(u, 0, 2, 1)
        up = _pad(up, ((0, 0), (0, 0), (0, L)))
        Kf = (lambda x, axes=(-2,-1): torch.fft.rfft2(x.float(), dim=axes))(Kp[:, None, :], axes=(-2, -1))
        Uf = (lambda x, axes=(-2,-1): torch.fft.rfft2(x.float(), dim=axes))(up[:, :, None, :], axes=(-2, -1))
        Yf = Uf * Kf[None, :, :, :]
        y = (lambda x, s, axes=(-2,-1): torch.fft.irfft2(x, s=s, dim=axes).to(torch.bfloat16))(Yf, (1, L2), axes=(-2, -1))[:, :, 0, :L]
        y = (lambda x, *d: x.permute(*d))(y, 0, 2, 1) + u * Dskip[None, None, :]
        return y

    a = _A_ref(A_x, A_wqkv, A_w_phi, A_wo)
    b = _B_ref(B_u, B_A_re, B_A_im, B_B_re, B_B_im, B_C_re, B_C_im, B_log_dt, B_Dskip)
    return torch.concatenate([a, b], axis=-1)
```

```python
import re

TRANS = ("v_exp_f32", "v_log_f32", "v_rcp_f32", "v_rsq_f32", "v_sqrt_f32", "v_sin_f32", "v_cos_f32", "v_rcp_iflag_f32")

def parse_regs(tok):
    t = tok.strip()
    t = t.lstrip("-")
    if t.startswith("abs(") and t.endswith(")"):
        t = t[4:-1]
    t = t.strip("|")
    m = re.fullmatch(r"([vsa])(\d+)", t)
    if m:
        return {(m.group(1), int(m.group(2)))}
    m = re.fullmatch(r"([vsa])\[(\d+):(\d+)\]", t)
    if m:
        return {(m.group(1), i) for i in range(int(m.group(2)), int(m.group(3)) + 1)}
    if t in ("vcc", "vcc_lo", "vcc_hi"):
        return {("vcc", 0)}
    if t in ("exec", "exec_lo", "exec_hi"):
        return {("exec", 0)}
    if t == "m0":
        return {("m0", 0)}
    return set()

class Ins:
    __slots__ = ("text", "op", "kind", "wr", "rd", "passes", "srcc", "srcab", "states", "wide_store", "dpp", "lds_dma")

def split_ops(s):
    out, depth, cur = [], 0, ""
    for ch in s:
        if ch in "[(":
            depth += 1
        if ch in "])":
            depth -= 1
        if ch == "," and depth == 0:
            out.append(cur.strip()); cur = ""
        else:
            cur += ch
    if cur.strip():
        out.append(cur.strip())
    return out

def analyze(text):
    I = Ins()
    I.text = text
    t = text.split(";")[0].strip()
    parts = t.split(None, 1)
    op = parts[0]
    I.op = op
    rest = parts[1] if len(parts) > 1 else ""
    ops = split_ops(rest)
    clean = []
    mods = ""
    for o in ops:
        sp = o.split()
        clean.append(sp[0] if sp else "")
        if len(sp) > 1:
            mods += " " + " ".join(sp[1:])
    I.wr, I.rd = set(), set()
    I.passes, I.srcc, I.srcab = 0, set(), set()
    I.states = 1
    I.wide_store = False
    I.dpp = ("row_" in mods) or ("quad_perm" in mods) or ("wave_" in mods) or ("row_newbcast" in mods)
    I.lds_dma = False
    R = [parse_regs(c) for c in clean]
    allr = set().union(*R) if R else set()
    if op == "s_nop":
        I.kind = "nop"; I.states = int(clean[0], 0) + 1
    elif op.startswith("v_mfma"):
        I.kind = "mfma"
        I.passes = 8 if "32x32x16" in op else 4 if "16x16x32" in op else None
        assert I.passes, op
        I.wr = R[0]; I.srcab = R[1] | R[2]; I.srcc = R[3]; I.rd = I.srcab | I.srcc
    elif op.startswith("v_cmp"):
        I.kind = "valu"; I.wr = R[0]; I.rd = set().union(*R[1:])
    elif (op.startswith("v_permlane") and "swap" in op) or op == "v_swap_b32":
        I.kind = "valu"; I.wr = R[0] | R[1]; I.rd = R[0] | R[1]
    elif op.startswith("v_"):
        I.kind = "valu"; I.wr = R[0]; I.rd = set().union(*R[1:]) if len(R) > 1 else set()
        if op.startswith(("v_fmac", "v_pk_fmac", "v_dot2c", "v_writelane")) or I.dpp:
            I.rd = I.rd | R[0]
        if op.startswith("v_cndmask") and len(clean) == 3:
            I.rd = I.rd | {("vcc", 0)}
    elif op.startswith("ds_"):
        I.kind = "ds"
        if op.startswith(("ds_read", "ds_bpermute", "ds_permute", "ds_swizzle")) or "_rtn" in op:
            I.wr = R[0]; I.rd = set().union(*R[1:])
        else:
            I.rd = allr
    elif op.startswith(("buffer_", "global_")):
        I.kind = "vmem"
        if " lds" in (mods + " ") and re.search(r"\blds\b", mods):
            I.lds_dma = True; I.rd = allr | {("m0", 0)}
        elif "_load" in op:
            I.wr = R[0]; I.rd = set().union(*R[1:])
            if "d16" in op:
                I.rd = I.rd | R[0]
        else:
            I.rd = allr
            if "x4" in op or "x3" in op:
                I.wide_store = True
    elif op.startswith("s_"):
        I.kind = "salu"
        if op.startswith(("s_cmp", "s_branch", "s_cbranch", "s_waitcnt", "s_barrier", "s_endpgm", "s_setprio", "s_sleep", "s_bitcmp")):
            I.rd = allr
        else:
            I.wr = R[0] if R else set(); I.rd = set().union(*R[1:]) if len(R) > 1 else set()
            if "saveexec" in op:
                I.wr = I.wr | {("exec", 0)}
    else:
        raise ValueError("unknown op " + text)
    return I

def need(p, c):
    n = 0
    pv = {r for r in p.wr if r[0] in "va"}
    ps = {r for r in p.wr if r[0] in ("s", "vcc")}
    if p.kind == "valu":
        if c.kind == "mfma" and pv & c.rd:
            n = max(n, 2)
        if c.kind == "valu":
            if c.op.startswith("v_permlane") and pv & c.rd:
                n = max(n, 2)
            if c.dpp and pv & c.rd:
                n = max(n, 2)
            if c.op.startswith(("v_readlane", "v_readfirstlane")) and pv & c.rd:
                n = max(n, 1)
            if p.op in TRANS and c.op not in TRANS and pv & c.rd:
                n = max(n, 1)
            if p.op in TRANS and c.op in TRANS and pv & c.rd:
                n = max(n, 1)
            if ps & c.rd:
                n = max(n, 4 if c.op.startswith(("v_readlane", "v_writelane")) else 2)
        if c.kind == "vmem" and ps & c.rd:
            n = max(n, 5)
        if c.kind == "salu" and ps & c.rd:
            n = max(n, 1)
        if p.op in TRANS and c.kind in ("ds", "vmem") and pv & c.rd:
            n = max(n, 1)
    if p.kind == "mfma":
        full = 12 if p.passes == 8 else 8
        if c.kind == "mfma":
            if p.wr & c.srcab:
                n = max(n, full)
            if p.wr & c.srcc:
                if c.srcc == p.wr and c.passes == p.passes:
                    pass
                else:
                    n = max(n, 10 if p.passes == 8 else 6)
            elif p.wr & c.wr:
                n = max(n, full)
        elif c.kind in ("valu", "ds", "vmem"):
            if p.wr & (c.rd | c.wr):
                n = max(n, full)
            if c.kind == "valu" and p.srcc & c.wr:
                n = max(n, 7 if p.passes == 8 else 3)
    if p.kind == "salu" and ("m0", 0) in p.wr and c.lds_dma:
        n = max(n, 1)
    if p.kind == "vmem" and p.wide_store:
        if {r for r in p.rd if r[0] == "v"} & c.wr:
            n = max(n, 2)
    return n

class Asm:
    def __init__(self):
        self.lines = []
        self.hist = []
        self.nnop = 0
    def raw(self, s):
        self.lines.append(s)
    def label(self, name, clear=False):
        self.lines.append(name + ":")
        if clear:
            self.hist = []
    def comment(self, s):
        self.lines.append("    ; " + s)
    def __call__(self, text):
        for t in text.strip().split("\n"):
            t = t.strip()
            if not t or t.startswith(";"):
                continue
            self._emit(t)
    def _emit(self, t):
        I = analyze(t)
        dist = 0
        req = 0
        for p in reversed(self.hist):
            n = need(p, I)
            if n > dist:
                req = max(req, n - dist)
            dist += p.states
            if dist > 20:
                break
        while req > 0:
            k = min(req, 16)
            N = analyze("s_nop %d" % (k - 1))
            self.lines.append("    s_nop %d" % (k - 1))
            self.hist.append(N)
            self.nnop += 1
            req -= k
        self.lines.append("    " + t)
        self.hist.append(I)
        if len(self.hist) > 40:
            self.hist = self.hist[-40:]
    def settle(self, n=12):
        self("s_nop %d" % (n - 1))
    def text(self):
        return "\n".join(self.lines) + "\n"

def vr(a, n=1):
    return "v%d" % a if n == 1 else "v[%d:%d]" % (a, a + n - 1)
def sr(a, n=1):
    return "s%d" % a if n == 1 else "s[%d:%d]" % (a, a + n - 1)
```

```python
from asmlib import Asm, vr, sr

NAME = "concat_heads__linear_kernel_hedgehog__ssm_conv_s4__prompt_kernel"

WK, WV, WQ = 0, 32768, 65536
BOUNCE = 98304
BREG = 114688
DSTRIDE = 22272
UCS = 4512
KBO = 18048
WPHI = 159232
SYNC = 160256
LDS_TOTAL = 160512
WS_FLAGS = 0
WS_UT = 0x10000
WS_YT = 0x210000
WS_OF = 0x410000
WS_KVP = 0x610000
KVP_STRIDE = 4608
WS_DBG = 0x800000
WS_SIZE = 0x1000000
S_X, S_W, S_WPHI, S_WO, S_U, S_ARE, S_AIM, S_BRE, S_BIM, S_CRE, S_CIM, S_LDT, S_DSK, S_OUT, S_DBG, S_WS = [4 + 2 * i for i in range(16)]
S_WAVE, S_RB, S_HP, S_RW = 36, 37, 38, 39
R_WS = 40
R_A = 44
R_B = 48
R_C = 52
R_D = 56
S_T0 = 60
S_STAMP = 84
LIM_LDS = 200000
LIM_GLB = 20000


class K(Asm):
    def __init__(self, dbg=False):
        super().__init__()
        self.nvm = 0
        self.nlg = 0
        self.uid = 0
        self.dbg = dbg
        self.nstamp = 0
    def lbl(self, base):
        self.uid += 1
        return "L_%s_%d" % (base, self.uid)
    def vm(self, text):
        self(text); self.nvm += 1
        return self.nvm - 1
    def lg(self, text):
        self(text); self.nlg += 1
        return self.nlg - 1
    def wait_vm(self, seq):
        n = self.nvm - 1 - seq
        assert n >= 0
        if n <= 63:
            self("s_waitcnt vmcnt(%d)" % n)
        else:
            raise AssertionError("vmcnt overflow %d" % n)
    def wait_lg(self, seq):
        n = self.nlg - 1 - seq
        assert n >= 0
        self("s_waitcnt lgkmcnt(%d)" % min(n, 15))
    def srd(self, r, ptr, nbytes, off_sgpr=None, off_imm=0):
        if off_sgpr is None and off_imm == 0:
            self("s_mov_b32 s%d, s%d" % (r, ptr)); self("s_mov_b32 s%d, s%d" % (r + 1, ptr + 1))
        else:
            first = True
            for o in ([("s%d" % off_sgpr)] if off_sgpr is not None else []) + ([str(off_imm)] if off_imm else []):
                a, b = (ptr, ptr + 1) if first else (r, r + 1)
                self("s_add_u32 s%d, s%d, %s" % (r, a, o)); self("s_addc_u32 s%d, s%d, 0" % (r + 1, b))
                first = False
        self("s_mov_b32 s%d, %s" % (r + 2, nbytes if isinstance(nbytes, str) else hex(nbytes)))
        self("s_mov_b32 s%d, 0x00020000" % (r + 3))
    def stamp(self):
        if not self.dbg:
            return
        i = self.nstamp; self.nstamp += 1
        assert i < 16
        self("s_memrealtime s[80:81]"); self("s_waitcnt lgkmcnt(0)"); self("s_mov_b32 s%d, s80" % (S_STAMP + i))
    def dump_stamps(self, vt):
        if not self.dbg:
            return
        self("s_lshl_b32 s80, s2, 3"); self("s_add_u32 s80, s80, s%d" % S_WAVE); self("s_lshl_b32 s80, s80, 6")
        self("s_add_u32 s80, s80, %d" % WS_DBG)
        self("v_mov_b32 v%d, s80" % vt)
        self("s_mov_b64 exec, 1")
        for q in range(4):
            for i in range(4):
                self("v_mov_b32 v%d, s%d" % (vt + 4 + i, S_STAMP + 4 * q + i))
            self("buffer_store_dwordx4 %s, v%d, s[%d:%d], 0 offen offset:%d" % (vr(vt + 4, 4), vt, R_WS, R_WS + 3, 16 * q))
            self("s_waitcnt vmcnt(0)")
        self("s_mov_b64 exec, -1")
    def signal(self, vown, vtmp, val):
        self("v_mov_b32 v%d, %d" % (vtmp, val))
        self("s_mov_b64 exec, 1")
        self.lg("ds_write_b32 v%d, v%d" % (vown, vtmp))
        self("s_mov_b64 exec, -1")
    def wait_words(self, vaddr, off, nw, val, vt, first_issued=None):
        L = self.lbl("w"); D = self.lbl("wd")
        self("s_mov_b32 s%d, 0" % (S_T0 + 19))
        if first_issued is None:
            self.label(L)
            self._rdw(vaddr, off, nw, vt)
        self("s_waitcnt lgkmcnt(0)")
        if first_issued is not None:
            pass
        self._chk(nw, vt, val)
        if first_issued is None:
            self("s_cbranch_scc1 %s" % D)
            self("s_add_u32 s%d, s%d, 1" % (S_T0 + 19, S_T0 + 19))
            self("s_cmp_lt_u32 s%d, %d" % (S_T0 + 19, LIM_LDS))
            self("s_cbranch_scc1 %s" % L)
        else:
            self("s_cbranch_scc1 %s" % D)
            self.label(L)
            self._rdw(vaddr, off, nw, vt)
            self("s_waitcnt lgkmcnt(0)")
            self._chk(nw, vt, val)
            self("s_cbranch_scc1 %s" % D)
            self("s_add_u32 s%d, s%d, 1" % (S_T0 + 19, S_T0 + 19))
            self("s_cmp_lt_u32 s%d, %d" % (S_T0 + 19, LIM_LDS))
            self("s_cbranch_scc1 %s" % L)
        self.label(D)
    def _rdw(self, vaddr, off, nw, vt):
        op = {1: "ds_read_b32", 2: "ds_read_b64", 4: "ds_read_b128"}[nw]
        return self.lg("%s %s, v%d offset:%d" % (op, vr(vt, nw), vaddr, off))
    def _chk(self, nw, vt, val):
        if nw == 4:
            self("v_min3_u32 v%d, v%d, v%d, v%d" % (vt, vt, vt + 1, vt + 2))
            self("v_min_u32 v%d, v%d, v%d" % (vt, vt, vt + 3))
        elif nw == 2:
            self("v_min_u32 v%d, v%d, v%d" % (vt, vt, vt + 1))
        self("v_readfirstlane_b32 s%d, v%d" % (S_T0 + 18, vt))
        self("s_cmp_ge_u32 s%d, %d" % (S_T0 + 18, val))

    def gather(self, loads, vt, between=None):
        n = len(loads)
        SP, SI, ST = S_T0 + 17, S_T0 + 16, S_T0 + 15
        L = self.lbl("g"); D = self.lbl("gd")
        self("s_mov_b32 s%d, %d" % (SP, (1 << n) - 1))
        self("s_mov_b32 s%d, 0" % SI)
        self.label(L)
        for p, (dst, nr, txt) in enumerate(loads):
            sk = self.lbl("gs")
            self("s_bitcmp1_b32 s%d, %d" % (SP, p))
            self("s_cbranch_scc0 %s" % sk)
            for t in txt:
                self(t)
            self.label(sk)
        self("s_waitcnt vmcnt(0)")
        for p, (dst, nr, txt) in enumerate(loads):
            if nr == 4:
                self("v_max3_u32 v%d, v%d, v%d, v%d" % (vt + p, dst, dst + 1, dst + 2))
                self("v_max_u32 v%d, v%d, v%d" % (vt + p, vt + p, dst + 3))
            elif nr == 2:
                self("v_max_u32 v%d, v%d, v%d" % (vt + p, dst, dst + 1))
        T = vt + n
        idx = list(range(n))
        if n == 1:
            self("v_mov_b32 v%d, v%d" % (T, vt))
        elif n == 2:
            self("v_max_u32 v%d, v%d, v%d" % (T, vt, vt + 1))
        else:
            self("v_max3_u32 v%d, v%d, v%d, v%d" % (T, vt, vt + 1, vt + 2))
            i = 3
            while i < n:
                if i + 1 < n:
                    self("v_max3_u32 v%d, v%d, v%d, v%d" % (T, T, vt + i, vt + i + 1)); i += 2
                else:
                    self("v_max_u32 v%d, v%d, v%d" % (T, T, vt + i)); i += 1
        self("v_cmp_eq_u32 vcc, -1, v%d" % T)
        self("s_nop 1")
        self("s_cbranch_vccz %s" % D)
        self("s_mov_b32 s%d, 0" % SP)
        for p in range(n):
            self("v_cmp_eq_u32 vcc, -1, v%d" % (vt + p))
            self("s_nop 1")
            self("s_cmp_lg_u64 vcc, 0")
            self("s_cselect_b32 s%d, %d, 0" % (ST, 1 << p))
            self("s_or_b32 s%d, s%d, s%d" % (SP, SP, ST))
        self("s_add_u32 s%d, s%d, 1" % (SI, SI))
        self("s_cmp_lt_u32 s%d, %d" % (SI, LIM_GLB))
        self("s_cbranch_scc1 %s" % L)
        self.label(D)
```

```python
from common import *

V_LANE = 1
V_XO, V_WO_, V_BW0, V_BW1 = 2, 3, 4, 5
V_BR = 6
V_TR, V_TRQ = 10, 11
V_SY, V_OWN = 12, 13
V_T = 16
V_WF = 32
V_AQ, V_AK, V_AV, V_P = 64, 80, 96, 112
V_X = 128
S_L2E = 62
S_K8, S_K16, S_K24 = 63, 64, 65


def softmax(k, P, E, out, T, round_p):
    if round_p:
        for j in range(8):
            k("v_cvt_pk_bf16_f32 v%d, v%d, v%d" % (E + j, P + 2 * j, P + 2 * j + 1))
        for j in range(8):
            k("v_lshlrev_b32 v%d, 16, v%d" % (P + 2 * j, E + j))
            k("v_and_b32 v%d, 0xffff0000, v%d" % (P + 2 * j + 1, E + j))
    mx0, mx1, mn0, mn1, a, b, c, d = T, T + 1, T + 2, T + 3, T + 4, T + 5, T + 6, T + 7
    for op, dst in (("max", (mx0, mx1)), ("min", (mn0, mn1))):
        for t in range(2):
            p = P + 8 * t
            k("v_%s3_f32 v%d, v%d, v%d, v%d" % (op, dst[t], p, p + 1, p + 2))
        for t in range(2):
            p = P + 8 * t
            k("v_%s3_f32 v%d, v%d, v%d, v%d" % (op, dst[t], dst[t], p + 3, p + 4))
        for t in range(2):
            p = P + 8 * t
            k("v_%s3_f32 v%d, v%d, v%d, v%d" % (op, dst[t], dst[t], p + 5, p + 6))
        for t in range(2):
            p = P + 8 * t
            k("v_%s_f32 v%d, v%d, v%d" % (op, dst[t], dst[t], p + 7))
    k("v_permlane32_swap_b32 v%d, v%d" % (mx0, mx1))
    k("v_permlane32_swap_b32 v%d, v%d" % (mn0, mn1))
    k("v_max_f32 v%d, v%d, v%d" % (a, mx0, mx1))
    k("v_min_f32 v%d, v%d, v%d" % (c, mn0, mn1))
    k("v_mul_f32 v%d, s%d, v%d" % (a, S_L2E, a))
    k("v_mul_f32 v%d, s%d, v%d" % (c, S_L2E, c))
    k("v_mov_b32 v%d, v%d" % (b, a))
    k("v_mov_b32 v%d, v%d" % (d, c))
    k("v_permlane32_swap_b32 v%d, v%d" % (a, b))
    k("v_permlane32_swap_b32 v%d, v%d" % (c, d))
    mxl = (a, b); mnl = (c, d)
    for i in range(16):
        t = i // 8
        k("v_fma_f32 v%d, v%d, s%d, -v%d" % (E + i, P + i, S_L2E, mxl[t]))
        k("v_fma_f32 v%d, -v%d, s%d, v%d" % (E + 16 + i, P + i, S_L2E, mnl[t]))
    for i in range(32):
        k("v_exp_f32 v%d, v%d" % (E + i, E + i))
    S = [[T + 8, T + 9], [T + 10, T + 11]]
    for sg in range(2):
        for t in range(2):
            e = E + 16 * sg + 8 * t
            k("v_add_f32 v%d, v%d, v%d" % (S[sg][t], e, e + 1))
    for j in range(2, 8):
        for sg in range(2):
            for t in range(2):
                e = E + 16 * sg + 8 * t
                k("v_add_f32 v%d, v%d, v%d" % (S[sg][t], S[sg][t], e + j))
    for sg in range(2):
        k("v_permlane32_swap_b32 v%d, v%d" % (S[sg][0], S[sg][1]))
    R = [[T, T + 1], [T + 2, T + 3]]
    for sg in range(2):
        k("v_add_f32 v%d, v%d, v%d" % (R[sg][0], S[sg][0], S[sg][1]))
    for sg in range(2):
        k("v_rcp_f32 v%d, v%d" % (R[sg][0], R[sg][0]))
    for sg in range(2):
        k("v_mov_b32 v%d, v%d" % (R[sg][1], R[sg][0]))
    for sg in range(2):
        k("v_permlane32_swap_b32 v%d, v%d" % (R[sg][0], R[sg][1]))
    for sg in range(2):
        for i in range(16):
            k("v_mul_f32 v%d, v%d, v%d" % (E + 16 * sg + i, E + 16 * sg + i, R[sg][i // 8]))
    for t in range(2):
        for sg in range(2):
            for j in range(4):
                e = E + 16 * sg + 8 * t + 2 * j
                k("v_cvt_pk_bf16_f32 v%d, v%d, v%d" % (out + (2 * t + sg) * 4 + j, e, e + 1))


def role_a(k, opt):
    T = V_T
    aw = S_RW
    k("s_lshl_b32 s60, s%d, 17" % S_RB)
    k.srd(R_A, S_X, 131072, off_sgpr=60)
    k("s_lshl_b32 s60, s%d, 6" % S_HP)
    k("s_sub_u32 s61, %d, s60" % (512 * 3072))
    k.srd(R_B, S_W, "s61", off_sgpr=60)
    k("v_lshrrev_b32 v%d, 3, v%d" % (T, V_LANE))
    k("v_and_b32 v%d, 7, v%d" % (T + 1, V_LANE))
    k("s_lshl_b32 s60, s%d, 15" % aw)
    k("v_lshlrev_b32 v%d, 10, v%d" % (V_XO, T))
    k("v_lshl_add_u32 v%d, v%d, 4, v%d" % (V_XO, T + 1, V_XO))
    k("v_add_u32 v%d, s60, v%d" % (V_XO, V_XO))
    k("v_lshrrev_b32 v%d, 2, v%d" % (T + 2, V_LANE))
    k("v_and_b32 v%d, 3, v%d" % (T + 3, V_LANE))
    k("s_movk_i32 s60, 3072")
    k("v_mul_lo_u32 v%d, v%d, s60" % (V_WO_, T + 2))
    k("v_lshl_add_u32 v%d, v%d, 4, v%d" % (V_WO_, T + 3, V_WO_))
    k("s_mov_b32 s%d, 8192" % S_K8); k("s_mov_b32 s%d, 16384" % S_K16); k("s_mov_b32 s%d, 24576" % S_K24)
    k("s_mul_i32 s66, s%d, %d" % (aw, 16 * 3072))
    k("s_lshl_b32 s67, s%d, 10" % aw)
    xs = ["0", "s%d" % S_K8, "s%d" % S_K16, "s%d" % S_K24]
    last = []
    def wdma(part_lds, part_goff, c):
        k("s_add_u32 s68, s66, %d" % (c * 64 * 3072 + part_goff))
        k("s_add_u32 m0, s67, %d" % (part_lds + c * 4096))
        return k.vm("buffer_load_dwordx4 v%d, s[%d:%d], s68 offen lds" % (V_WO_, R_B, R_B + 3))
    for c in range(8):
        wdma(WK, 1024, c)
        for i in range(4):
            k.vm("buffer_load_dwordx4 %s, v%d, s[%d:%d], %s offen offset:%d" % (vr(V_X + 16 * c + 4 * i, 4), V_XO, R_A, R_A + 3, xs[i], 128 * c))
        last.append(wdma(WV, 2048, c))
        if c == 0:
            k("s_lshl_b32 s60, s%d, 10" % S_HP)
            k.srd(R_C, S_WPHI, 1024, off_sgpr=60)
            k("v_lshlrev_b32 v%d, 4, v%d" % (T + 4, V_LANE))
            k("s_mov_b32 m0, %d" % WPHI)
            k.vm("buffer_load_dwordx4 v%d, s[%d:%d], 0 offen lds" % (T + 4, R_C, R_C + 3))
    for c in range(8):
        lastq = wdma(WQ, 0, c)
    k("s_lshl_b32 s60, s%d, 12" % aw)
    k("s_add_u32 s60, s60, %d" % BOUNCE)
    k("v_lshrrev_b32 v%d, 4, v%d" % (T + 4, V_LANE))
    k("v_xor_b32 v%d, v%d, v%d" % (T + 5, T + 1, T + 4))
    k("v_lshlrev_b32 v%d, 7, v%d" % (V_BW0, T))
    k("v_lshl_add_u32 v%d, v%d, 4, v%d" % (V_BW0, T + 5, V_BW0))
    k("v_add_u32 v%d, s60, v%d" % (V_BW0, V_BW0))
    k("v_xor_b32 v%d, 64, v%d" % (V_BW1, V_BW0))
    k("v_and_b32 v%d, 31, v%d" % (T + 6, V_LANE))
    k("v_lshrrev_b32 v%d, 5, v%d" % (T + 7, V_LANE))
    k("v_bfe_u32 v%d, v%d, 1, 3" % (T + 8, V_LANE))
    k("v_xor_b32 v%d, v%d, v%d" % (T + 8, T + 8, T + 7))
    k("v_lshlrev_b32 v%d, 7, v%d" % (V_BR, T + 6))
    k("v_lshl_add_u32 v%d, v%d, 4, v%d" % (V_BR, T + 8, V_BR))
    k("v_add_u32 v%d, s60, v%d" % (V_BR, V_BR))
    for j in range(1, 4):
        k("v_xor_b32 v%d, %d, v%d" % (V_BR + j, 32 * j, V_BR))
    k("v_bfe_u32 v%d, v%d, 2, 2" % (T + 9, V_LANE))
    k("v_lshl_add_u32 v%d, v%d, 3, v%d" % (T + 10, T + 7, T + 9))
    k("v_and_b32 v%d, 1, v%d" % (T + 11, T + 4))
    k("v_lshlrev_b32 v%d, 6, v%d" % (V_TR, T + 10))
    k("v_lshl_add_u32 v%d, v%d, 5, v%d" % (V_TR, T + 11, V_TR))
    k("v_lshl_add_u32 v%d, v%d, 3, v%d" % (V_TR, T + 3, V_TR))
    k("v_add_u32 v%d, 0x10000, v%d" % (V_TRQ, V_TR))
    k("v_mov_b32 v%d, %d" % (V_SY, SYNC))
    k("s_lshl_b32 s60, s%d, 2" % aw)
    k("s_add_u32 s60, s60, %d" % SYNC)
    k("v_mov_b32 v%d, s60" % V_OWN)
    k("s_mov_b32 s%d, 0x3fb8aa3b" % S_L2E)
    for i in range(16):
        k("v_mov_b32 v%d, 0" % (V_AK + i)); k("v_mov_b32 v%d, 0" % (V_AV + i)); k("v_mov_b32 v%d, 0" % (V_AQ + i))
    k("s_barrier")
    k.stamp()
    PT = T + 12

    def prep(c):
        k.wait_vm(last[c] + (1 if c == 0 else 0))
        k.signal(V_OWN, T, c + 1)
        for i in range(4):
            k.lg("ds_write_b128 v%d, %s offset:%d" % (V_BW0 + (i % 2), vr(V_X + 16 * c + 4 * i, 4), 1024 * i))
        for j in range(4):
            k.lg("ds_read_b128 %s, v%d" % (vr(V_X + 16 * c + 4 * j, 4), V_BR + j))
        k._rdw(V_SY, 0, 4, PT)
    prep(0)
    for c in range(8):
        k.wait_words(V_SY, 0, 4, c + 1, PT, first_issued=True)
        seqs = []
        for ks in range(4):
            for part in range(2):
                for t in range(2):
                    off = (WK, WV)[part] + c * 4096 + ks * 1024 + 256 * t
                    seqs.append(k.lg("ds_read_b64_tr_b16 %s, v%d offset:%d" % (vr(V_WF + 8 * ks + 4 * part + 2 * t, 2), V_TR, off)))
        for ks in range(4):
            if ks == 2 and c < 7:
                prep(c + 1)
            for part in range(2):
                k.wait_lg(seqs[4 * ks + 2 * part + 1])
                acc = (V_AK, V_AV)[part]
                k("v_mfma_f32_32x32x16_bf16 %s, %s, %s, %s" % (vr(acc, 16), vr(V_WF + 8 * ks + 4 * part, 4), vr(V_X + 16 * c + 4 * ks, 4), vr(acc, 16)))
    k.stamp()
    VA = T
    k("v_lshrrev_b32 v%d, 5, v%d" % (VA + 1, V_LANE))
    k("v_bfe_u32 v%d, v%d, 2, 2" % (VA + 2, V_LANE))
    k("v_lshl_add_u32 v%d, v%d, 2, v%d" % (VA + 1, VA + 1, VA + 2))
    k("v_bfe_u32 v%d, v%d, 4, 1" % (VA + 2, V_LANE))
    k("v_and_b32 v%d, 3, v%d" % (VA + 3, V_LANE))
    k("v_lshlrev_b32 v%d, 5, v%d" % (VA, VA + 1))
    k("v_lshl_add_u32 v%d, v%d, 9, v%d" % (VA, VA + 2, VA))
    k("v_lshl_add_u32 v%d, v%d, 3, v%d" % (VA, VA + 3, VA))
    k("v_add_u32 v%d, %d, v%d" % (VA, WPHI, VA))
    RAW = 104
    PH0, PH1 = 96, 100
    VB, KB_ = 32, 40
    s_raw0 = k.lg("ds_read_b64_tr_b16 %s, v%d" % (vr(T + 4, 2), VA))
    s_raw1 = k.lg("ds_read_b64_tr_b16 %s, v%d offset:256" % (vr(T + 6, 2), VA))
    VS = T + 8
    k("v_and_b32 v%d, 31, v%d" % (VS, V_LANE))
    k("v_lshrrev_b32 v%d, 5, v%d" % (VS + 1, V_LANE))
    k("v_lshlrev_b32 v%d, 5, v%d" % (VS, VS))
    k("v_lshl_add_u32 v%d, v%d, 4, v%d" % (VS, VS + 1, VS))
    k("s_lshl_b32 s60, s%d, 10" % aw)
    k("v_add_u32 v%d, s60, v%d" % (14, VS))
    VS = 14
    k("v_cmp_eq_u32 vcc, 0, v%d" % (VA + 2))
    for j in range(8):
        k("v_cvt_pk_bf16_f32 v%d, v%d, v%d" % (KB_ + j, V_AK + 2 * j, V_AK + 2 * j + 1))
    for j in range(8):
        k("v_cvt_pk_bf16_f32 v%d, v%d, v%d" % (VB + j, V_AV + 2 * j, V_AV + 2 * j + 1))
    k.wait_lg(s_raw1)
    for j in range(4):
        k("v_cndmask_b32 v%d, 0, v%d, vcc" % (PH0 + j, T + 4 + j))
        k("v_cndmask_b32 v%d, v%d, 0, vcc" % (PH1 + j, T + 4 + j))
    if opt.get("dump_kv"):
        k("s_lshl_b32 s60, s2, 2"); k("s_add_u32 s60, s60, s%d" % aw); k("s_lshl_b32 s60, s60, 12"); k("s_add_u32 s60, s60, %d" % (WS_DBG + 0x100000))
        k("v_lshlrev_b32 v15, 4, v%d" % V_LANE)
        for j, r in enumerate((KB_, KB_ + 4, VB, VB + 4)):
            k.vm("buffer_store_dwordx4 %s, v15, s[%d:%d], s60 offen offset:%d" % (vr(r, 4), R_WS, R_WS + 3, 1024 * j))
    k("v_mfma_f32_32x32x16_bf16 %s, %s, %s, 0" % (vr(V_P, 16), vr(PH0, 4), vr(KB_, 4)))
    k("v_mfma_f32_32x32x16_bf16 %s, %s, %s, %s" % (vr(V_P, 16), vr(PH1, 4), vr(KB_ + 4, 4), vr(V_P, 16)))
    for t in range(2):
        k.lg("ds_write_b128 v%d, %s offset:%d" % (VS, vr(VB + 4 * t, 4), (4 + t) * 4096))
    if opt.get("dump_kv"):
        k("s_waitcnt vmcnt(0)")
    PHI = V_AK
    softmax(k, V_P, 32, PHI, T, opt.get("round_p", 0))
    for g in range(4):
        k.lg("ds_write_b128 v%d, %s offset:%d" % (VS, vr(PHI + 4 * g, 4), g * 4096))
    k.wait_vm(lastq)
    k.signal(V_OWN, T, 9)
    k("v_lshrrev_b32 v%d, 2, v%d" % (T, V_LANE))
    k("v_and_b32 v%d, 3, v%d" % (T + 1, V_LANE))
    k("v_lshlrev_b32 v%d, 5, v%d" % (T, T))
    k("v_lshl_add_u32 v%d, v%d, 3, v%d" % (T, T + 1, T))
    k("s_lshl_b32 s60, s%d, 12" % aw)
    k("s_lshr_b32 s61, s%d, 1" % aw); k("s_lshl_b32 s61, s61, 12"); k("s_add_u32 s61, s61, 16384")
    k("v_add_u32 v%d, s60, v%d" % (T + 2, T))
    k("v_add_u32 v%d, s61, v%d" % (T + 3, T))
    ONES = T + 4
    for j in range(4):
        k("v_mov_b32 v%d, 0x3f803f80" % (ONES + j))
    k.wait_words(V_SY, 0, 4, 9, PT)
    k.stamp()
    seqs = []
    for e in range(4):
        for ab in range(2):
            for t in range(2):
                seqs.append(k.lg("ds_read_b64_tr_b16 %s, v%d offset:%d" % (vr(32 + 8 * e + 4 * ab + 2 * t, 2), T + 2 + ab, 1024 * e + 512 * t)))
    KV, ZZ = 104, 108
    for e in range(4):
        k.wait_lg(seqs[4 * e + 3])
        k("v_mfma_f32_16x16x32_bf16 %s, %s, %s, %s" % (vr(KV, 4), vr(32 + 8 * e, 4), vr(36 + 8 * e, 4), vr(KV, 4) if e else "0"))
        k("v_mfma_f32_16x16x32_bf16 %s, %s, %s, %s" % (vr(ZZ, 4), vr(32 + 8 * e, 4), vr(ONES, 4), vr(ZZ, 4) if e else "0"))
    k.signal(V_OWN, T, 10)
    k.wait_words(V_SY, 32, 1, 4, PT)
    k("s_lshl_b32 s60, s%d, 4" % S_HP); k("s_add_u32 s60, s60, s%d" % S_RB); k("s_mul_i32 s60, s60, %d" % KVP_STRIDE)
    k("s_add_u32 s60, s60, %d" % WS_KVP)
    k("s_lshl_b32 s61, s%d, 10" % aw)
    k("v_lshlrev_b32 v%d, 4, v%d" % (T, V_LANE))
    k("v_add_u32 v%d, s61, v%d" % (T, T))
    k("s_lshl_b32 s61, s%d, 6" % aw); k("s_add_u32 s61, s61, 4096")
    k("v_and_b32 v%d, 0x30, v%d" % (T + 1, V_LANE))
    k("v_add_u32 v%d, s61, v%d" % (T + 1, T + 1))
    for j in range(8):
        k("v_min_u32 v%d, -2, v%d" % (KV + j, KV + j))
    k.vm("buffer_store_dwordx4 %s, v%d, s[%d:%d], s60 offen sc1" % (vr(KV, 4), T, R_WS, R_WS + 3))
    k("s_mov_b32 s68, 0x00010001"); k("s_mov_b32 s69, 0x00010001")
    k("s_mov_b64 exec, s[68:69]")
    k.vm("buffer_store_dwordx4 %s, v%d, s[%d:%d], s60 offen sc1" % (vr(ZZ, 4), T + 1, R_WS, R_WS + 3))
    k("s_mov_b64 exec, -1")
    k("v_mov_b32 v15, v%d" % T)
    k.stamp()
    k("s_lshr_b32 s60, s%d, 1" % S_HP); k("s_lshl_b32 s60, s60, 7")
    k("s_sub_u32 s61, %d, s60" % (512 * 1024))
    k.srd(R_C, S_WO, "s61", off_sgpr=60)
    k("v_lshrrev_b32 v%d, 3, v%d" % (T + 2, V_LANE))
    k("v_and_b32 v%d, 7, v%d" % (T + 3, V_LANE))
    k("v_bfe_u32 v%d, v%d, 4, 1" % (T + 4, V_LANE))
    k("v_lshlrev_b32 v%d, 2, v%d" % (T + 4, T + 4))
    k("v_xor_b32 v%d, v%d, v%d" % (T + 3, T + 3, T + 4))
    k("v_lshlrev_b32 v%d, 10, v%d" % (V_XO, T + 2))
    k("v_lshl_add_u32 v%d, v%d, 4, v%d" % (V_XO, T + 3, V_XO))
    k("s_lshl_b32 s66, s%d, 13" % aw)
    def wodma(part, lds):
        for i in range(8):
            k("s_add_u32 s68, s66, %d" % ((part * 256 + 32 * i) * 1024))
            k("s_add_u32 m0, s67, %d" % (lds + i * 4096))
            r = k.vm("buffer_load_dwordx4 v%d, s[%d:%d], s68 offen lds" % (V_XO, R_C, R_C + 3))
        return r
    wodma(0, WV)
    for half in range(4):
        seqs = []
        for ks in range(8):
            for t in range(2):
                off = (half * 8 + ks) * 1024 + 256 * t
                seqs.append(k.lg("ds_read_b64_tr_b16 %s, v%d offset:%d" % (vr(V_WF + 4 * ks + 2 * t, 2), V_TRQ, off)))
        for ks in range(8):
            k.wait_lg(seqs[2 * ks + 1])
            k("v_mfma_f32_32x32x16_bf16 %s, %s, %s, %s" % (vr(V_AQ, 16), vr(V_WF + 4 * ks, 4), vr(V_X + 4 * (half * 8 + ks), 4), vr(V_AQ, 16)))
        if half == 0:
            k.wait_words(V_SY, 0, 4, 10, PT)
            wodma(1, WK)
    for j in range(8):
        k("v_cvt_pk_bf16_f32 v%d, v%d, v%d" % (KB_ + j, V_AQ + 2 * j, V_AQ + 2 * j + 1))
    k("v_mfma_f32_32x32x16_bf16 %s, %s, %s, 0" % (vr(V_P, 16), vr(PH0, 4), vr(KB_, 4)))
    k("v_mfma_f32_32x32x16_bf16 %s, %s, %s, %s" % (vr(V_P, 16), vr(PH1, 4), vr(KB_ + 4, 4), vr(V_P, 16)))
    softmax(k, V_P, 32, PHI, T, opt.get("round_p", 0))
    k.stamp()
    k.wait_words(V_SY, 36, 1, 1, PT)
    k("s_mul_i32 s60, s%d, %d" % (S_HP, 16 * KVP_STRIDE)); k("s_add_u32 s60, s60, %d" % WS_KVP)
    k("v_and_b32 v%d, 15, v%d" % (T, V_LANE))
    k("s_movk_i32 s61, %d" % KVP_STRIDE)
    k("v_mul_lo_u32 v%d, v%d, s61" % (T + 1, T))
    k("v_and_b32 v%d, 0x30, v%d" % (T + 2, V_LANE))
    k("v_add_u32 v%d, v%d, v%d" % (T + 1, T + 1, T + 2))
    k("s_lshl_b32 s61, s%d, 6" % aw); k("s_add_u32 s61, s61, 4096")
    k("v_add_u32 v%d, s61, v%d" % (T + 1, T + 1))
    G0 = 128
    loads = []
    for p in range(16):
        loads.append((G0 + 4 * p, 4, ["s_add_u32 s68, s60, %d" % (p * KVP_STRIDE),
                                      "buffer_load_dwordx4 %s, v15, s[%d:%d], s68 offen sc1" % (vr(G0 + 4 * p, 4), R_WS, R_WS + 3)]))
    loads.append((G0 + 64, 4, ["buffer_load_dwordx4 %s, v%d, s[%d:%d], s60 offen sc1" % (vr(G0 + 64, 4), T + 1, R_WS, R_WS + 3)]))
    k.gather(loads, 196)
    k.stamp()
    for step in (8, 4, 2, 1):
        for p in range(step):
            for j in range(4):
                k("v_add_f32 v%d, v%d, v%d" % (G0 + 4 * p + j, G0 + 4 * p + j, G0 + 4 * (p + step) + j))
        for j in range(4):
            k("v_add_f32_dpp v%d, v%d, v%d row_ror:%d row_mask:0xf bank_mask:0xf" % (G0 + 64 + j, G0 + 64 + j, G0 + 64 + j, step))
    k("v_cvt_pk_bf16_f32 v%d, v%d, v%d" % (T + 4, G0, G0 + 1)); k("v_cvt_pk_bf16_f32 v%d, v%d, v%d" % (T + 5, G0 + 2, G0 + 3))
    k("v_cvt_pk_bf16_f32 v%d, v%d, v%d" % (T + 6, G0 + 64, G0 + 65)); k("v_cvt_pk_bf16_f32 v%d, v%d, v%d" % (T + 7, G0 + 66, G0 + 67))
    k("v_lshrrev_b32 v%d, 4, v%d" % (T + 2, V_LANE))
    k("v_lshlrev_b32 v%d, 5, v%d" % (T, T))
    k("v_lshl_add_u32 v%d, v%d, 3, v%d" % (T, T + 2, T))
    k("s_lshl_b32 s60, s%d, 12" % aw); k("s_add_u32 s60, s60, %d" % BOUNCE)
    k("v_add_u32 v%d, s60, v%d" % (T, T))
    k.lg("ds_write_b64 v%d, %s" % (T, vr(T + 4, 2)))
    k.lg("ds_write_b64 v%d, %s offset:512" % (T, vr(T + 6, 2)))
    k.signal(V_OWN, T + 8, 11)
    k("v_and_b32 v%d, 31, v%d" % (T + 1, V_LANE))
    k("v_lshrrev_b32 v%d, 5, v%d" % (T + 2, V_LANE))
    k("v_lshlrev_b32 v%d, 5, v%d" % (T + 1, T + 1))
    k("v_lshl_add_u32 v%d, v%d, 4, v%d" % (T + 1, T + 2, T + 1))
    k("v_add_u32 v%d, %d, v%d" % (T + 1, BOUNCE, T + 1))
    k.wait_words(V_SY, 0, 4, 11, PT)
    seqs = [k.lg("ds_read_b128 %s, v%d offset:%d" % (vr(32 + 4 * g, 4), T + 1, 4096 * g)) for g in range(4)]
    D0 = (48, 64)
    for t in range(2):
        k.wait_lg(seqs[2 * t + 1])
        k("v_mfma_f32_32x32x16_bf16 %s, %s, %s, 0" % (vr(D0[t], 16), vr(32 + 8 * t, 4), vr(PHI + 8 * t, 4)))
        k("v_mfma_f32_32x32x16_bf16 %s, %s, %s, %s" % (vr(D0[t], 16), vr(36 + 8 * t, 4), vr(PHI + 8 * t + 4, 4), vr(D0[t], 16)))
    k("s_lshl_b32 s60, s%d, 2" % S_RB); k("s_add_u32 s60, s60, s%d" % aw); k("s_lshl_b32 s60, s60, 4"); k("s_add_u32 s60, s60, s%d" % S_HP)
    k("s_lshl_b32 s60, s60, 11"); k("s_add_u32 s60, s60, %d" % WS_OF)
    k("v_lshlrev_b32 v15, 4, v%d" % V_LANE)
    k("s_mov_b32 s61, 0x358637bd")
    OP = 96
    for t in range(2):
        k("v_add_f32 v%d, s61, v%d" % (T + 4 + t, D0[t] + 8))
        k("v_rcp_f32 v%d, v%d" % (T + 4 + t, T + 4 + t))
        for i in range(8):
            k("v_mul_f32 v%d, v%d, v%d" % (D0[t] + i, D0[t] + i, T + 4 + t))
        for j in range(4):
            k("v_cvt_pk_bf16_f32 v%d, v%d, v%d" % (OP + 4 * t + j, D0[t] + 2 * j, D0[t] + 2 * j + 1))
        for j in range(4):
            k("v_min_u32 v%d, -2, v%d" % (OP + 4 * t + j, OP + 4 * t + j))
        k.vm("buffer_store_dwordx4 %s, v15, s[%d:%d], s60 offen offset:%d sc1" % (vr(OP + 4 * t, 4), R_WS, R_WS + 3, 1024 * t))
    k.stamp()
    k("v_lshrrev_b32 v%d, 5, v%d" % (T, V_LANE))
    k("v_bfe_u32 v%d, v%d, 2, 2" % (T + 1, V_LANE))
    k("v_lshl_add_u32 v%d, v%d, 3, v%d" % (T, T, T + 1))
    k("v_lshlrev_b32 v%d, 7, v%d" % (T, T))
    k("v_bfe_u32 v%d, v%d, 3, 1" % (T + 1, V_LANE))
    k("v_lshl_add_u32 v%d, v%d, 6, v%d" % (T, T + 1, T))
    k("v_bfe_u32 v%d, v%d, 4, 1" % (T + 1, V_LANE))
    k("v_lshl_add_u32 v%d, v%d, 5, v%d" % (T, T + 1, T))
    k("v_and_b32 v%d, 3, v%d" % (T + 1, V_LANE))
    k("v_lshl_add_u32 v%d, v%d, 3, v%d" % (T, T + 1, T))
    k("s_lshr_b32 s61, s%d, 1" % aw)
    k("s_xor_b32 s60, s61, 1"); k("s_lshl_b32 s60, s60, 15")
    k("v_add_u32 v%d, s60, v%d" % (T, T))
    k("v_xor_b32 v%d, 64, v%d" % (T + 1, T))
    WF = 128
    n = 0
    for ks in range(16):
        for ct in range(2):
            for t in range(2):
                k.lg("ds_read_b64_tr_b16 %s, v%d offset:%d" % (vr(WF + 8 * ks + 4 * ct + 2 * t, 2), T + ct, 2048 * ks + 512 * t))
    k("s_lshl_b32 s60, s%d, 2" % S_RB); k("s_and_b32 s68, s%d, 1" % S_HP); k("s_lshl_b32 s68, s68, 1"); k("s_add_u32 s60, s60, s68")
    k("s_and_b32 s68, s%d, 1" % aw); k("s_add_u32 s60, s60, s68")
    k("s_mov_b32 s70, s60")
    k("s_lshl_b32 s60, s60, 1"); k("s_add_u32 s60, s60, s61"); k("s_lshl_b32 s60, s60, 14"); k("s_add_u32 s60, s60, %d" % WS_OF)
    G1 = 32
    loads = []
    for p in range(16):
        loads.append((G1 + 4 * p, 4, ["s_add_u32 s68, s60, %d" % ((p // 4) * 4096),
                                      "buffer_load_dwordx4 %s, v15, s[%d:%d], s68 offen offset:%d sc1" % (vr(G1 + 4 * p, 4), R_WS, R_WS + 3, (p % 4) * 1024)]))
    k.gather(loads, 96)
    k("s_waitcnt lgkmcnt(0)")
    k.stamp()
    AC = (96, 112)
    for ks in range(16):
        for ct in range(2):
            k("v_mfma_f32_32x32x16_bf16 %s, %s, %s, %s" % (vr(AC[ct], 16), vr(WF + 8 * ks + 4 * ct, 4), vr(G1 + 4 * ks, 4), vr(AC[ct], 16) if ks else "0"))
    k("s_lshl_b32 s60, s%d, 12" % aw); k("s_add_u32 s60, s60, %d" % WQ)
    k("v_add_u32 v%d, s60, v15" % T)
    k("s_xor_b32 s68, s60, 8192")
    k("v_add_u32 v%d, s68, v15" % (T + 1))
    k("v_xor_b32 v%d, 8, v%d" % (T + 2, V_OWN))
    k("s_lshl_b32 s68, s70, 16")
    k("s_lshr_b32 s69, s%d, 1" % S_HP); k("s_lshl_b32 s69, s69, 7"); k("s_add_u32 s68, s68, s69")
    k("s_lshl_b32 s69, s61, 6"); k("s_add_u32 s68, s68, s69")
    k("v_and_b32 v%d, 31, v%d" % (T + 3, V_LANE))
    k("v_lshrrev_b32 v%d, 5, v%d" % (T + 4, V_LANE))
    k("v_lshlrev_b32 v%d, 11, v%d" % (T + 3, T + 3))
    k("v_lshl_add_u32 v%d, v%d, 4, v%d" % (T + 3, T + 4, T + 3))
    k.srd(R_D, S_OUT, 2048 * 2048)
    L1 = k.lbl("kh1"); LJ = k.lbl("khj")
    k("s_cmp_eq_u32 s61, 1")
    k("s_cbranch_scc1 %s" % L1)
    FIN = 32
    for kh in range(2):
        if kh == 1:
            k.label(L1)
            k.settle(12)
        snd, keep = AC[1 - kh], AC[kh]
        for j in range(4):
            k.lg("ds_write_b128 v%d, %s offset:%d" % (T, vr(snd + 4 * j, 4), 1024 * j))
        k.signal(V_OWN, T + 8, 12)
        k.wait_words(T + 2, 0, 1, 12, PT)
        seqs = [k.lg("ds_read_b128 %s, v%d offset:%d" % (vr(48 + 4 * j, 4), T + 1, 1024 * j)) for j in range(4)]
        for j in range(4):
            k.wait_lg(seqs[j])
            for i in range(4):
                k("v_add_f32 v%d, v%d, v%d" % (48 + 4 * j + i, 48 + 4 * j + i, keep + 4 * j + i))
        if kh == 0:
            k("s_branch %s" % LJ)
    k.label(LJ)
    for j in range(8):
        k("v_cvt_pk_bf16_f32 v%d, v%d, v%d" % (FIN + j, 48 + 2 * j, 48 + 2 * j + 1))
    for b in (0, 4):
        k("v_permlane32_swap_b32 v%d, v%d" % (FIN + b, FIN + b + 2))
        k("v_permlane32_swap_b32 v%d, v%d" % (FIN + b + 1, FIN + b + 3))
    for b in (0, 1):
        k.vm("buffer_store_dwordx4 %s, v%d, s[%d:%d], s68 offen offset:%d" % (vr(FIN + 4 * b, 4), T + 3, R_D, R_D + 3, 32 * b))
    k("s_waitcnt vmcnt(0)")
    k.stamp()
    k.dump_stamps(32)
```

```python
from common import *
import math, struct

def f2u(f):
    return struct.unpack("<I", struct.pack("<f", f))[0]

V_LANE = 1
V_OLD, V_FA = 2, 3
V_SY, V_OWN, V_PAR = 4, 5, 6
V_UF = 8
V_DS = 16
V_LF = 20
T = 192
PT = 24
S_D, S_NH, S_DI, S_PB = 62, 63, 64, 65


def role_b(k, opt):
    bw = S_RW
    k("s_and_b32 s%d, s%d, 1" % (S_NH, bw))
    k("s_lshr_b32 s%d, s%d, 1" % (S_DI, bw))
    k("s_lshl_b32 s%d, s%d, 5" % (S_D, S_HP)); k("s_lshl_b32 s60, s%d, 1" % S_RB); k("s_add_u32 s%d, s%d, s60" % (S_D, S_D))
    k("s_lshl_b32 s60, s%d, 1" % S_D)
    k("s_load_dword s66, s[%d:%d], s60" % (S_LDT, S_LDT + 1))
    k("s_mov_b32 s67, s%d" % S_D)
    k("s_add_u32 s%d, s%d, s%d" % (S_D, S_D, S_DI))
    k("s_mul_i32 s%d, s%d, %d" % (S_PB, S_DI, DSTRIDE)); k("s_add_u32 s%d, s%d, %d" % (S_PB, S_PB, BREG))
    k("v_and_b32 v%d, 15, v%d" % (T, V_LANE))
    k("v_lshlrev_b32 v%d, 2, v%d" % (T, T))
    k("s_lshl_b32 s60, s%d, 8" % S_HP)
    k("s_lshl_b32 s61, s%d, 8" % S_RB); k("s_add_u32 s61, s61, 4096")
    k("v_mov_b32 v%d, s60" % (T + 1)); k("v_mov_b32 v%d, s61" % (T + 2))
    k("v_cmp_gt_u32 vcc, 16, v%d" % V_LANE)
    k("v_cndmask_b32 v%d, v%d, v%d, vcc" % (V_FA, T + 2, T + 1))
    k("v_add_u32 v%d, v%d, v%d" % (V_FA, V_FA, T))
    k.vm("buffer_load_dword v%d, v%d, s[%d:%d], 0 offen sc1" % (V_OLD, V_FA, R_WS, R_WS + 3))
    k("s_lshl_b32 s60, s%d, 17" % S_RB); k("s_lshl_b32 s61, s%d, 15" % bw); k("s_add_u32 s60, s60, s61")
    k("s_lshl_b32 s61, s%d, 6" % S_HP); k("s_add_u32 s60, s60, s61")
    k.srd(R_A, S_U, 32768 - 960, off_sgpr=60)
    k("v_lshrrev_b32 v%d, 2, v%d" % (T, V_LANE))
    k("v_and_b32 v%d, 3, v%d" % (T + 1, V_LANE))
    k("v_lshlrev_b32 v%d, 10, v%d" % (T + 2, T))
    k("v_lshl_add_u32 v%d, v%d, 4, v%d" % (T + 2, T + 1, T + 2))
    k("s_lshl_b32 s68, s%d, 11" % bw); k("s_add_u32 s68, s68, %d" % BREG)
    k("s_mov_b32 m0, s68")
    k.vm("buffer_load_dwordx4 v%d, s[%d:%d], 0 offen lds" % (T + 2, R_A, R_A + 3))
    k("s_add_u32 m0, s68, 1024")
    k("s_mov_b32 s60, 16384")
    s_ut = k.vm("buffer_load_dwordx4 v%d, s[%d:%d], s60 offen lds" % (T + 2, R_A, R_A + 3))
    k("s_lshl_b32 s60, s%d, 8" % S_D); k("s_lshl_b32 s61, s%d, 7" % S_NH); k("s_add_u32 s60, s60, s61")
    k("v_lshlrev_b32 v%d, 1, v%d" % (T + 3, V_LANE))
    PR = 28
    for i, sp in enumerate((S_ARE, S_AIM, S_BRE, S_BIM, S_CRE, S_CIM)):
        r = (R_B, R_C)[i % 2]
        k.srd(r, sp, 131072)
        s_par = k.vm("buffer_load_ushort v%d, v%d, s[%d:%d], s60 offen" % (PR + i, T + 3, r, r + 3))
    k.srd(R_B, S_DSK, 1024)
    k("v_lshrrev_b32 v%d, 4, v%d" % (T + 4, V_LANE))
    k("v_lshlrev_b32 v%d, 4, v%d" % (T + 4, T + 4))
    k("s_lshl_b32 s60, s%d, 6" % S_HP)
    k.vm("buffer_load_dwordx4 %s, v%d, s[%d:%d], s60 offen" % (vr(V_DS, 4), T + 4, R_B, R_B + 3))
    for j in range(4):
        k("v_mov_b32 v%d, -1" % (T + 8 + j))
    SE = vr(T + 8, 4)
    k("v_lshlrev_b32 v7, 4, v%d" % V_LANE)
    k("s_lshl_b32 s60, s%d, 4" % S_HP); k("s_add_u32 s60, s60, s%d" % S_RB); k("s_mul_i32 s60, s60, %d" % KVP_STRIDE)
    k("s_add_u32 s60, s60, %d" % WS_KVP)
    k("s_lshl_b32 s61, s%d, 10" % bw); k("s_add_u32 s61, s61, s60")
    k.vm("buffer_store_dwordx4 %s, v7, s[%d:%d], s61 offen sc1" % (SE, R_WS, R_WS + 3))
    k("s_lshl_b32 s61, s%d, 6" % bw); k("s_add_u32 s61, s61, s60"); k("s_add_u32 s61, s61, 4096")
    k("s_mov_b64 exec, 15")
    k.vm("buffer_store_dwordx4 %s, v7, s[%d:%d], s61 offen sc1" % (SE, R_WS, R_WS + 3))
    k("s_mov_b64 exec, -1")
    k("s_lshl_b32 s60, s%d, 2" % S_RB); k("s_add_u32 s60, s60, s%d" % bw); k("s_lshl_b32 s60, s60, 4"); k("s_add_u32 s60, s60, s%d" % S_HP)
    k("s_lshl_b32 s60, s60, 11"); k("s_add_u32 s60, s60, %d" % WS_OF)
    for j in range(2):
        k.vm("buffer_store_dwordx4 %s, v7, s[%d:%d], s60 offen offset:%d sc1" % (SE, R_WS, R_WS + 3, 1024 * j))
    k("s_lshl_b32 s60, s67, 12"); k("s_lshl_b32 s61, s%d, 11" % bw); k("s_add_u32 s60, s60, s61"); k("s_add_u32 s60, s60, %d" % WS_YT)
    for j in range(2):
        k.vm("buffer_store_dwordx4 %s, v7, s[%d:%d], s60 offen offset:%d sc1" % (SE, R_WS, R_WS + 3, 1024 * j))
    k("v_and_b32 v%d, 15, v%d" % (T + 5, V_LANE))
    k("v_lshlrev_b32 v%d, 2, v%d" % (T + 5, T + 5))
    k("v_add_u32 v%d, %d, v%d" % (T + 5, SYNC, T + 5))
    k("v_mov_b32 v%d, 0" % (T + 6))
    k("ds_write_b32 v%d, v%d" % (T + 5, T + 6))
    k("v_mov_b32 v%d, %d" % (V_SY, SYNC + 16))
    k("s_lshl_b32 s60, s%d, 2" % bw); k("s_add_u32 s60, s60, %d" % (SYNC + 16))
    k("v_mov_b32 v%d, s60" % V_OWN)
    k("v_xor_b32 v%d, 4, v%d" % (V_PAR, V_OWN))
    k("s_waitcnt lgkmcnt(0)")
    k("s_barrier")
    k.stamp()
    k("v_and_b32 v%d, 15, v%d" % (T, V_LANE))
    k("v_bfe_u32 v%d, v%d, 2, 2" % (T + 1, V_LANE))
    k("v_and_b32 v%d, 3, v%d" % (T + 2, V_LANE))
    k("v_cvt_f32_u32 v%d, v%d" % (V_LF, T))
    k("v_lshlrev_b32 v%d, 4, v%d" % (T + 3, T))
    k("v_cvt_f32_u32 v%d, v%d" % (V_LF + 3, T + 3))
    k("v_lshlrev_b32 v%d, 2, v%d" % (T + 3, T + 1))
    k("v_lshl_add_u32 v%d, v%d, 1, v%d" % (T + 3, T + 2, T + 3))
    k("v_add_u32 v%d, 256, v%d" % (T + 3, T + 3))
    k("v_mov_b32 v%d, 1808" % (T + 4))
    k("v_cmp_eq_u32 vcc, 3, v%d" % (T + 2))
    k("v_cndmask_b32 v%d, v%d, v%d, vcc" % (T + 3, T + 3, T + 4))
    k("v_cvt_f32_u32 v%d, v%d" % (V_LF + 1, T + 3))
    k("v_lshlrev_b32 v%d, 8, v%d" % (T + 3, T + 1))
    k("v_lshl_add_u32 v%d, v%d, 2, v%d" % (T + 3, T + 2, T + 3))
    k("v_add_u32 v%d, 512, v%d" % (T + 3, T + 3))
    k("v_lshlrev_b32 v%d, 9, v%d" % (T + 4, T + 1))
    k("v_bfe_u32 v%d, v%d, 1, 1" % (T + 5, V_LANE))
    k("v_lshl_add_u32 v%d, v%d, 8, v%d" % (T + 4, T + 5, T + 4))
    k("v_and_b32 v%d, 1, v%d" % (T + 5, V_LANE))
    k("v_lshl_add_u32 v%d, v%d, 3, v%d" % (T + 4, T + 5, T + 4))
    k("v_cmp_lt_u32 vcc, 1, v%d" % (T + 1))
    k("v_cndmask_b32 v%d, v%d, v%d, vcc" % (T + 3, T + 3, T + 4))
    k("v_cvt_f32_u32 v%d, v%d" % (V_LF + 2, T + 3))
    k("v_lshrrev_b32 v%d, 4, v%d" % (T, V_LANE))
    k("v_lshl_add_u32 v%d, v%d, 3, v%d" % (T + 3, T, T + 1))
    k("v_sub_u32 v%d, 27, v%d" % (T + 3, T + 3))
    k("v_lshlrev_b32 v%d, 6, v%d" % (T + 3, T + 3))
    k("v_lshl_add_u32 v%d, v%d, 3, v%d" % (T + 3, T + 2, T + 3))
    k("v_add_u32 v%d, s68, v%d" % (T + 3, T + 3))
    k("v_and_b32 v%d, 15, v%d" % (T + 4, V_LANE))
    k("v_lshlrev_b32 v%d, 6, v%d" % (T + 5, T + 4))
    k("v_lshl_add_u32 v%d, v%d, 4, v%d" % (T + 5, T, T + 5))
    k("v_add_u32 v%d, s68, v%d" % (T + 5, T + 5))
    k("v_lshlrev_b32 v%d, 12, v%d" % (T + 6, T + 4))
    k("v_lshl_add_u32 v%d, v%d, 4, v%d" % (T + 6, T, T + 6))
    k("s_lshl_b32 s60, s%d, 17" % S_HP); k("s_add_u32 s60, s60, %d" % (WS_UT + 4096 - 64))
    k("s_lshl_b32 s61, s%d, 8" % S_RB); k("s_sub_u32 s60, s60, s61")
    k("s_lshl_b32 s61, s%d, 6" % bw); k("s_sub_u32 s60, s60, s61")
    k("s_add_u32 s61, s60, 65536")
    k.wait_vm(s_ut)
    sq = []
    for j in range(2):
        for t in range(2):
            sq.append(k.lg("ds_read_b64_tr_b16 %s, v%d offset:%d" % (vr(T + 16 + 4 * j + 2 * t, 2), T + 3, 32 * j + 256 * (1 - t))))
    for j in range(2):
        k.lg("ds_read_b128 %s, v%d offset:%d" % (vr(V_UF + 4 * j, 4), T + 5, 1024 * j))
    for j in range(2):
        k.wait_lg(sq[2 * j + 1])
        k.vm("buffer_store_dwordx4 %s, v%d, s[%d:%d], s%d offen sc1" % (vr(T + 16 + 4 * j, 4), T + 6, R_WS, R_WS + 3, 60 + j))
    k.stamp()
    k("s_waitcnt lgkmcnt(0)")
    k("s_lshl_b32 s60, s%d, 4" % S_DI); k("s_lshr_b32 s66, s66, s60"); k("s_lshl_b32 s66, s66, 16")
    k("s_mov_b32 s69, 0x3fb8aa3b")
    k("v_mov_b32 v%d, s66" % T)
    k("v_mul_f32 v%d, s69, v%d" % (T, T))
    k("v_exp_f32 v%d, v%d" % (T, T))
    k("v_cvt_pk_bf16_f32 v%d, v%d, v%d" % (T, T, T))
    k("v_and_b32 v%d, 0xffff0000, v%d" % (T, T))
    k.wait_vm(s_par)
    for i in range(6):
        k("v_lshlrev_b32 v%d, 16, v%d" % (PR + i, PR + i))
    for i in range(4):
        k("v_mul_f32 v%d, v%d, v%d" % (PR + i, PR + i, T))
    TB = T + 4
    k("v_mul_f32 v%d, s69, v%d" % (TB, PR))
    k("v_mul_f32 v%d, 0.15915494, v%d" % (TB + 1, PR + 1))
    k("v_mul_f32 v%d, v%d, v%d" % (TB + 2, PR + 4, PR + 2))
    k("v_mul_f32 v%d, v%d, v%d" % (TB + 3, PR + 4, PR + 3))
    k("v_fma_f32 v%d, -v%d, v%d, v%d" % (TB + 2, PR + 5, PR + 3, TB + 2))
    k("v_fma_f32 v%d, v%d, v%d, v%d" % (TB + 3, PR + 5, PR + 2, TB + 3))
    k("s_lshl_b32 s60, s%d, 10" % S_NH); k("s_add_u32 s60, s60, s%d" % S_PB); k("s_add_u32 s60, s60, %d" % KBO)
    k("v_add_u32 v%d, s60, v7" % (T + 1))
    k.lg("ds_write_b128 v%d, %s" % (T + 1, vr(TB, 4)))
    k("v_and_b32 v%d, 0x30, v%d" % (T + 2, V_LANE))
    k("v_lshlrev_b32 v%d, 2, v%d" % (T + 2, T + 2))
    k("v_add_u32 v%d, s60, v%d" % (T + 2, T + 2))
    TAB = 64
    tseq = []
    for ks in range(4):
        for j in range(4):
            tseq.append(k.lg("ds_read_b128 %s, v%d offset:%d" % (vr(TAB + 16 * ks + 4 * j, 4), T + 2, 256 * ks + 16 * j)))
    FR = 128
    VA = 40
    W = 160
    for ks in range(4):
        F = FR + 16 * (ks % 2)
        for j in range(4):
            k.wait_lg(tseq[4 * ks + j])
            e = TAB + 16 * ks + 4 * j
            X, PHs, SN, CS = W, W + 4, W + 8, W + 12
            for t in range(4):
                k("v_mul_f32 v%d, v%d, v%d" % (PHs + t, e + 1, V_LF + t))
            for t in range(4):
                k("v_mul_f32 v%d, v%d, v%d" % (X + t, e, V_LF + t))
            for t in range(4):
                k("v_fract_f32 v%d, v%d" % (PHs + t, PHs + t))
            for t in range(4):
                k("v_exp_f32 v%d, v%d" % (X + t, X + t))
            for t in range(4):
                k("v_sin_f32 v%d, v%d" % (SN + t, PHs + t))
            for t in range(4):
                k("v_cos_f32 v%d, v%d" % (CS + t, PHs + t))
            for t in (3, 0, 1, 2):
                k("v_mul_f32 v%d, v%d, v%d" % (SN + t, SN + t, X + t))
            for t in (3, 0, 1, 2):
                k("v_mul_f32 v%d, v%d, v%d" % (CS + t, CS + t, X + t))
            k("v_mul_f32 v%d, v%d, v%d" % (W + 16, CS + 3, e + 2))
            k("v_mul_f32 v%d, -v%d, v%d" % (W + 17, CS + 3, e + 3))
            for t in range(3):
                k("v_cvt_pk_bf16_f32 v%d, v%d, v%d" % (F + 4 * t + j, CS + t, SN + t))
            k("v_fma_f32 v%d, -v%d, v%d, v%d" % (W + 16, SN + 3, e + 3, W + 16))
            k("v_fma_f32 v%d, -v%d, v%d, v%d" % (W + 17, SN + 3, e + 2, W + 17))
            k("v_cvt_pk_bf16_f32 v%d, v%d, v%d" % (F + 12 + j, W + 16, W + 17))
        for t in range(3):
            k("v_mfma_f32_16x16x32_bf16 %s, %s, %s, %s" % (vr(VA + 4 * t, 4), vr(F + 4 * t, 4), vr(F + 12, 4), vr(VA + 4 * t, 4) if ks else "0"))
        if ks == opt.get("pub_ks", 1):
            k("s_waitcnt vmcnt(0)")
            k("v_mov_b32 v%d, %d" % (W + 20, SYNC + 32)); k("v_mov_b32 v%d, 1" % (W + 21))
            k("s_mov_b64 exec, 1")
            k.lg("ds_add_rtn_u32 v%d, v%d, v%d" % (W + 22, W + 20, W + 21))
            k("s_mov_b64 exec, -1")
            k("s_lshl_b32 s70, 1, s%d" % S_RB); k("s_lshl_b32 s71, 0x10000, s%d" % S_HP); k("s_or_b32 s70, s70, s71"); k("s_mov_b32 s71, 0")
            k("v_add_u32 v%d, 1, v%d" % (W + 23, V_OLD))
            k("s_waitcnt lgkmcnt(0)")
            k("v_readfirstlane_b32 s60, v%d" % (W + 22))
            Ls = k.lbl("nopub")
            k("s_cmp_lg_u32 s60, 3")
            k("s_cbranch_scc1 %s" % Ls)
            k("s_mov_b64 exec, s[70:71]")
            k("buffer_store_dword v%d, v%d, s[%d:%d], 0 offen sc1" % (W + 23, V_FA, R_WS, R_WS + 3))
            k("s_mov_b64 exec, -1")
            k.label(Ls)
    k.stamp()
    LN1 = k.lbl("nh1"); LJ = k.lbl("nhj")
    k("s_add_u32 s60, s%d, %d" % (S_PB, KBO + 1024))
    k("v_add_u32 v%d, s60, v7" % (T + 1))
    k("s_cmp_eq_u32 s%d, 1" % S_NH)
    k("s_cbranch_scc1 %s" % LN1)
    k.wait_words(V_PAR, 0, 1, 1, PT)
    sq = [k.lg("ds_read_b128 %s, v%d offset:%d" % (vr(W + 4 * t, 4), T + 1, 1024 * t)) for t in range(3)]
    k("v_and_b32 v%d, 15, v%d" % (T + 2, V_LANE))
    k("v_lshrrev_b32 v%d, 4, v%d" % (T + 3, V_LANE))
    k("s_add_u32 s60, s%d, %d" % (S_PB, KBO))
    k("v_lshlrev_b32 v%d, 5, v%d" % (T + 2, T + 2))
    k("v_add_u32 v%d, s60, v%d" % (T + 2, T + 2))
    k("v_lshl_add_u32 v%d, v%d, 3, v%d" % (T + 4, T + 3, T + 2))
    k("v_lshl_add_u32 v%d, v%d, 9, v%d" % (T + 5, T + 3, T + 2))
    k("v_add_u32 v%d, %d, v%d" % (T + 5, 120 + 1024 - 4, T + 5))
    k("v_lshl_add_u32 v%d, v%d, 10, v%d" % (T + 6, T + 3, T + 2))
    k("v_add_u32 v%d, %d, v%d" % (T + 6, 120 - 8, T + 6))
    k("v_lshlrev_b32 v%d, 2, v%d" % (T + 7, V_LANE))
    k("v_add_u32 v%d, s60, v%d" % (T + 7, T + 7))
    k("v_mov_b32 v%d, 0" % (T + 8))
    for t in range(3):
        k.wait_lg(sq[t])
        for i in range(4):
            k("v_add_f32 v%d, v%d, v%d" % (VA + 4 * t + i, VA + 4 * t + i, W + 4 * t + i))
    Q = T + 16
    V0, V1, V2 = VA, VA + 4, VA + 8
    pk = [(V2, V2), (V2, V2 + 1), (V2 + 1, V2 + 1), (V2 + 2, V2 + 2), (V2 + 2, V2 + 3), (V2 + 3, V2 + 3),
          (V1, V1), (V1 + 1, V1 + 2), (V0, V0 + 1), (V0 + 2, V0 + 3), (V1 + 3, V1 + 3)]
    for i, (a, b) in enumerate(pk):
        k("v_cvt_pk_bf16_f32 v%d, v%d, v%d" % (Q + i, a, b))
    aa, ab, bb, cc, cd, dd = [Q + i for i in range(6)]
    k("s_mov_b32 s70, 0"); k("s_mov_b32 s71, -1")
    k("s_mov_b64 exec, s[70:71]")
    for run, (x, xy, y) in enumerate(((aa, ab, bb), (cc, cd, dd))):
        o = 128 * run
        for i, (p, q) in enumerate(((x, x), (x, x), (xy, y), (y, y))):
            k.lg("ds_write2_b32 v%d, v%d, v%d offset0:%d offset1:%d" % (T + 6, p, q, o + 2 * i, o + 2 * i + 1))
    k("s_mov_b32 exec_lo, -1"); k("s_mov_b32 exec_hi, 0")
    for i, (p, q) in enumerate(((aa, aa), (ab, bb), (cc, cc), (cd, dd))):
        k.lg("ds_write2_b32 v%d, v%d, v%d offset0:%d offset1:%d" % (T + 5, p, q, 2 * i, 2 * i + 1))
    k("s_mov_b64 exec, -1")
    k.lg("ds_write_b64 v%d, %s offset:%d" % (T + 4, vr(Q + 6, 2), 120 + 512))
    k.lg("ds_write_b64 v%d, %s offset:%d" % (T + 4, vr(Q + 8, 2), 120))
    k("s_mov_b64 exec, 0x8000")
    k.lg("ds_write_b32 v%d, v%d offset:%d" % (T + 2, Q + 10, 120 + 4088 - 480))
    k.lg("ds_write_b32 v%d, v%d offset:%d" % (T + 2, Q + 10, 120 + 4092 - 480))
    k("s_mov_b64 exec, 0x3fffffff")
    k.lg("ds_write_b32 v%d, v%d" % (T + 7, T + 8))
    k("s_mov_b64 exec, -1")
    k("s_branch %s" % LJ)
    k.label(LN1)
    k.settle(8)
    for t in range(3):
        k.lg("ds_write_b128 v%d, %s offset:%d" % (T + 1, vr(VA + 4 * t, 4), 1024 * t))
    k.signal(V_OWN, T + 8, 1)
    LW3 = k.lbl("w3"); LRD = k.lbl("rdy")
    k("s_cmp_eq_u32 s%d, 3" % bw)
    k("s_cbranch_scc1 %s" % LW3)
    LP = k.lbl("poll"); LPD = k.lbl("polld")
    k("s_mov_b32 s61, 0")
    k("s_mov_b32 exec_lo, -1"); k("s_mov_b32 exec_hi, 0")
    k.label(LP)
    k("buffer_load_dword v%d, v%d, s[%d:%d], 0 offen sc1" % (T + 8, V_FA, R_WS, R_WS + 3))
    k("s_waitcnt vmcnt(0)")
    k("v_cmp_eq_u32 vcc, v%d, v%d" % (T + 8, V_OLD))
    k("s_nop 1")
    k("s_cbranch_vccz %s" % LPD)
    k("s_add_u32 s61, s61, 1")
    k("s_cmp_lt_u32 s61, %d" % LIM_GLB)
    k("s_cbranch_scc1 %s" % LP)
    k.label(LPD)
    k("s_mov_b64 exec, 1")
    k("v_mov_b32 v%d, %d" % (T + 9, SYNC + 36)); k("v_mov_b32 v%d, 1" % (T + 10))
    k.lg("ds_write_b32 v%d, v%d" % (T + 9, T + 10))
    k("s_mov_b64 exec, s[70:71]")
    k("v_add_u32 v%d, 2, v%d" % (T + 8, V_OLD))
    k("buffer_store_dword v%d, v%d, s[%d:%d], 0 offen sc1" % (T + 8, V_FA, R_WS, R_WS + 3))
    k("s_mov_b64 exec, -1")
    k("s_branch %s" % LRD)
    k.label(LW3)
    k.wait_words(V_SY, 20, 1, 1, PT)
    k.label(LRD)
    k.stamp()
    k("s_lshl_b32 s60, s%d, 12" % S_D)
    k.srd(R_A, S_WS, 4096, off_sgpr=60, off_imm=WS_UT)
    UL = 64
    k.nvm = 0
    sq = []
    for rd in range(4):
        k.vm("buffer_load_dwordx4 %s, v7, s[%d:%d], 0 offen offset:%d sc1" % (vr(UL + 8 * rd, 4), R_A, R_A + 3, 1024 * rd))
        if rd < 3:
            sq.append(k.vm("buffer_load_dwordx2 %s, v7, s[%d:%d], 0 offen offset:%d sc1" % (vr(UL + 8 * rd + 4, 2), R_A, R_A + 3, 1024 * rd + 16)))
        else:
            k("s_mov_b32 s60, 16")
            sq.append(k.vm("buffer_load_dwordx2 %s, v7, s[%d:%d], s60 offen offset:%d sc1" % (vr(UL + 8 * rd + 4, 2), R_A, R_A + 3, 1024 * rd)))
    k("v_add_u32 v%d, s%d, v7" % (T + 2, S_PB))
    for j in range(4):
        k("v_mov_b32 v%d, 0" % (T + 4 + j))
    k("s_mov_b64 exec, 0xffffff")
    for c in range(4):
        k.lg("ds_write_b128 v%d, %s offset:%d" % (T + 2, vr(T + 4, 4), c * UCS + 4096))
    k("s_mov_b64 exec, -1")
    for rd in range(4):
        D = UL + 8 * rd
        O = 128 + 16 * (rd % 2)
        k.wait_vm(sq[rd])
        for j in range(5):
            k("v_alignbit_b32 v%d, v%d, v%d, 16" % (O + j, D + j + 1, D + j))
        for j in range(4):
            k("v_mov_b32 v%d, v%d" % (O + 8 + j, D + 1 + j))
            k("v_mov_b32 v%d, v%d" % (O + 12 + j, O + 1 + j))
        k.lg("ds_write_b128 v%d, %s offset:%d" % (T + 2, vr(D, 4), 3 * UCS + 1024 * rd))
        k.lg("ds_write_b128 v%d, %s offset:%d" % (T + 2, vr(O, 4), 2 * UCS + 1024 * rd))
        k.lg("ds_write_b128 v%d, %s offset:%d" % (T + 2, vr(O + 8, 4), 1 * UCS + 1024 * rd))
        k.lg("ds_write_b128 v%d, %s offset:%d" % (T + 2, vr(O + 12, 4), 0 * UCS + 1024 * rd))
    k.label(LJ)
    k.signal(V_OWN, T + 8, 2)
    k("v_and_b32 v%d, 3, v%d" % (T, V_LANE))
    k("v_bfe_u32 v%d, v%d, 2, 2" % (T + 1, V_LANE))
    k("v_and_b32 v%d, 0x30, v%d" % (T + 2, V_LANE))
    k("s_movk_i32 s60, %d" % UCS)
    k("v_mul_lo_u32 v%d, v%d, s60" % (T + 3, T))
    k("v_lshlrev_b32 v%d, 7, v%d" % (T + 1, T + 1))
    k("v_sub_u32 v%d, v%d, v%d" % (T + 3, T + 3, T + 1))
    k("v_add_u32 v%d, v%d, v%d" % (T + 3, T + 3, T + 2))
    k("s_lshl_b32 s61, s%d, 8" % S_NH); k("s_add_u32 s61, s61, s%d" % S_PB)
    k("s_add_u32 s60, s61, 384")
    k("v_add_u32 v%d, s60, v%d" % (T + 3, T + 3))
    k("v_and_b32 v%d, 15, v%d" % (T + 4, V_LANE))
    k("v_lshl_add_u32 v%d, v%d, 3, v%d" % (T + 4, T + 4, T + 2))
    k("s_add_u32 s60, s61, %d" % KBO)
    k("v_add_u32 v%d, s60, v%d" % (T + 4, T + 4))
    UD = 208
    for j in range(2):
        for i in range(4):
            k("v_lshlrev_b32 v%d, 16, v%d" % (T + 8, V_UF + 4 * j + i))
            k("v_and_b32 v%d, 0xffff0000, v%d" % (T + 9, V_UF + 4 * j + i))
            k("v_lshlrev_b32 v%d, 16, v%d" % (T + 10, V_DS + i))
            k("v_and_b32 v%d, 0xffff0000, v%d" % (T + 11, V_DS + i))
            k("v_mul_f32 v%d, v%d, v%d" % (T + 8, T + 8, T + 10))
            k("v_mul_f32 v%d, v%d, v%d" % (T + 9, T + 9, T + 11))
            k("v_cvt_pk_bf16_f32 v%d, v%d, v%d" % (T + 8, T + 8, T + 9))
            k("v_lshlrev_b32 v%d, 16, v%d" % (UD + 8 * j + 2 * i, T + 8))
            k("v_and_b32 v%d, 0xffff0000, v%d" % (UD + 8 * j + 2 * i + 1, T + 8))
    k.wait_words(V_PAR, 0, 1, 2, PT)
    k.stamp()
    if opt.get("dump_k"):
        pass
    AC = 32
    AF = (64, 96); BF = (128, 160)
    def rdfr(ri):
        s = {}
        buf = ri % 2
        for i in range(8):
            s[("A", i)] = k.lg("ds_read_b128 %s, v%d offset:%d" % (vr(AF[buf] + 4 * i, 4), T + 3, 512 * (7 - i) + 64 * ri))
            k.lg("ds_read_b64 %s, v%d offset:%d" % (vr(BF[buf] + 4 * i, 2), T + 4, 512 * i + 64 * ri))
            s[("B", i)] = k.lg("ds_read_b64 %s, v%d offset:%d" % (vr(BF[buf] + 4 * i + 2, 2), T + 4, 512 * i + 64 * ri + 8))
        return s
    cur = rdfr(0)
    touched = set()
    for ri in range(4):
        buf = ri % 2
        pairs = sorted([(a, b) for a in range(8) for b in range(8) if a + b <= 7], key=lambda p: (max(p), p))
        order = []
        rem = pairs[:]
        while rem:
            for idx, p in enumerate(rem):
                if not order or (order[-1][0] + order[-1][1]) != (p[0] + p[1]) or idx == len(rem) - 1:
                    order.append(rem.pop(idx)); break
        nxt = None
        waited = -1
        for n, (a, b) in enumerate(order):
            if n == 12 and ri < 3:
                need = max(cur.values())
                if need > waited:
                    k.wait_lg(need); waited = need
                nxt = rdfr(ri + 1)
            need = max(cur[("A", b)], cur[("B", a)])
            if need > waited:
                k.wait_lg(need); waited = need
            q = a + b
            k("v_mfma_f32_16x16x32_bf16 %s, %s, %s, %s" % (vr(AC + 4 * q, 4), vr(AF[buf] + 4 * b, 4), vr(BF[buf] + 4 * a, 4), vr(AC + 4 * q, 4) if q in touched else "0"))
            touched.add(q)
        cur = nxt
    k.signal(V_OWN, T + 8, 3)
    k.stamp()
    k("s_mul_i32 s60, s%d, %d" % (S_NH, UCS)); k("s_add_u32 s60, s60, s%d" % S_PB)
    k("v_add_u32 v%d, s60, v7" % T)
    k("s_xor_b32 s61, s%d, 1" % S_NH); k("s_mul_i32 s61, s61, %d" % UCS); k("s_add_u32 s61, s61, s%d" % S_PB)
    k("v_add_u32 v%d, s61, v7" % (T + 1))
    k("v_lshlrev_b32 v%d, 3, v%d" % (T + 2, V_LANE))
    k("s_lshl_b32 s60, s%d, 12" % S_D); k("s_lshl_b32 s61, s%d, 11" % S_NH); k("s_add_u32 s60, s60, s61"); k("s_add_u32 s60, s60, %d" % WS_YT)
    k.wait_words(V_PAR, 0, 1, 3, PT)
    L1 = k.lbl("c1"); LJ2 = k.lbl("cj")
    k("s_cmp_eq_u32 s%d, 1" % S_NH)
    k("s_cbranch_scc1 %s" % L1)
    for nh in range(2):
        if nh == 1:
            k.label(L1)
        snd, keep = AC + 16 * (1 - nh), AC + 16 * nh
        for j in range(4):
            k.lg("ds_write_b128 v%d, %s offset:%d" % (T, vr(snd + 4 * j, 4), 1024 * j))
        k.signal(V_OWN, T + 8, 4)
        k.wait_words(V_PAR, 0, 1, 4, PT)
        sq = [k.lg("ds_read_b128 %s, v%d offset:%d" % (vr(64 + 4 * j, 4), T + 1, 1024 * j)) for j in range(4)]
        for j in range(4):
            k.wait_lg(sq[j])
            for i in range(4):
                k("v_add_f32 v%d, v%d, v%d" % (64 + 4 * j + i, 64 + 4 * j + i, keep + 4 * j + i))
        if nh == 0:
            k("s_branch %s" % LJ2)
    k.label(LJ2)
    for j in range(8):
        k("v_cvt_pk_bf16_f32 v%d, v%d, v%d" % (96 + j, 64 + 2 * j, 64 + 2 * j + 1))
    for j in range(8):
        k("v_min_u32 v%d, -2, v%d" % (96 + j, 96 + j))
    for j in range(4):
        k.vm("buffer_store_dwordx2 %s, v%d, s[%d:%d], s60 offen offset:%d sc1" % (vr(96 + 2 * j, 2), T + 2, R_WS, R_WS + 3, 512 * j))
    k.stamp()
    k("v_lshrrev_b32 v%d, 4, v%d" % (T, V_LANE))
    k("v_and_b32 v%d, 15, v%d" % (T + 1, V_LANE))
    k("v_lshlrev_b32 v%d, 12, v%d" % (T + 2, T))
    k("v_lshl_add_u32 v%d, v%d, 4, v%d" % (T + 2, T + 1, T + 2))
    k("s_lshl_b32 s60, s%d, 17" % S_HP); k("s_lshl_b32 s61, s%d, 15" % bw); k("s_add_u32 s60, s60, s61")
    k("s_lshl_b32 s61, s%d, 8" % S_RB); k("s_add_u32 s60, s60, s61"); k("s_add_u32 s60, s60, %d" % WS_YT)
    k("s_add_u32 s61, s60, 16384")
    STG = BREG + 2 * UCS
    k("s_movk_i32 s66, 288")
    k("v_mul_lo_u32 v%d, v%d, s66" % (T + 3, T))
    k("v_lshl_add_u32 v%d, v%d, 4, v%d" % (T + 3, T + 1, T + 3))
    k("s_mul_i32 s66, s%d, %d" % (bw, 8 * 288 + 128)); k("s_add_u32 s66, s66, %d" % STG)
    k("v_add_u32 v%d, s66, v%d" % (T + 3, T + 3))
    k("s_movk_i32 s66, %d" % (8 * 288 + 128))
    k("v_mul_lo_u32 v%d, v%d, s66" % (T + 4, T))
    k("v_bfe_u32 v%d, v%d, 2, 2" % (T + 5, V_LANE))
    k("s_movk_i32 s66, 288")
    k("v_mul_lo_u32 v%d, v%d, s66" % (T + 5, T + 5))
    k("v_add_u32 v%d, v%d, v%d" % (T + 4, T + 4, T + 5))
    k("v_and_b32 v%d, 3, v%d" % (T + 5, V_LANE))
    k("v_lshl_add_u32 v%d, v%d, 3, v%d" % (T + 4, T + 5, T + 4))
    k("s_lshl_b32 s66, s%d, 6" % bw); k("s_add_u32 s66, s66, %d" % STG)
    k("v_add_u32 v%d, s66, v%d" % (T + 4, T + 4))
    k("v_lshlrev_b32 v%d, 11, v%d" % (T + 5, T + 1))
    k("v_lshl_add_u32 v%d, v%d, 4, v%d" % (T + 5, T, T + 5))
    k("s_lshl_b32 s66, s%d, 18" % S_RB); k("s_lshl_b32 s67, s%d, 16" % bw); k("s_add_u32 s66, s66, s67")
    k("s_lshl_b32 s67, s%d, 6" % S_HP); k("s_add_u32 s66, s66, s67"); k("s_add_u32 s66, s66, 1024")
    k("s_add_u32 s67, s66, 32768")
    k.srd(R_D, S_OUT, 2048 * 2048)
    loads = [(64 + 4 * j, 4, ["buffer_load_dwordx4 %s, v%d, s[%d:%d], s%d offen sc1" % (vr(64 + 4 * j, 4), T + 2, R_WS, R_WS + 3, 60 + j)]) for j in range(2)]
    k.gather(loads, 72)
    k.stamp()
    k.wait_words(V_SY, 0, 2, 3, PT)
    for j in range(2):
        k.lg("ds_write_b128 v%d, %s offset:%d" % (T + 3, vr(64 + 4 * j, 4), 4 * 288 * j))
    k.signal(V_OWN, T + 8, 5)
    k.wait_words(V_SY, 0, 4, 5, PT)
    sq = []
    for j in range(2):
        for t in range(2):
            sq.append(k.lg("ds_read_b64_tr_b16 %s, v%d offset:%d" % (vr(80 + 4 * j + 2 * t, 2), T + 4, 32 * j + 4 * 288 * t)))
    for j in range(2):
        k.wait_lg(sq[2 * j + 1])
        for i in range(4):
            y = 80 + 4 * j + i
            k("v_lshlrev_b32 v%d, 16, v%d" % (T + 8, y))
            k("v_and_b32 v%d, 0xffff0000, v%d" % (T + 9, y))
            k("v_add_f32 v%d, v%d, v%d" % (T + 8, T + 8, UD + 8 * j + 2 * i))
            k("v_add_f32 v%d, v%d, v%d" % (T + 9, T + 9, UD + 8 * j + 2 * i + 1))
            k("v_cvt_pk_bf16_f32 v%d, v%d, v%d" % (96 + 4 * j + i, T + 8, T + 9))
        k.vm("buffer_store_dwordx4 %s, v%d, s[%d:%d], s%d offen" % (vr(96 + 4 * j, 4), T + 5, R_D, R_D + 3, 66 + j))
    k("s_waitcnt vmcnt(0)")
    k.stamp()
    k.dump_stamps(32)
```

```python
import sys
from common import *
from role_a import role_a
from role_b import role_b

def build(opt):
    k = K(dbg=opt.get("dbg", 0))
    k.slp = opt.get("slp", 0)
    hdr = open("concat_heads__linear_kernel_hedgehog__ssm_conv_s4__prompt.s.ref").read().split("; Override")[0]
    k.raw(hdr.rstrip("\n"))
    k.raw("; @launch grid=(256,1,1) block=(512,1,1) lds=%d" % LDS_TOTAL)
    k.raw('.amdgcn_target "amdgcn-amd-amdhsa--gfx950"')
    k.raw(".text"); k.raw(".globl %s" % NAME); k.raw(".p2align 8"); k.raw(".type %s,@function" % NAME)
    k.label(NAME)
    k("s_cmp_ge_u32 s2, 256")
    k("s_cbranch_scc1 L_end")
    k("s_load_dwordx16 s[4:19], s[0:1], 0")
    k("s_load_dwordx16 s[20:35], s[0:1], 64")
    if opt.get("dbg"):
        for i in range(16):
            k("s_mov_b32 s%d, 0" % (S_STAMP + i))
        k.stamp()
    k("v_lshrrev_b32 v2, 6, v0")
    k("v_and_b32 v1, 63, v0")
    k("v_readfirstlane_b32 s%d, v2" % S_WAVE)
    k("v_and_b32 v3, 15, v0"); k("v_lshlrev_b32 v3, 2, v3"); k("v_add_u32 v3, %d, v3" % SYNC); k("v_mov_b32 v4, 0")
    k("ds_write_b32 v3, v4")
    wg_map(k, opt.get("map", 0))
    k("s_and_b32 s%d, s%d, 3" % (S_RW, S_WAVE))
    k("s_waitcnt lgkmcnt(0)")
    if not opt.get("bar"):
        k("s_barrier")
    k.srd(R_WS, S_WS, WS_SIZE)
    k("s_cmp_ge_u32 s%d, 4" % S_WAVE)
    k("s_cbranch_scc1 L_roleB")
    ns = k.nstamp
    role_a(k, opt)
    k("s_endpgm")
    k.label("L_roleB", clear=True)
    k.nvm = 0; k.nlg = 0; k.nstamp = ns
    role_b(k, opt)
    k.label("L_end")
    k("s_endpgm")
    k.raw('.section .rodata,"a"\n.p2align 6\n.amdhsa_kernel %s' % NAME)
    k.raw("""  .amdhsa_next_free_vgpr 256
  .amdhsa_next_free_sgpr 102
  .amdhsa_accum_offset 256
  .amdhsa_group_segment_fixed_size 0
  .amdhsa_kernarg_size 128
  .amdhsa_user_sgpr_count 2
  .amdhsa_user_sgpr_kernarg_segment_ptr 1
  .amdhsa_system_sgpr_workgroup_id_x 1
.end_amdhsa_kernel""")
    return k.text()

if __name__ == "__main__":
    opt = {}
    for a in sys.argv[2:]:
        kk, v = a.split("="); opt[kk] = int(v, 0)
    open(sys.argv[1], "w").write(build(opt))
```

```python
from common import *

V_LANE = 1
V_XO, V_WO_, V_BW0, V_BW1 = 2, 3, 4, 5
V_BR = 6
V_TR, V_TRQ = 10, 11
V_SY, V_OWN = 12, 13
V_T = 16
V_WF = 32
V_AQ, V_AK, V_AV, V_P = 64, 80, 96, 112
V_X = 128
S_L2E = 62
V_XI = 112


def softmax(k, P, E, out, T, round_p):
    if round_p:
        for j in range(8):
            k("v_cvt_pk_bf16_f32 v%d, v%d, v%d" % (E + j, P + 2 * j, P + 2 * j + 1))
        for j in range(8):
            k("v_lshlrev_b32 v%d, 16, v%d" % (P + 2 * j, E + j))
            k("v_and_b32 v%d, 0xffff0000, v%d" % (P + 2 * j + 1, E + j))
    mx0, mx1, mn0, mn1, a, b, c, d = T, T + 1, T + 2, T + 3, T + 4, T + 5, T + 6, T + 7
    for op, dst in (("max", (mx0, mx1)), ("min", (mn0, mn1))):
        for t in range(2):
            p = P + 8 * t
            k("v_%s3_f32 v%d, v%d, v%d, v%d" % (op, dst[t], p, p + 1, p + 2))
        for t in range(2):
            p = P + 8 * t
            k("v_%s3_f32 v%d, v%d, v%d, v%d" % (op, dst[t], dst[t], p + 3, p + 4))
        for t in range(2):
            p = P + 8 * t
            k("v_%s3_f32 v%d, v%d, v%d, v%d" % (op, dst[t], dst[t], p + 5, p + 6))
        for t in range(2):
            p = P + 8 * t
            k("v_%s_f32 v%d, v%d, v%d" % (op, dst[t], dst[t], p + 7))
    k("v_permlane32_swap_b32 v%d, v%d" % (mx0, mx1))
    k("v_permlane32_swap_b32 v%d, v%d" % (mn0, mn1))
    k("v_max_f32 v%d, v%d, v%d" % (a, mx0, mx1))
    k("v_min_f32 v%d, v%d, v%d" % (c, mn0, mn1))
    k("v_mul_f32 v%d, s%d, v%d" % (a, S_L2E, a))
    k("v_mul_f32 v%d, s%d, v%d" % (c, S_L2E, c))
    k("v_mov_b32 v%d, v%d" % (b, a))
    k("v_mov_b32 v%d, v%d" % (d, c))
    k("v_permlane32_swap_b32 v%d, v%d" % (a, b))
    k("v_permlane32_swap_b32 v%d, v%d" % (c, d))
    mxl = (a, b); mnl = (c, d)
    for i in range(16):
        t = i // 8
        k("v_fma_f32 v%d, v%d, s%d, -v%d" % (E + i, P + i, S_L2E, mxl[t]))
        k("v_fma_f32 v%d, -v%d, s%d, v%d" % (E + 16 + i, P + i, S_L2E, mnl[t]))
    for i in range(32):
        k("v_exp_f32 v%d, v%d" % (E + i, E + i))
    S = [[T + 8, T + 9], [T + 10, T + 11]]
    for sg in range(2):
        for t in range(2):
            e = E + 16 * sg + 8 * t
            k("v_add_f32 v%d, v%d, v%d" % (S[sg][t], e, e + 1))
    for j in range(2, 8):
        for sg in range(2):
            for t in range(2):
                e = E + 16 * sg + 8 * t
                k("v_add_f32 v%d, v%d, v%d" % (S[sg][t], S[sg][t], e + j))
    for sg in range(2):
        k("v_permlane32_swap_b32 v%d, v%d" % (S[sg][0], S[sg][1]))
    R = [[T, T + 1], [T + 2, T + 3]]
    for sg in range(2):
        k("v_add_f32 v%d, v%d, v%d" % (R[sg][0], S[sg][0], S[sg][1]))
    for sg in range(2):
        k("v_rcp_f32 v%d, v%d" % (R[sg][0], R[sg][0]))
    for sg in range(2):
        k("v_mov_b32 v%d, v%d" % (R[sg][1], R[sg][0]))
    for sg in range(2):
        k("v_permlane32_swap_b32 v%d, v%d" % (R[sg][0], R[sg][1]))
    for sg in range(2):
        for i in range(16):
            k("v_mul_f32 v%d, v%d, v%d" % (E + 16 * sg + i, E + 16 * sg + i, R[sg][i // 8]))
    for t in range(2):
        for sg in range(2):
            for j in range(4):
                e = E + 16 * sg + 8 * t + 2 * j
                k("v_cvt_pk_bf16_f32 v%d, v%d, v%d" % (out + (2 * t + sg) * 4 + j, e, e + 1))


def role_a(k, opt):
    T = V_T
    aw = S_RW
    k("s_lshl_b32 s60, s%d, 17" % S_RB)
    k.srd(R_A, S_X, 131072, off_sgpr=60)
    k("s_lshl_b32 s60, s%d, 6" % S_HP)
    k("s_sub_u32 s61, %d, s60" % (512 * 3072))
    k.srd(R_B, S_W, "s61", off_sgpr=60)
    k("v_lshrrev_b32 v%d, 3, v%d" % (T, V_LANE))
    k("v_and_b32 v%d, 7, v%d" % (T + 1, V_LANE))
    k("s_lshl_b32 s60, s%d, 15" % aw)
    k("v_lshlrev_b32 v%d, 10, v%d" % (V_XO, T))
    k("v_lshl_add_u32 v%d, v%d, 4, v%d" % (V_XO, T + 1, V_XO))
    k("v_add_u32 v%d, s60, v%d" % (V_XO, V_XO))
    k("v_lshrrev_b32 v%d, 2, v%d" % (T + 2, V_LANE))
    k("v_and_b32 v%d, 3, v%d" % (T + 3, V_LANE))
    k("s_movk_i32 s60, 3072")
    k("v_mul_lo_u32 v%d, v%d, s60" % (V_WO_, T + 2))
    k("v_lshl_add_u32 v%d, v%d, 4, v%d" % (V_WO_, T + 3, V_WO_))
    for i in range(1, 4):
        k("v_add_u32 v%d, %d, v%d" % (V_XI + i, 8192 * i, V_XO))
    k("s_mul_i32 s66, s%d, %d" % (aw, 16 * 3072))
    k("s_lshl_b32 s67, s%d, 10" % aw)
    k("s_lshl_b32 s63, s%d, 1" % S_RB); k("s_add_u32 s63, s63, s%d" % S_HP)
    if not opt.get("rot", 1):
        k("s_mov_b32 s63, 0")
    last = {}
    def chunk_s(p):
        k("s_add_u32 s64, s63, %d" % p); k("s_and_b32 s64, s64, 7")
        k("s_mul_i32 s65, s64, %d" % (64 * 3072)); k("s_add_u32 s65, s65, s66")
        k("s_lshl_b32 s64, s64, 7")
    def wdma(part_lds, part_goff, p):
        k("s_add_u32 s68, s65, %d" % part_goff)
        k("s_add_u32 m0, s67, %d" % (part_lds + p * 4096))
        return k.vm("buffer_load_dwordx4 v%d, s[%d:%d], s68 offen lds" % (V_WO_, R_B, R_B + 3))
    def issue(p):
        chunk_s(p)
        wdma(WK, 1024, p)
        for i in range(4):
            k.vm("buffer_load_dwordx4 %s, v%d, s[%d:%d], s64 offen" % (vr(V_X + 16 * p + 4 * i, 4), V_XO if i == 0 else V_XI + i, R_A, R_A + 3))
        last[p] = wdma(WV, 2048, p)
    def issue_q(p):
        chunk_s(p)
        return wdma(WQ, 0, p)
    AHEAD = opt.get("ahead", 4)
    for p in range(AHEAD):
        issue(p)
    k("s_lshl_b32 s60, s%d, 10" % S_HP)
    k.srd(R_C, S_WPHI, 1024, off_sgpr=60)
    k("v_lshlrev_b32 v%d, 4, v%d" % (T + 4, V_LANE))
    k("s_mov_b32 m0, %d" % WPHI)
    k.vm("buffer_load_dwordx4 v%d, s[%d:%d], 0 offen lds" % (T + 4, R_C, R_C + 3))
    k("s_lshl_b32 s60, s%d, 12" % aw)
    k("s_add_u32 s60, s60, %d" % BOUNCE)
    k("v_lshrrev_b32 v%d, 4, v%d" % (T + 4, V_LANE))
    k("v_xor_b32 v%d, v%d, v%d" % (T + 5, T + 1, T + 4))
    k("v_lshlrev_b32 v%d, 7, v%d" % (V_BW0, T))
    k("v_lshl_add_u32 v%d, v%d, 4, v%d" % (V_BW0, T + 5, V_BW0))
    k("v_add_u32 v%d, s60, v%d" % (V_BW0, V_BW0))
    k("v_xor_b32 v%d, 64, v%d" % (V_BW1, V_BW0))
    k("v_and_b32 v%d, 31, v%d" % (T + 6, V_LANE))
    k("v_lshrrev_b32 v%d, 5, v%d" % (T + 7, V_LANE))
    k("v_bfe_u32 v%d, v%d, 1, 3" % (T + 8, V_LANE))
    k("v_xor_b32 v%d, v%d, v%d" % (T + 8, T + 8, T + 7))
    k("v_lshlrev_b32 v%d, 7, v%d" % (V_BR, T + 6))
    k("v_lshl_add_u32 v%d, v%d, 4, v%d" % (V_BR, T + 8, V_BR))
    k("v_add_u32 v%d, s60, v%d" % (V_BR, V_BR))
    for j in range(1, 4):
        k("v_xor_b32 v%d, %d, v%d" % (V_BR + j, 32 * j, V_BR))
    k("v_bfe_u32 v%d, v%d, 2, 2" % (T + 9, V_LANE))
    k("v_lshl_add_u32 v%d, v%d, 3, v%d" % (T + 10, T + 7, T + 9))
    k("v_and_b32 v%d, 1, v%d" % (T + 11, T + 4))
    k("v_lshlrev_b32 v%d, 6, v%d" % (V_TR, T + 10))
    k("v_lshl_add_u32 v%d, v%d, 5, v%d" % (V_TR, T + 11, V_TR))
    k("v_lshl_add_u32 v%d, v%d, 3, v%d" % (V_TR, T + 3, V_TR))
    k("v_add_u32 v%d, 0x10000, v%d" % (V_TRQ, V_TR))
    k("v_mov_b32 v%d, %d" % (V_SY, SYNC))
    k("s_lshl_b32 s60, s%d, 2" % aw)
    k("s_add_u32 s60, s60, %d" % SYNC)
    k("v_mov_b32 v%d, s60" % V_OWN)
    k("s_mov_b32 s%d, 0x3fb8aa3b" % S_L2E)
    for i in range(16):
        k("v_mov_b32 v%d, 0" % (V_AK + i)); k("v_mov_b32 v%d, 0" % (V_AV + i)); k("v_mov_b32 v%d, 0" % (V_AQ + i))
    k.stamp()
    PT = T + 12

    def prep(c):
        k.wait_vm(last[c])
        k.signal(V_OWN, T, c + 1)
        for i in range(4):
            k.lg("ds_write_b128 v%d, %s offset:%d" % (V_BW0 + (i % 2), vr(V_X + 16 * c + 4 * i, 4), 1024 * i))
        for j in range(4):
            k.lg("ds_read_b128 %s, v%d" % (vr(V_X + 16 * c + 4 * j, 4), V_BR + j))
        k._rdw(V_SY, 0, 4, PT)
    prep(0)
    for c in range(8):
        k.wait_words(V_SY, 0, 4, c + 1, PT, first_issued=True)
        seqs = []
        for ks in range(4):
            for part in range(2):
                for t in range(2):
                    off = (WK, WV)[part] + c * 4096 + ks * 1024 + 256 * t
                    seqs.append(k.lg("ds_read_b64_tr_b16 %s, v%d offset:%d" % (vr(V_WF + 8 * ks + 4 * part + 2 * t, 2), V_TR, off)))
        for ks in range(4):
            if ks == 1:
                if c + AHEAD < 8:
                    issue(c + AHEAD)
                else:
                    nq = 8 // AHEAD
                    for p in range((c + AHEAD - 8) * nq, (c + AHEAD - 7) * nq):
                        lastq = issue_q(p)
            if ks == 2 and c < 7:
                prep(c + 1)
            for part in range(2):
                k.wait_lg(seqs[4 * ks + 2 * part + 1])
                acc = (V_AK, V_AV)[part]
                k("v_mfma_f32_32x32x16_bf16 %s, %s, %s, %s" % (vr(acc, 16), vr(V_WF + 8 * ks + 4 * part, 4), vr(V_X + 16 * c + 4 * ks, 4), vr(acc, 16)))
    k.stamp()
    VA = T
    k("v_lshrrev_b32 v%d, 5, v%d" % (VA + 1, V_LANE))
    k("v_bfe_u32 v%d, v%d, 2, 2" % (VA + 2, V_LANE))
    k("v_lshl_add_u32 v%d, v%d, 2, v%d" % (VA + 1, VA + 1, VA + 2))
    k("v_bfe_u32 v%d, v%d, 4, 1" % (VA + 2, V_LANE))
    k("v_and_b32 v%d, 3, v%d" % (VA + 3, V_LANE))
    k("v_lshlrev_b32 v%d, 5, v%d" % (VA, VA + 1))
    k("v_lshl_add_u32 v%d, v%d, 9, v%d" % (VA, VA + 2, VA))
    k("v_lshl_add_u32 v%d, v%d, 3, v%d" % (VA, VA + 3, VA))
    k("v_add_u32 v%d, %d, v%d" % (VA, WPHI, VA))
    RAW = 104
    PH0, PH1 = 96, 100
    VB, KB_ = 32, 40
    s_raw0 = k.lg("ds_read_b64_tr_b16 %s, v%d" % (vr(T + 4, 2), VA))
    s_raw1 = k.lg("ds_read_b64_tr_b16 %s, v%d offset:256" % (vr(T + 6, 2), VA))
    VS = T + 8
    k("v_and_b32 v%d, 31, v%d" % (VS, V_LANE))
    k("v_lshrrev_b32 v%d, 5, v%d" % (VS + 1, V_LANE))
    k("v_lshlrev_b32 v%d, 5, v%d" % (VS, VS))
    k("v_lshl_add_u32 v%d, v%d, 4, v%d" % (VS, VS + 1, VS))
    k("s_lshl_b32 s60, s%d, 10" % aw)
    k("v_add_u32 v%d, s60, v%d" % (14, VS))
    VS = 14
    k("v_cmp_eq_u32 vcc, 0, v%d" % (VA + 2))
    for j in range(8):
        k("v_cvt_pk_bf16_f32 v%d, v%d, v%d" % (KB_ + j, V_AK + 2 * j, V_AK + 2 * j + 1))
    for j in range(8):
        k("v_cvt_pk_bf16_f32 v%d, v%d, v%d" % (VB + j, V_AV + 2 * j, V_AV + 2 * j + 1))
    k.wait_lg(s_raw1)
    for j in range(4):
        k("v_cndmask_b32 v%d, 0, v%d, vcc" % (PH0 + j, T + 4 + j))
        k("v_cndmask_b32 v%d, v%d, 0, vcc" % (PH1 + j, T + 4 + j))
    if opt.get("dump_kv"):
        k("s_lshl_b32 s60, s2, 2"); k("s_add_u32 s60, s60, s%d" % aw); k("s_lshl_b32 s60, s60, 12"); k("s_add_u32 s60, s60, %d" % (WS_DBG + 0x100000))
        k("v_lshlrev_b32 v15, 4, v%d" % V_LANE)
        for j, r in enumerate((KB_, KB_ + 4, VB, VB + 4)):
            k.vm("buffer_store_dwordx4 %s, v15, s[%d:%d], s60 offen offset:%d" % (vr(r, 4), R_WS, R_WS + 3, 1024 * j))
    k("v_mfma_f32_32x32x16_bf16 %s, %s, %s, 0" % (vr(V_P, 16), vr(PH0, 4), vr(KB_, 4)))
    k("v_mfma_f32_32x32x16_bf16 %s, %s, %s, %s" % (vr(V_P, 16), vr(PH1, 4), vr(KB_ + 4, 4), vr(V_P, 16)))
    for t in range(2):
        k.lg("ds_write_b128 v%d, %s offset:%d" % (VS, vr(VB + 4 * t, 4), (4 + t) * 4096))
    if opt.get("dump_kv"):
        k("s_waitcnt vmcnt(0)")
    PHI = V_AK
    softmax(k, V_P, 32, PHI, T, opt.get("round_p", 0))
    for g in range(4):
        k.lg("ds_write_b128 v%d, %s offset:%d" % (VS, vr(PHI + 4 * g, 4), g * 4096))
    k.wait_vm(lastq)
    k.signal(V_OWN, T, 9)
    k("v_lshrrev_b32 v%d, 2, v%d" % (T, V_LANE))
    k("v_and_b32 v%d, 3, v%d" % (T + 1, V_LANE))
    k("v_lshlrev_b32 v%d, 5, v%d" % (T, T))
    k("v_lshl_add_u32 v%d, v%d, 3, v%d" % (T, T + 1, T))
    k("s_lshl_b32 s60, s%d, 12" % aw)
    k("s_lshr_b32 s61, s%d, 1" % aw); k("s_lshl_b32 s61, s61, 12"); k("s_add_u32 s61, s61, 16384")
    k("v_add_u32 v%d, s60, v%d" % (T + 2, T))
    k("v_add_u32 v%d, s61, v%d" % (T + 3, T))
    ONES = T + 4
    for j in range(4):
        k("v_mov_b32 v%d, 0x3f803f80" % (ONES + j))
    k.wait_words(V_SY, 0, 4, 9, PT)
    k.stamp()
    seqs = []
    for e in range(4):
        for ab in range(2):
            for t in range(2):
                seqs.append(k.lg("ds_read_b64_tr_b16 %s, v%d offset:%d" % (vr(32 + 8 * e + 4 * ab + 2 * t, 2), T + 2 + ab, 1024 * e + 512 * t)))
    KV, ZZ = 104, 108
    for e in range(4):
        k.wait_lg(seqs[4 * e + 3])
        k("v_mfma_f32_16x16x32_bf16 %s, %s, %s, %s" % (vr(KV, 4), vr(32 + 8 * e, 4), vr(36 + 8 * e, 4), vr(KV, 4) if e else "0"))
        k("v_mfma_f32_16x16x32_bf16 %s, %s, %s, %s" % (vr(ZZ, 4), vr(32 + 8 * e, 4), vr(ONES, 4), vr(ZZ, 4) if e else "0"))
    k.signal(V_OWN, T, 10)
    k.wait_words(V_SY, 32, 1, 4, PT)
    k("s_lshl_b32 s60, s%d, 4" % S_HP); k("s_add_u32 s60, s60, s%d" % S_RB); k("s_mul_i32 s60, s60, %d" % KVP_STRIDE)
    k("s_add_u32 s60, s60, %d" % WS_KVP)
    k("s_lshl_b32 s61, s%d, 10" % aw)
    k("v_lshlrev_b32 v%d, 4, v%d" % (T, V_LANE))
    k("v_add_u32 v%d, s61, v%d" % (T, T))
    k("s_lshl_b32 s61, s%d, 6" % aw); k("s_add_u32 s61, s61, 4096")
    k("v_and_b32 v%d, 0x30, v%d" % (T + 1, V_LANE))
    k("v_add_u32 v%d, s61, v%d" % (T + 1, T + 1))
    for j in range(8):
        k("v_min_u32 v%d, -2, v%d" % (KV + j, KV + j))
    k.vm("buffer_store_dwordx4 %s, v%d, s[%d:%d], s60 offen sc1" % (vr(KV, 4), T, R_WS, R_WS + 3))
    k("s_mov_b32 s68, 0x00010001"); k("s_mov_b32 s69, 0x00010001")
    k("s_mov_b64 exec, s[68:69]")
    k.vm("buffer_store_dwordx4 %s, v%d, s[%d:%d], s60 offen sc1" % (vr(ZZ, 4), T + 1, R_WS, R_WS + 3))
    k("s_mov_b64 exec, -1")
    k("v_mov_b32 v15, v%d" % T)
    k.stamp()
    k("s_lshr_b32 s60, s%d, 1" % S_HP); k("s_lshl_b32 s60, s60, 7")
    k("s_sub_u32 s61, %d, s60" % (512 * 1024))
    k.srd(R_C, S_WO, "s61", off_sgpr=60)
    k("v_lshrrev_b32 v%d, 3, v%d" % (T + 2, V_LANE))
    k("v_and_b32 v%d, 7, v%d" % (T + 3, V_LANE))
    k("v_bfe_u32 v%d, v%d, 4, 1" % (T + 4, V_LANE))
    k("v_lshlrev_b32 v%d, 2, v%d" % (T + 4, T + 4))
    k("v_xor_b32 v%d, v%d, v%d" % (T + 3, T + 3, T + 4))
    k("v_lshlrev_b32 v%d, 10, v%d" % (V_XO, T + 2))
    k("v_lshl_add_u32 v%d, v%d, 4, v%d" % (V_XO, T + 3, V_XO))
    k("s_lshl_b32 s66, s%d, 13" % aw)
    def wodma(part, lds):
        for i in range(8):
            k("s_add_u32 s68, s66, %d" % ((part * 256 + 32 * i) * 1024))
            k("s_add_u32 m0, s67, %d" % (lds + i * 4096))
            r = k.vm("buffer_load_dwordx4 v%d, s[%d:%d], s68 offen lds" % (V_XO, R_C, R_C + 3))
        return r
    wodma(0, WV)
    for half in range(4):
        seqs = []
        for ks in range(8):
            for t in range(2):
                off = (half * 8 + ks) * 1024 + 256 * t
                seqs.append(k.lg("ds_read_b64_tr_b16 %s, v%d offset:%d" % (vr(V_WF + 4 * ks + 2 * t, 2), V_TRQ, off)))
        for ks in range(8):
            k.wait_lg(seqs[2 * ks + 1])
            k("v_mfma_f32_32x32x16_bf16 %s, %s, %s, %s" % (vr(V_AQ, 16), vr(V_WF + 4 * ks, 4), vr(V_X + 4 * (half * 8 + ks), 4), vr(V_AQ, 16)))
        if half == 0:
            k.wait_words(V_SY, 0, 4, 10, PT)
            wodma(1, WK)
    for j in range(8):
        k("v_cvt_pk_bf16_f32 v%d, v%d, v%d" % (KB_ + j, V_AQ + 2 * j, V_AQ + 2 * j + 1))
    k("v_mfma_f32_32x32x16_bf16 %s, %s, %s, 0" % (vr(V_P, 16), vr(PH0, 4), vr(KB_, 4)))
    k("v_mfma_f32_32x32x16_bf16 %s, %s, %s, %s" % (vr(V_P, 16), vr(PH1, 4), vr(KB_ + 4, 4), vr(V_P, 16)))
    softmax(k, V_P, 32, PHI, T, opt.get("round_p", 0))
    k.stamp()
    k.wait_words(V_SY, 36, 1, 1, PT)
    k("s_mul_i32 s60, s%d, %d" % (S_HP, 16 * KVP_STRIDE)); k("s_add_u32 s60, s60, %d" % WS_KVP)
    k("v_and_b32 v%d, 15, v%d" % (T, V_LANE))
    k("s_movk_i32 s61, %d" % KVP_STRIDE)
    k("v_mul_lo_u32 v%d, v%d, s61" % (T + 1, T))
    k("v_and_b32 v%d, 0x30, v%d" % (T + 2, V_LANE))
    k("v_add_u32 v%d, v%d, v%d" % (T + 1, T + 1, T + 2))
    k("s_lshl_b32 s61, s%d, 6" % aw); k("s_add_u32 s61, s61, 4096")
    k("v_add_u32 v%d, s61, v%d" % (T + 1, T + 1))
    G0 = 128
    loads = []
    for p in range(16):
        loads.append((G0 + 4 * p, 4, ["s_add_u32 s68, s60, %d" % (p * KVP_STRIDE),
                                      "buffer_load_dwordx4 %s, v15, s[%d:%d], s68 offen sc1" % (vr(G0 + 4 * p, 4), R_WS, R_WS + 3)]))
    loads.append((G0 + 64, 4, ["buffer_load_dwordx4 %s, v%d, s[%d:%d], s60 offen sc1" % (vr(G0 + 64, 4), T + 1, R_WS, R_WS + 3)]))
    k.gather(loads, 196)
    k.stamp()
    for step in (8, 4, 2, 1):
        for p in range(step):
            for j in range(4):
                k("v_add_f32 v%d, v%d, v%d" % (G0 + 4 * p + j, G0 + 4 * p + j, G0 + 4 * (p + step) + j))
        for j in range(4):
            k("v_add_f32_dpp v%d, v%d, v%d row_ror:%d row_mask:0xf bank_mask:0xf" % (G0 + 64 + j, G0 + 64 + j, G0 + 64 + j, step))
    k("v_cvt_pk_bf16_f32 v%d, v%d, v%d" % (T + 4, G0, G0 + 1)); k("v_cvt_pk_bf16_f32 v%d, v%d, v%d" % (T + 5, G0 + 2, G0 + 3))
    k("v_cvt_pk_bf16_f32 v%d, v%d, v%d" % (T + 6, G0 + 64, G0 + 65)); k("v_cvt_pk_bf16_f32 v%d, v%d, v%d" % (T + 7, G0 + 66, G0 + 67))
    k("v_lshrrev_b32 v%d, 4, v%d" % (T + 2, V_LANE))
    k("v_lshlrev_b32 v%d, 5, v%d" % (T, T))
    k("v_lshl_add_u32 v%d, v%d, 3, v%d" % (T, T + 2, T))
    k("s_lshl_b32 s60, s%d, 12" % aw); k("s_add_u32 s60, s60, %d" % BOUNCE)
    k("v_add_u32 v%d, s60, v%d" % (T, T))
    k.lg("ds_write_b64 v%d, %s" % (T, vr(T + 4, 2)))
    k.lg("ds_write_b64 v%d, %s offset:512" % (T, vr(T + 6, 2)))
    k.signal(V_OWN, T + 8, 11)
    k("v_and_b32 v%d, 31, v%d" % (T + 1, V_LANE))
    k("v_lshrrev_b32 v%d, 5, v%d" % (T + 2, V_LANE))
    k("v_lshlrev_b32 v%d, 5, v%d" % (T + 1, T + 1))
    k("v_lshl_add_u32 v%d, v%d, 4, v%d" % (T + 1, T + 2, T + 1))
    k("v_add_u32 v%d, %d, v%d" % (T + 1, BOUNCE, T + 1))
    k.wait_words(V_SY, 0, 4, 11, PT)
    seqs = [k.lg("ds_read_b128 %s, v%d offset:%d" % (vr(32 + 4 * g, 4), T + 1, 4096 * g)) for g in range(4)]
    D0 = (48, 64)
    for t in range(2):
        k.wait_lg(seqs[2 * t + 1])
        k("v_mfma_f32_32x32x16_bf16 %s, %s, %s, 0" % (vr(D0[t], 16), vr(32 + 8 * t, 4), vr(PHI + 8 * t, 4)))
        k("v_mfma_f32_32x32x16_bf16 %s, %s, %s, %s" % (vr(D0[t], 16), vr(36 + 8 * t, 4), vr(PHI + 8 * t + 4, 4), vr(D0[t], 16)))
    k("s_lshl_b32 s60, s%d, 2" % S_RB); k("s_add_u32 s60, s60, s%d" % aw); k("s_lshl_b32 s60, s60, 4"); k("s_add_u32 s60, s60, s%d" % S_HP)
    k("s_lshl_b32 s60, s60, 11"); k("s_add_u32 s60, s60, %d" % WS_OF)
    k("v_lshlrev_b32 v15, 4, v%d" % V_LANE)
    k("s_mov_b32 s61, 0x358637bd")
    OP = 96
    for t in range(2):
        k("v_add_f32 v%d, s61, v%d" % (T + 4 + t, D0[t] + 8))
        k("v_rcp_f32 v%d, v%d" % (T + 4 + t, T + 4 + t))
        for i in range(8):
            k("v_mul_f32 v%d, v%d, v%d" % (D0[t] + i, D0[t] + i, T + 4 + t))
        for j in range(4):
            k("v_cvt_pk_bf16_f32 v%d, v%d, v%d" % (OP + 4 * t + j, D0[t] + 2 * j, D0[t] + 2 * j + 1))
        for j in range(4):
            k("v_min_u32 v%d, -2, v%d" % (OP + 4 * t + j, OP + 4 * t + j))
        k.vm("buffer_store_dwordx4 %s, v15, s[%d:%d], s60 offen offset:%d sc1" % (vr(OP + 4 * t, 4), R_WS, R_WS + 3, 1024 * t))
    k.stamp()
    k("v_lshrrev_b32 v%d, 5, v%d" % (T, V_LANE))
    k("v_bfe_u32 v%d, v%d, 2, 2" % (T + 1, V_LANE))
    k("v_lshl_add_u32 v%d, v%d, 3, v%d" % (T, T, T + 1))
    k("v_lshlrev_b32 v%d, 7, v%d" % (T, T))
    k("v_bfe_u32 v%d, v%d, 3, 1" % (T + 1, V_LANE))
    k("v_lshl_add_u32 v%d, v%d, 6, v%d" % (T, T + 1, T))
    k("v_bfe_u32 v%d, v%d, 4, 1" % (T + 1, V_LANE))
    k("v_lshl_add_u32 v%d, v%d, 5, v%d" % (T, T + 1, T))
    k("v_and_b32 v%d, 3, v%d" % (T + 1, V_LANE))
    k("v_lshl_add_u32 v%d, v%d, 3, v%d" % (T, T + 1, T))
    k("s_lshr_b32 s61, s%d, 1" % aw)
    k("s_xor_b32 s60, s61, 1"); k("s_lshl_b32 s60, s60, 15")
    k("v_add_u32 v%d, s60, v%d" % (T, T))
    k("v_xor_b32 v%d, 64, v%d" % (T + 1, T))
    WF = 128
    n = 0
    for ks in range(16):
        for ct in range(2):
            for t in range(2):
                k.lg("ds_read_b64_tr_b16 %s, v%d offset:%d" % (vr(WF + 8 * ks + 4 * ct + 2 * t, 2), T + ct, 2048 * ks + 512 * t))
    k("s_lshl_b32 s60, s%d, 2" % S_RB); k("s_and_b32 s68, s%d, 1" % S_HP); k("s_lshl_b32 s68, s68, 1"); k("s_add_u32 s60, s60, s68")
    k("s_and_b32 s68, s%d, 1" % aw); k("s_add_u32 s60, s60, s68")
    k("s_mov_b32 s70, s60")
    k("s_lshl_b32 s60, s60, 1"); k("s_add_u32 s60, s60, s61"); k("s_lshl_b32 s60, s60, 14"); k("s_add_u32 s60, s60, %d" % WS_OF)
    G1 = 32
    loads = []
    for p in range(16):
        loads.append((G1 + 4 * p, 4, ["s_add_u32 s68, s60, %d" % ((p // 4) * 4096),
                                      "buffer_load_dwordx4 %s, v15, s[%d:%d], s68 offen offset:%d sc1" % (vr(G1 + 4 * p, 4), R_WS, R_WS + 3, (p % 4) * 1024)]))
    k.gather(loads, 96)
    k("s_waitcnt lgkmcnt(0)")
    k.stamp()
    AC = (96, 112)
    for ks in range(16):
        for ct in range(2):
            k("v_mfma_f32_32x32x16_bf16 %s, %s, %s, %s" % (vr(AC[ct], 16), vr(WF + 8 * ks + 4 * ct, 4), vr(G1 + 4 * ks, 4), vr(AC[ct], 16) if ks else "0"))
    k("s_lshl_b32 s60, s%d, 12" % aw); k("s_add_u32 s60, s60, %d" % WQ)
    k("v_add_u32 v%d, s60, v15" % T)
    k("s_xor_b32 s68, s60, 8192")
    k("v_add_u32 v%d, s68, v15" % (T + 1))
    k("v_xor_b32 v%d, 8, v%d" % (T + 2, V_OWN))
    k("s_lshl_b32 s68, s70, 16")
    k("s_lshr_b32 s69, s%d, 1" % S_HP); k("s_lshl_b32 s69, s69, 7"); k("s_add_u32 s68, s68, s69")
    k("s_lshl_b32 s69, s61, 6"); k("s_add_u32 s68, s68, s69")
    k("v_and_b32 v%d, 31, v%d" % (T + 3, V_LANE))
    k("v_lshrrev_b32 v%d, 5, v%d" % (T + 4, V_LANE))
    k("v_lshlrev_b32 v%d, 11, v%d" % (T + 3, T + 3))
    k("v_lshl_add_u32 v%d, v%d, 4, v%d" % (T + 3, T + 4, T + 3))
    k.srd(R_D, S_OUT, 2048 * 2048)
    L1 = k.lbl("kh1"); LJ = k.lbl("khj")
    k("s_cmp_eq_u32 s61, 1")
    k("s_cbranch_scc1 %s" % L1)
    FIN = 32
    for kh in range(2):
        if kh == 1:
            k.label(L1)
            k.settle(12)
        snd, keep = AC[1 - kh], AC[kh]
        for j in range(4):
            k.lg("ds_write_b128 v%d, %s offset:%d" % (T, vr(snd + 4 * j, 4), 1024 * j))
        k.signal(V_OWN, T + 8, 12)
        k.wait_words(T + 2, 0, 1, 12, PT)
        seqs = [k.lg("ds_read_b128 %s, v%d offset:%d" % (vr(48 + 4 * j, 4), T + 1, 1024 * j)) for j in range(4)]
        for j in range(4):
            k.wait_lg(seqs[j])
            for i in range(4):
                k("v_add_f32 v%d, v%d, v%d" % (48 + 4 * j + i, 48 + 4 * j + i, keep + 4 * j + i))
        if kh == 0:
            k("s_branch %s" % LJ)
    k.label(LJ)
    for j in range(8):
        k("v_cvt_pk_bf16_f32 v%d, v%d, v%d" % (FIN + j, 48 + 2 * j, 48 + 2 * j + 1))
    for b in (0, 4):
        k("v_permlane32_swap_b32 v%d, v%d" % (FIN + b, FIN + b + 2))
        k("v_permlane32_swap_b32 v%d, v%d" % (FIN + b + 1, FIN + b + 3))
    for b in (0, 1):
        k.vm("buffer_store_dwordx4 %s, v%d, s[%d:%d], s68 offen offset:%d" % (vr(FIN + 4 * b, 4), T + 3, R_D, R_D + 3, 32 * b))
    k("s_waitcnt vmcnt(0)")
    k.stamp()
    k.dump_stamps(32)
```

```python
from common import *
import math, struct

def f2u(f):
    return struct.unpack("<I", struct.pack("<f", f))[0]

V_LANE = 1
V_OLD, V_FA = 2, 3
V_SY, V_OWN, V_PAR = 4, 5, 6
V_UF = 8
V_DS = 16
V_LF = 20
T = 192
PT = 24
S_D, S_NH, S_DI, S_PB = 62, 63, 64, 65


def role_b(k, opt):
    bw = S_RW
    k("s_and_b32 s%d, s%d, 1" % (S_NH, bw))
    k("s_lshr_b32 s%d, s%d, 1" % (S_DI, bw))
    k("s_lshl_b32 s%d, s%d, 5" % (S_D, S_HP)); k("s_lshl_b32 s60, s%d, 1" % S_RB); k("s_add_u32 s%d, s%d, s60" % (S_D, S_D))
    k("s_lshl_b32 s60, s%d, 1" % S_D)
    k("s_load_dword s66, s[%d:%d], s60" % (S_LDT, S_LDT + 1))
    k("s_mov_b32 s67, s%d" % S_D)
    k("s_add_u32 s%d, s%d, s%d" % (S_D, S_D, S_DI))
    k("s_mul_i32 s%d, s%d, %d" % (S_PB, S_DI, DSTRIDE)); k("s_add_u32 s%d, s%d, %d" % (S_PB, S_PB, BREG))
    k("v_and_b32 v%d, 15, v%d" % (T, V_LANE))
    k("v_lshlrev_b32 v%d, 2, v%d" % (T, T))
    k("s_lshl_b32 s60, s%d, 8" % S_HP)
    k("s_lshl_b32 s61, s%d, 8" % S_RB); k("s_add_u32 s61, s61, 4096")
    k("v_mov_b32 v%d, s60" % (T + 1)); k("v_mov_b32 v%d, s61" % (T + 2))
    k("v_cmp_gt_u32 vcc, 16, v%d" % V_LANE)
    k("v_cndmask_b32 v%d, v%d, v%d, vcc" % (V_FA, T + 2, T + 1))
    k("v_add_u32 v%d, v%d, v%d" % (V_FA, V_FA, T))
    k.vm("buffer_load_dword v%d, v%d, s[%d:%d], 0 offen sc1" % (V_OLD, V_FA, R_WS, R_WS + 3))
    k("s_lshl_b32 s60, s%d, 17" % S_RB); k("s_lshl_b32 s61, s%d, 15" % bw); k("s_add_u32 s60, s60, s61")
    k("s_lshl_b32 s61, s%d, 6" % S_HP); k("s_add_u32 s60, s60, s61")
    k.srd(R_A, S_U, 32768 - 960, off_sgpr=60)
    k("v_lshrrev_b32 v%d, 2, v%d" % (T, V_LANE))
    k("v_and_b32 v%d, 3, v%d" % (T + 1, V_LANE))
    k("v_lshlrev_b32 v%d, 10, v%d" % (T + 2, T))
    k("v_lshl_add_u32 v%d, v%d, 4, v%d" % (T + 2, T + 1, T + 2))
    k("s_lshl_b32 s68, s%d, 11" % bw); k("s_add_u32 s68, s68, %d" % BREG)
    k("s_mov_b32 m0, s68")
    k.vm("buffer_load_dwordx4 v%d, s[%d:%d], 0 offen lds" % (T + 2, R_A, R_A + 3))
    k("s_add_u32 m0, s68, 1024")
    k("s_mov_b32 s60, 16384")
    s_ut = k.vm("buffer_load_dwordx4 v%d, s[%d:%d], s60 offen lds" % (T + 2, R_A, R_A + 3))
    k("s_lshl_b32 s60, s%d, 8" % S_D); k("s_lshl_b32 s61, s%d, 7" % S_NH); k("s_add_u32 s60, s60, s61")
    k("v_lshlrev_b32 v%d, 1, v%d" % (T + 3, V_LANE))
    PR = 28
    for i, sp in enumerate((S_ARE, S_AIM, S_BRE, S_BIM, S_CRE, S_CIM)):
        r = (R_B, R_C)[i % 2]
        k.srd(r, sp, 131072)
        s_par = k.vm("buffer_load_ushort v%d, v%d, s[%d:%d], s60 offen" % (PR + i, T + 3, r, r + 3))
    k.srd(R_B, S_DSK, 1024)
    k("v_lshrrev_b32 v%d, 4, v%d" % (T + 4, V_LANE))
    k("v_lshlrev_b32 v%d, 4, v%d" % (T + 4, T + 4))
    k("s_lshl_b32 s60, s%d, 6" % S_HP)
    k.vm("buffer_load_dwordx4 %s, v%d, s[%d:%d], s60 offen" % (vr(V_DS, 4), T + 4, R_B, R_B + 3))
    for j in range(4):
        k("v_mov_b32 v%d, -1" % (T + 8 + j))
    SE = vr(T + 8, 4)
    k("v_lshlrev_b32 v7, 4, v%d" % V_LANE)
    k("s_lshl_b32 s60, s%d, 4" % S_HP); k("s_add_u32 s60, s60, s%d" % S_RB); k("s_mul_i32 s60, s60, %d" % KVP_STRIDE)
    k("s_add_u32 s60, s60, %d" % WS_KVP)
    k("s_lshl_b32 s61, s%d, 10" % bw); k("s_add_u32 s61, s61, s60")
    k.vm("buffer_store_dwordx4 %s, v7, s[%d:%d], s61 offen sc1" % (SE, R_WS, R_WS + 3))
    k("s_lshl_b32 s61, s%d, 6" % bw); k("s_add_u32 s61, s61, s60"); k("s_add_u32 s61, s61, 4096")
    k("s_mov_b64 exec, 15")
    k.vm("buffer_store_dwordx4 %s, v7, s[%d:%d], s61 offen sc1" % (SE, R_WS, R_WS + 3))
    k("s_mov_b64 exec, -1")
    k("s_lshl_b32 s60, s%d, 2" % S_RB); k("s_add_u32 s60, s60, s%d" % bw); k("s_lshl_b32 s60, s60, 4"); k("s_add_u32 s60, s60, s%d" % S_HP)
    k("s_lshl_b32 s60, s60, 11"); k("s_add_u32 s60, s60, %d" % WS_OF)
    for j in range(2):
        k.vm("buffer_store_dwordx4 %s, v7, s[%d:%d], s60 offen offset:%d sc1" % (SE, R_WS, R_WS + 3, 1024 * j))
    k("s_lshl_b32 s60, s67, 12"); k("s_lshl_b32 s61, s%d, 11" % bw); k("s_add_u32 s60, s60, s61"); k("s_add_u32 s60, s60, %d" % WS_YT)
    for j in range(2):
        k.vm("buffer_store_dwordx4 %s, v7, s[%d:%d], s60 offen offset:%d sc1" % (SE, R_WS, R_WS + 3, 1024 * j))
    k("v_mov_b32 v%d, %d" % (V_SY, SYNC + 16))
    k("s_lshl_b32 s60, s%d, 2" % bw); k("s_add_u32 s60, s60, %d" % (SYNC + 16))
    k("v_mov_b32 v%d, s60" % V_OWN)
    k("v_xor_b32 v%d, 4, v%d" % (V_PAR, V_OWN))
    k.stamp()
    k("v_and_b32 v%d, 15, v%d" % (T, V_LANE))
    k("v_bfe_u32 v%d, v%d, 2, 2" % (T + 1, V_LANE))
    k("v_and_b32 v%d, 3, v%d" % (T + 2, V_LANE))
    k("v_cvt_f32_u32 v%d, v%d" % (V_LF, T))
    k("v_lshlrev_b32 v%d, 4, v%d" % (T + 3, T))
    k("v_cvt_f32_u32 v%d, v%d" % (V_LF + 3, T + 3))
    k("v_lshlrev_b32 v%d, 2, v%d" % (T + 3, T + 1))
    k("v_lshl_add_u32 v%d, v%d, 1, v%d" % (T + 3, T + 2, T + 3))
    k("v_add_u32 v%d, 256, v%d" % (T + 3, T + 3))
    k("v_mov_b32 v%d, 1808" % (T + 4))
    k("v_cmp_eq_u32 vcc, 3, v%d" % (T + 2))
    k("v_cndmask_b32 v%d, v%d, v%d, vcc" % (T + 3, T + 3, T + 4))
    k("v_cvt_f32_u32 v%d, v%d" % (V_LF + 1, T + 3))
    k("v_lshlrev_b32 v%d, 8, v%d" % (T + 3, T + 1))
    k("v_lshl_add_u32 v%d, v%d, 2, v%d" % (T + 3, T + 2, T + 3))
    k("v_add_u32 v%d, 512, v%d" % (T + 3, T + 3))
    k("v_lshlrev_b32 v%d, 9, v%d" % (T + 4, T + 1))
    k("v_bfe_u32 v%d, v%d, 1, 1" % (T + 5, V_LANE))
    k("v_lshl_add_u32 v%d, v%d, 8, v%d" % (T + 4, T + 5, T + 4))
    k("v_and_b32 v%d, 1, v%d" % (T + 5, V_LANE))
    k("v_lshl_add_u32 v%d, v%d, 3, v%d" % (T + 4, T + 5, T + 4))
    k("v_cmp_lt_u32 vcc, 1, v%d" % (T + 1))
    k("v_cndmask_b32 v%d, v%d, v%d, vcc" % (T + 3, T + 3, T + 4))
    k("v_cvt_f32_u32 v%d, v%d" % (V_LF + 2, T + 3))
    k("v_lshrrev_b32 v%d, 4, v%d" % (T, V_LANE))
    k("v_lshl_add_u32 v%d, v%d, 3, v%d" % (T + 3, T, T + 1))
    k("v_sub_u32 v%d, 27, v%d" % (T + 3, T + 3))
    k("v_lshlrev_b32 v%d, 6, v%d" % (T + 3, T + 3))
    k("v_lshl_add_u32 v%d, v%d, 3, v%d" % (T + 3, T + 2, T + 3))
    k("v_add_u32 v%d, s68, v%d" % (T + 3, T + 3))
    k("v_and_b32 v%d, 15, v%d" % (T + 4, V_LANE))
    k("v_lshlrev_b32 v%d, 6, v%d" % (T + 5, T + 4))
    k("v_lshl_add_u32 v%d, v%d, 4, v%d" % (T + 5, T, T + 5))
    k("v_add_u32 v%d, s68, v%d" % (T + 5, T + 5))
    k("v_lshlrev_b32 v%d, 12, v%d" % (T + 6, T + 4))
    k("v_lshl_add_u32 v%d, v%d, 4, v%d" % (T + 6, T, T + 6))
    k("s_lshl_b32 s60, s%d, 17" % S_HP); k("s_add_u32 s60, s60, %d" % (WS_UT + 4096 - 64))
    k("s_lshl_b32 s61, s%d, 8" % S_RB); k("s_sub_u32 s60, s60, s61")
    k("s_lshl_b32 s61, s%d, 6" % bw); k("s_sub_u32 s60, s60, s61")
    k("s_add_u32 s61, s60, 65536")
    k.wait_vm(s_ut)
    sq = []
    for j in range(2):
        for t in range(2):
            sq.append(k.lg("ds_read_b64_tr_b16 %s, v%d offset:%d" % (vr(T + 16 + 4 * j + 2 * t, 2), T + 3, 32 * j + 256 * (1 - t))))
    for j in range(2):
        k.lg("ds_read_b128 %s, v%d offset:%d" % (vr(V_UF + 4 * j, 4), T + 5, 1024 * j))
    for j in range(2):
        k.wait_lg(sq[2 * j + 1])
        k.vm("buffer_store_dwordx4 %s, v%d, s[%d:%d], s%d offen sc1" % (vr(T + 16 + 4 * j, 4), T + 6, R_WS, R_WS + 3, 60 + j))
    k.stamp()
    k("s_waitcnt lgkmcnt(0)")
    k("s_lshl_b32 s60, s%d, 4" % S_DI); k("s_lshr_b32 s66, s66, s60"); k("s_lshl_b32 s66, s66, 16")
    k("s_mov_b32 s69, 0x3fb8aa3b")
    k("v_mov_b32 v%d, s66" % T)
    k("v_mul_f32 v%d, s69, v%d" % (T, T))
    k("v_exp_f32 v%d, v%d" % (T, T))
    k("v_cvt_pk_bf16_f32 v%d, v%d, v%d" % (T, T, T))
    k("v_and_b32 v%d, 0xffff0000, v%d" % (T, T))
    k.wait_vm(s_par)
    for i in range(6):
        k("v_lshlrev_b32 v%d, 16, v%d" % (PR + i, PR + i))
    for i in range(4):
        k("v_mul_f32 v%d, v%d, v%d" % (PR + i, PR + i, T))
    TB = T + 4
    k("v_mul_f32 v%d, s69, v%d" % (TB, PR))
    k("v_mul_f32 v%d, 0.15915494, v%d" % (TB + 1, PR + 1))
    k("v_mul_f32 v%d, v%d, v%d" % (TB + 2, PR + 4, PR + 2))
    k("v_mul_f32 v%d, v%d, v%d" % (TB + 3, PR + 4, PR + 3))
    k("v_fma_f32 v%d, -v%d, v%d, v%d" % (TB + 2, PR + 5, PR + 3, TB + 2))
    k("v_fma_f32 v%d, v%d, v%d, v%d" % (TB + 3, PR + 5, PR + 2, TB + 3))
    k("s_lshl_b32 s60, s%d, 10" % S_NH); k("s_add_u32 s60, s60, s%d" % S_PB); k("s_add_u32 s60, s60, %d" % KBO)
    k("v_add_u32 v%d, s60, v7" % (T + 1))
    k.lg("ds_write_b128 v%d, %s" % (T + 1, vr(TB, 4)))
    k("v_and_b32 v%d, 0x30, v%d" % (T + 2, V_LANE))
    k("v_lshlrev_b32 v%d, 2, v%d" % (T + 2, T + 2))
    k("v_add_u32 v%d, s60, v%d" % (T + 2, T + 2))
    TAB = 64
    tseq = []
    for ks in range(4):
        for j in range(4):
            tseq.append(k.lg("ds_read_b128 %s, v%d offset:%d" % (vr(TAB + 16 * ks + 4 * j, 4), T + 2, 256 * ks + 16 * j)))
    FR = 128
    VA = 40
    W = 160
    for ks in range(4):
        F = FR + 16 * (ks % 2)
        for j in range(4):
            k.wait_lg(tseq[4 * ks + j])
            e = TAB + 16 * ks + 4 * j
            X, PHs, SN, CS = W, W + 4, W + 8, W + 12
            for t in range(4):
                k("v_mul_f32 v%d, v%d, v%d" % (PHs + t, e + 1, V_LF + t))
            for t in range(4):
                k("v_mul_f32 v%d, v%d, v%d" % (X + t, e, V_LF + t))
            for t in range(4):
                k("v_fract_f32 v%d, v%d" % (PHs + t, PHs + t))
            for t in range(4):
                k("v_exp_f32 v%d, v%d" % (X + t, X + t))
            for t in range(4):
                k("v_sin_f32 v%d, v%d" % (SN + t, PHs + t))
            for t in range(4):
                k("v_cos_f32 v%d, v%d" % (CS + t, PHs + t))
            for t in (3, 0, 1, 2):
                k("v_mul_f32 v%d, v%d, v%d" % (SN + t, SN + t, X + t))
            for t in (3, 0, 1, 2):
                k("v_mul_f32 v%d, v%d, v%d" % (CS + t, CS + t, X + t))
            k("v_mul_f32 v%d, v%d, v%d" % (W + 16, CS + 3, e + 2))
            k("v_mul_f32 v%d, -v%d, v%d" % (W + 17, CS + 3, e + 3))
            for t in range(3):
                k("v_cvt_pk_bf16_f32 v%d, v%d, v%d" % (F + 4 * t + j, CS + t, SN + t))
            k("v_fma_f32 v%d, -v%d, v%d, v%d" % (W + 16, SN + 3, e + 3, W + 16))
            k("v_fma_f32 v%d, -v%d, v%d, v%d" % (W + 17, SN + 3, e + 2, W + 17))
            k("v_cvt_pk_bf16_f32 v%d, v%d, v%d" % (F + 12 + j, W + 16, W + 17))
        for t in range(3):
            k("v_mfma_f32_16x16x32_bf16 %s, %s, %s, %s" % (vr(VA + 4 * t, 4), vr(F + 4 * t, 4), vr(F + 12, 4), vr(VA + 4 * t, 4) if ks else "0"))
        if ks == opt.get("pub_ks", 1):
            k("s_waitcnt vmcnt(0)")
            k("v_mov_b32 v%d, %d" % (W + 20, SYNC + 32)); k("v_mov_b32 v%d, 1" % (W + 21))
            k("s_mov_b64 exec, 1")
            k.lg("ds_add_rtn_u32 v%d, v%d, v%d" % (W + 22, W + 20, W + 21))
            k("s_mov_b64 exec, -1")
            k("s_lshl_b32 s70, 1, s%d" % S_RB); k("s_lshl_b32 s71, 0x10000, s%d" % S_HP); k("s_or_b32 s70, s70, s71"); k("s_mov_b32 s71, 0")
            k("v_add_u32 v%d, 1, v%d" % (W + 23, V_OLD))
            k("s_waitcnt lgkmcnt(0)")
            k("v_readfirstlane_b32 s60, v%d" % (W + 22))
            Ls = k.lbl("nopub")
            k("s_cmp_lg_u32 s60, 3")
            k("s_cbranch_scc1 %s" % Ls)
            k("s_mov_b64 exec, s[70:71]")
            k("buffer_store_dword v%d, v%d, s[%d:%d], 0 offen sc1" % (W + 23, V_FA, R_WS, R_WS + 3))
            k("s_mov_b64 exec, -1")
            k.label(Ls)
    k.stamp()
    LN1 = k.lbl("nh1"); LJ = k.lbl("nhj")
    k("s_add_u32 s60, s%d, %d" % (S_PB, KBO + 1024))
    k("v_add_u32 v%d, s60, v7" % (T + 1))
    k("s_cmp_eq_u32 s%d, 1" % S_NH)
    k("s_cbranch_scc1 %s" % LN1)
    k.wait_words(V_PAR, 0, 1, 1, PT)
    sq = [k.lg("ds_read_b128 %s, v%d offset:%d" % (vr(W + 4 * t, 4), T + 1, 1024 * t)) for t in range(3)]
    k("v_and_b32 v%d, 15, v%d" % (T + 2, V_LANE))
    k("v_lshrrev_b32 v%d, 4, v%d" % (T + 3, V_LANE))
    k("s_add_u32 s60, s%d, %d" % (S_PB, KBO))
    k("v_lshlrev_b32 v%d, 5, v%d" % (T + 2, T + 2))
    k("v_add_u32 v%d, s60, v%d" % (T + 2, T + 2))
    k("v_lshl_add_u32 v%d, v%d, 3, v%d" % (T + 4, T + 3, T + 2))
    k("v_lshl_add_u32 v%d, v%d, 9, v%d" % (T + 5, T + 3, T + 2))
    k("v_add_u32 v%d, %d, v%d" % (T + 5, 120 + 1024 - 4, T + 5))
    k("v_lshl_add_u32 v%d, v%d, 10, v%d" % (T + 6, T + 3, T + 2))
    k("v_add_u32 v%d, %d, v%d" % (T + 6, 120 - 8, T + 6))
    k("v_lshlrev_b32 v%d, 2, v%d" % (T + 7, V_LANE))
    k("v_add_u32 v%d, s60, v%d" % (T + 7, T + 7))
    k("v_mov_b32 v%d, 0" % (T + 8))
    for t in range(3):
        k.wait_lg(sq[t])
        for i in range(4):
            k("v_add_f32 v%d, v%d, v%d" % (VA + 4 * t + i, VA + 4 * t + i, W + 4 * t + i))
    Q = T + 16
    V0, V1, V2 = VA, VA + 4, VA + 8
    pk = [(V2, V2), (V2, V2 + 1), (V2 + 1, V2 + 1), (V2 + 2, V2 + 2), (V2 + 2, V2 + 3), (V2 + 3, V2 + 3),
          (V1, V1), (V1 + 1, V1 + 2), (V0, V0 + 1), (V0 + 2, V0 + 3), (V1 + 3, V1 + 3)]
    for i, (a, b) in enumerate(pk):
        k("v_cvt_pk_bf16_f32 v%d, v%d, v%d" % (Q + i, a, b))
    aa, ab, bb, cc, cd, dd = [Q + i for i in range(6)]
    k("s_mov_b32 s70, 0"); k("s_mov_b32 s71, -1")
    k("s_mov_b64 exec, s[70:71]")
    for run, (x, xy, y) in enumerate(((aa, ab, bb), (cc, cd, dd))):
        o = 128 * run
        for i, (p, q) in enumerate(((x, x), (x, x), (xy, y), (y, y))):
            k.lg("ds_write2_b32 v%d, v%d, v%d offset0:%d offset1:%d" % (T + 6, p, q, o + 2 * i, o + 2 * i + 1))
    k("s_mov_b32 exec_lo, -1"); k("s_mov_b32 exec_hi, 0")
    for i, (p, q) in enumerate(((aa, aa), (ab, bb), (cc, cc), (cd, dd))):
        k.lg("ds_write2_b32 v%d, v%d, v%d offset0:%d offset1:%d" % (T + 5, p, q, 2 * i, 2 * i + 1))
    k("s_mov_b64 exec, -1")
    k.lg("ds_write_b64 v%d, %s offset:%d" % (T + 4, vr(Q + 6, 2), 120 + 512))
    k.lg("ds_write_b64 v%d, %s offset:%d" % (T + 4, vr(Q + 8, 2), 120))
    k("s_mov_b64 exec, 0x8000")
    k.lg("ds_write_b32 v%d, v%d offset:%d" % (T + 2, Q + 10, 120 + 4088 - 480))
    k.lg("ds_write_b32 v%d, v%d offset:%d" % (T + 2, Q + 10, 120 + 4092 - 480))
    k("s_mov_b64 exec, 0x3fffffff")
    k.lg("ds_write_b32 v%d, v%d" % (T + 7, T + 8))
    k("s_mov_b64 exec, -1")
    k("s_branch %s" % LJ)
    k.label(LN1)
    k.settle(8)
    for t in range(3):
        k.lg("ds_write_b128 v%d, %s offset:%d" % (T + 1, vr(VA + 4 * t, 4), 1024 * t))
    k.signal(V_OWN, T + 8, 1)
    LW3 = k.lbl("w3"); LRD = k.lbl("rdy")
    k("s_cmp_eq_u32 s%d, 3" % bw)
    k("s_cbranch_scc1 %s" % LW3)
    LP = k.lbl("poll"); LPD = k.lbl("polld")
    k("s_mov_b32 s61, 0")
    k("s_mov_b32 exec_lo, -1"); k("s_mov_b32 exec_hi, 0")
    k.label(LP)
    k("buffer_load_dword v%d, v%d, s[%d:%d], 0 offen sc1" % (T + 8, V_FA, R_WS, R_WS + 3))
    k("s_waitcnt vmcnt(0)")
    k("v_cmp_eq_u32 vcc, v%d, v%d" % (T + 8, V_OLD))
    k("s_nop 1")
    k("s_cbranch_vccz %s" % LPD)
    k("s_add_u32 s61, s61, 1")
    k("s_cmp_lt_u32 s61, %d" % LIM_GLB)
    k("s_cbranch_scc1 %s" % LP)
    k.label(LPD)
    k("s_mov_b64 exec, 1")
    k("v_mov_b32 v%d, %d" % (T + 9, SYNC + 36)); k("v_mov_b32 v%d, 1" % (T + 10))
    k.lg("ds_write_b32 v%d, v%d" % (T + 9, T + 10))
    k("s_mov_b64 exec, s[70:71]")
    k("v_add_u32 v%d, 2, v%d" % (T + 8, V_OLD))
    k("buffer_store_dword v%d, v%d, s[%d:%d], 0 offen sc1" % (T + 8, V_FA, R_WS, R_WS + 3))
    k("s_mov_b64 exec, -1")
    k("s_branch %s" % LRD)
    k.label(LW3)
    k.wait_words(V_SY, 20, 1, 1, PT)
    k.label(LRD)
    k.stamp()
    k("s_lshl_b32 s60, s%d, 12" % S_D)
    k.srd(R_A, S_WS, 4096, off_sgpr=60, off_imm=WS_UT)
    UL = 64
    k.nvm = 0
    sq = []
    for rd in range(4):
        k.vm("buffer_load_dwordx4 %s, v7, s[%d:%d], 0 offen offset:%d sc1" % (vr(UL + 8 * rd, 4), R_A, R_A + 3, 1024 * rd))
        if rd < 3:
            sq.append(k.vm("buffer_load_dwordx2 %s, v7, s[%d:%d], 0 offen offset:%d sc1" % (vr(UL + 8 * rd + 4, 2), R_A, R_A + 3, 1024 * rd + 16)))
        else:
            k("s_mov_b32 s60, 16")
            sq.append(k.vm("buffer_load_dwordx2 %s, v7, s[%d:%d], s60 offen offset:%d sc1" % (vr(UL + 8 * rd + 4, 2), R_A, R_A + 3, 1024 * rd)))
    k("v_add_u32 v%d, s%d, v7" % (T + 2, S_PB))
    for j in range(4):
        k("v_mov_b32 v%d, 0" % (T + 4 + j))
    k("s_mov_b64 exec, 0xffffff")
    for c in range(4):
        k.lg("ds_write_b128 v%d, %s offset:%d" % (T + 2, vr(T + 4, 4), c * UCS + 4096))
    k("s_mov_b64 exec, -1")
    for rd in range(4):
        D = UL + 8 * rd
        O = 128 + 16 * (rd % 2)
        k.wait_vm(sq[rd])
        for j in range(5):
            k("v_alignbit_b32 v%d, v%d, v%d, 16" % (O + j, D + j + 1, D + j))
        for j in range(4):
            k("v_mov_b32 v%d, v%d" % (O + 8 + j, D + 1 + j))
            k("v_mov_b32 v%d, v%d" % (O + 12 + j, O + 1 + j))
        k.lg("ds_write_b128 v%d, %s offset:%d" % (T + 2, vr(D, 4), 3 * UCS + 1024 * rd))
        k.lg("ds_write_b128 v%d, %s offset:%d" % (T + 2, vr(O, 4), 2 * UCS + 1024 * rd))
        k.lg("ds_write_b128 v%d, %s offset:%d" % (T + 2, vr(O + 8, 4), 1 * UCS + 1024 * rd))
        k.lg("ds_write_b128 v%d, %s offset:%d" % (T + 2, vr(O + 12, 4), 0 * UCS + 1024 * rd))
    k.label(LJ)
    k.signal(V_OWN, T + 8, 2)
    k("v_and_b32 v%d, 3, v%d" % (T, V_LANE))
    k("v_bfe_u32 v%d, v%d, 2, 2" % (T + 1, V_LANE))
    k("v_and_b32 v%d, 0x30, v%d" % (T + 2, V_LANE))
    k("s_movk_i32 s60, %d" % UCS)
    k("v_mul_lo_u32 v%d, v%d, s60" % (T + 3, T))
    k("v_lshlrev_b32 v%d, 7, v%d" % (T + 1, T + 1))
    k("v_sub_u32 v%d, v%d, v%d" % (T + 3, T + 3, T + 1))
    k("v_add_u32 v%d, v%d, v%d" % (T + 3, T + 3, T + 2))
    k("s_lshl_b32 s61, s%d, 8" % S_NH); k("s_add_u32 s61, s61, s%d" % S_PB)
    k("s_add_u32 s60, s61, 384")
    k("v_add_u32 v%d, s60, v%d" % (T + 3, T + 3))
    k("v_and_b32 v%d, 15, v%d" % (T + 4, V_LANE))
    k("v_lshl_add_u32 v%d, v%d, 3, v%d" % (T + 4, T + 4, T + 2))
    k("s_add_u32 s60, s61, %d" % KBO)
    k("v_add_u32 v%d, s60, v%d" % (T + 4, T + 4))
    UD = 208
    for j in range(2):
        for i in range(4):
            k("v_lshlrev_b32 v%d, 16, v%d" % (T + 8, V_UF + 4 * j + i))
            k("v_and_b32 v%d, 0xffff0000, v%d" % (T + 9, V_UF + 4 * j + i))
            k("v_lshlrev_b32 v%d, 16, v%d" % (T + 10, V_DS + i))
            k("v_and_b32 v%d, 0xffff0000, v%d" % (T + 11, V_DS + i))
            k("v_mul_f32 v%d, v%d, v%d" % (T + 8, T + 8, T + 10))
            k("v_mul_f32 v%d, v%d, v%d" % (T + 9, T + 9, T + 11))
            k("v_cvt_pk_bf16_f32 v%d, v%d, v%d" % (T + 8, T + 8, T + 9))
            k("v_lshlrev_b32 v%d, 16, v%d" % (UD + 8 * j + 2 * i, T + 8))
            k("v_and_b32 v%d, 0xffff0000, v%d" % (UD + 8 * j + 2 * i + 1, T + 8))
    k.wait_words(V_PAR, 0, 1, 2, PT)
    k.stamp()
    if opt.get("dump_k"):
        pass
    AC = 32
    AF = (64, 96); BF = (128, 160)
    def rdfr(ri):
        s = {}
        buf = ri % 2
        for i in range(8):
            s[("A", i)] = k.lg("ds_read_b128 %s, v%d offset:%d" % (vr(AF[buf] + 4 * i, 4), T + 3, 512 * (7 - i) + 64 * ri))
            k.lg("ds_read_b64 %s, v%d offset:%d" % (vr(BF[buf] + 4 * i, 2), T + 4, 512 * i + 64 * ri))
            s[("B", i)] = k.lg("ds_read_b64 %s, v%d offset:%d" % (vr(BF[buf] + 4 * i + 2, 2), T + 4, 512 * i + 64 * ri + 8))
        return s
    cur = rdfr(0)
    touched = set()
    for ri in range(4):
        buf = ri % 2
        pairs = sorted([(a, b) for a in range(8) for b in range(8) if a + b <= 7], key=lambda p: (max(p), p))
        order = []
        rem = pairs[:]
        while rem:
            for idx, p in enumerate(rem):
                if not order or (order[-1][0] + order[-1][1]) != (p[0] + p[1]) or idx == len(rem) - 1:
                    order.append(rem.pop(idx)); break
        nxt = None
        waited = -1
        for n, (a, b) in enumerate(order):
            if n == 12 and ri < 3:
                need = max(cur.values())
                if need > waited:
                    k.wait_lg(need); waited = need
                nxt = rdfr(ri + 1)
            need = max(cur[("A", b)], cur[("B", a)])
            if need > waited:
                k.wait_lg(need); waited = need
            q = a + b
            k("v_mfma_f32_16x16x32_bf16 %s, %s, %s, %s" % (vr(AC + 4 * q, 4), vr(AF[buf] + 4 * b, 4), vr(BF[buf] + 4 * a, 4), vr(AC + 4 * q, 4) if q in touched else "0"))
            touched.add(q)
        cur = nxt
    k.signal(V_OWN, T + 8, 3)
    k.stamp()
    k("s_mul_i32 s60, s%d, %d" % (S_NH, UCS)); k("s_add_u32 s60, s60, s%d" % S_PB)
    k("v_add_u32 v%d, s60, v7" % T)
    k("s_xor_b32 s61, s%d, 1" % S_NH); k("s_mul_i32 s61, s61, %d" % UCS); k("s_add_u32 s61, s61, s%d" % S_PB)
    k("v_add_u32 v%d, s61, v7" % (T + 1))
    k("v_lshlrev_b32 v%d, 3, v%d" % (T + 2, V_LANE))
    k("s_lshl_b32 s60, s%d, 12" % S_D); k("s_lshl_b32 s61, s%d, 11" % S_NH); k("s_add_u32 s60, s60, s61"); k("s_add_u32 s60, s60, %d" % WS_YT)
    k.wait_words(V_PAR, 0, 1, 3, PT)
    L1 = k.lbl("c1"); LJ2 = k.lbl("cj")
    k("s_cmp_eq_u32 s%d, 1" % S_NH)
    k("s_cbranch_scc1 %s" % L1)
    for nh in range(2):
        if nh == 1:
            k.label(L1)
        snd, keep = AC + 16 * (1 - nh), AC + 16 * nh
        for j in range(4):
            k.lg("ds_write_b128 v%d, %s offset:%d" % (T, vr(snd + 4 * j, 4), 1024 * j))
        k.signal(V_OWN, T + 8, 4)
        k.wait_words(V_PAR, 0, 1, 4, PT)
        sq = [k.lg("ds_read_b128 %s, v%d offset:%d" % (vr(64 + 4 * j, 4), T + 1, 1024 * j)) for j in range(4)]
        for j in range(4):
            k.wait_lg(sq[j])
            for i in range(4):
                k("v_add_f32 v%d, v%d, v%d" % (64 + 4 * j + i, 64 + 4 * j + i, keep + 4 * j + i))
        if nh == 0:
            k("s_branch %s" % LJ2)
    k.label(LJ2)
    for j in range(8):
        k("v_cvt_pk_bf16_f32 v%d, v%d, v%d" % (96 + j, 64 + 2 * j, 64 + 2 * j + 1))
    for j in range(8):
        k("v_min_u32 v%d, -2, v%d" % (96 + j, 96 + j))
    for j in range(4):
        k.vm("buffer_store_dwordx2 %s, v%d, s[%d:%d], s60 offen offset:%d sc1" % (vr(96 + 2 * j, 2), T + 2, R_WS, R_WS + 3, 512 * j))
    k.stamp()
    k("v_lshrrev_b32 v%d, 4, v%d" % (T, V_LANE))
    k("v_and_b32 v%d, 15, v%d" % (T + 1, V_LANE))
    k("v_lshlrev_b32 v%d, 12, v%d" % (T + 2, T))
    k("v_lshl_add_u32 v%d, v%d, 4, v%d" % (T + 2, T + 1, T + 2))
    k("s_lshl_b32 s60, s%d, 17" % S_HP); k("s_lshl_b32 s61, s%d, 15" % bw); k("s_add_u32 s60, s60, s61")
    k("s_lshl_b32 s61, s%d, 8" % S_RB); k("s_add_u32 s60, s60, s61"); k("s_add_u32 s60, s60, %d" % WS_YT)
    k("s_add_u32 s61, s60, 16384")
    STG = BREG + 2 * UCS
    k("s_movk_i32 s66, 288")
    k("v_mul_lo_u32 v%d, v%d, s66" % (T + 3, T))
    k("v_lshl_add_u32 v%d, v%d, 4, v%d" % (T + 3, T + 1, T + 3))
    k("s_mul_i32 s66, s%d, %d" % (bw, 8 * 288 + 128)); k("s_add_u32 s66, s66, %d" % STG)
    k("v_add_u32 v%d, s66, v%d" % (T + 3, T + 3))
    k("s_movk_i32 s66, %d" % (8 * 288 + 128))
    k("v_mul_lo_u32 v%d, v%d, s66" % (T + 4, T))
    k("v_bfe_u32 v%d, v%d, 2, 2" % (T + 5, V_LANE))
    k("s_movk_i32 s66, 288")
    k("v_mul_lo_u32 v%d, v%d, s66" % (T + 5, T + 5))
    k("v_add_u32 v%d, v%d, v%d" % (T + 4, T + 4, T + 5))
    k("v_and_b32 v%d, 3, v%d" % (T + 5, V_LANE))
    k("v_lshl_add_u32 v%d, v%d, 3, v%d" % (T + 4, T + 5, T + 4))
    k("s_lshl_b32 s66, s%d, 6" % bw); k("s_add_u32 s66, s66, %d" % STG)
    k("v_add_u32 v%d, s66, v%d" % (T + 4, T + 4))
    k("v_lshlrev_b32 v%d, 11, v%d" % (T + 5, T + 1))
    k("v_lshl_add_u32 v%d, v%d, 4, v%d" % (T + 5, T, T + 5))
    k("s_lshl_b32 s66, s%d, 18" % S_RB); k("s_lshl_b32 s67, s%d, 16" % bw); k("s_add_u32 s66, s66, s67")
    k("s_lshl_b32 s67, s%d, 6" % S_HP); k("s_add_u32 s66, s66, s67"); k("s_add_u32 s66, s66, 1024")
    k("s_add_u32 s67, s66, 32768")
    k.srd(R_D, S_OUT, 2048 * 2048)
    loads = [(64 + 4 * j, 4, ["buffer_load_dwordx4 %s, v%d, s[%d:%d], s%d offen sc1" % (vr(64 + 4 * j, 4), T + 2, R_WS, R_WS + 3, 60 + j)]) for j in range(2)]
    k.gather(loads, 72)
    k.stamp()
    k.wait_words(V_SY, 0, 2, 3, PT)
    for j in range(2):
        k.lg("ds_write_b128 v%d, %s offset:%d" % (T + 3, vr(64 + 4 * j, 4), 4 * 288 * j))
    k.signal(V_OWN, T + 8, 5)
    k.wait_words(V_SY, 0, 4, 5, PT)
    sq = []
    for j in range(2):
        for t in range(2):
            sq.append(k.lg("ds_read_b64_tr_b16 %s, v%d offset:%d" % (vr(80 + 4 * j + 2 * t, 2), T + 4, 32 * j + 4 * 288 * t)))
    for j in range(2):
        k.wait_lg(sq[2 * j + 1])
        for i in range(4):
            y = 80 + 4 * j + i
            k("v_lshlrev_b32 v%d, 16, v%d" % (T + 8, y))
            k("v_and_b32 v%d, 0xffff0000, v%d" % (T + 9, y))
            k("v_add_f32 v%d, v%d, v%d" % (T + 8, T + 8, UD + 8 * j + 2 * i))
            k("v_add_f32 v%d, v%d, v%d" % (T + 9, T + 9, UD + 8 * j + 2 * i + 1))
            k("v_cvt_pk_bf16_f32 v%d, v%d, v%d" % (96 + 4 * j + i, T + 8, T + 9))
        k.vm("buffer_store_dwordx4 %s, v%d, s[%d:%d], s%d offen" % (vr(96 + 4 * j, 4), T + 5, R_D, R_D + 3, 66 + j))
    k("s_waitcnt vmcnt(0)")
    k.stamp()
    k.dump_stamps(32)
```

```python
from asmlib import Asm, vr, sr

NAME = "concat_heads__linear_kernel_hedgehog__ssm_conv_s4__prompt_kernel"

WK, WV, WQ = 0, 32768, 65536
BOUNCE = 98304
BREG = 114688
DSTRIDE = 22272
UCS = 4512
KBO = 18048
WPHI = 159232
SYNC = 160256
OLDS = 160512
LDS_TOTAL = 160768
WS_FLAGS = 0
WS_UT = 0x10000
WS_YT = 0x210000
WS_OF = 0x410000
WS_KVP = 0x610000
KVP_STRIDE = 4608
WS_DBG = 0x800000
WS_SIZE = 0x1000000
S_X, S_W, S_WPHI, S_WO, S_U, S_ARE, S_AIM, S_BRE, S_BIM, S_CRE, S_CIM, S_LDT, S_DSK, S_OUT, S_DBG, S_WS = [4 + 2 * i for i in range(16)]
S_WAVE, S_RB, S_HP, S_RW = 36, 37, 38, 39
R_WS = 40
R_A = 44
R_B = 48
R_C = 52
R_D = 56
S_T0 = 60
S_STAMP = 84
LIM_LDS = 200000
LIM_GLB = 20000


class K(Asm):
    def __init__(self, dbg=False):
        super().__init__()
        self.nvm = 0
        self.nlg = 0
        self.uid = 0
        self.dbg = dbg
        self.nstamp = 0
    def lbl(self, base):
        self.uid += 1
        return "L_%s_%d" % (base, self.uid)
    def vm(self, text):
        self(text); self.nvm += 1
        return self.nvm - 1
    def lg(self, text):
        self(text); self.nlg += 1
        return self.nlg - 1
    def wait_vm(self, seq):
        n = self.nvm - 1 - seq
        assert n >= 0
        if n <= 63:
            self("s_waitcnt vmcnt(%d)" % n)
        else:
            raise AssertionError("vmcnt overflow %d" % n)
    def wait_lg(self, seq):
        n = self.nlg - 1 - seq
        assert n >= 0
        self("s_waitcnt lgkmcnt(%d)" % min(n, 15))
    def srd(self, r, ptr, nbytes, off_sgpr=None, off_imm=0):
        if off_sgpr is None and off_imm == 0:
            self("s_mov_b32 s%d, s%d" % (r, ptr)); self("s_mov_b32 s%d, s%d" % (r + 1, ptr + 1))
        else:
            first = True
            for o in ([("s%d" % off_sgpr)] if off_sgpr is not None else []) + ([str(off_imm)] if off_imm else []):
                a, b = (ptr, ptr + 1) if first else (r, r + 1)
                self("s_add_u32 s%d, s%d, %s" % (r, a, o)); self("s_addc_u32 s%d, s%d, 0" % (r + 1, b))
                first = False
        self("s_mov_b32 s%d, %s" % (r + 2, nbytes if isinstance(nbytes, str) else hex(nbytes)))
        self("s_mov_b32 s%d, 0x00020000" % (r + 3))
    def stamp(self):
        if not self.dbg:
            return
        i = self.nstamp; self.nstamp += 1
        assert i < 16
        self("s_memrealtime s[80:81]"); self("s_waitcnt lgkmcnt(0)"); self("s_mov_b32 s%d, s80" % (S_STAMP + i))
    def dump_stamps(self, vt):
        if not self.dbg:
            return
        self("s_lshl_b32 s80, s2, 3"); self("s_add_u32 s80, s80, s%d" % S_WAVE); self("s_lshl_b32 s80, s80, 6")
        self("s_add_u32 s80, s80, %d" % WS_DBG)
        self("v_mov_b32 v%d, s80" % vt)
        self("s_mov_b64 exec, 1")
        for q in range(4):
            for i in range(4):
                self("v_mov_b32 v%d, s%d" % (vt + 4 + i, S_STAMP + 4 * q + i))
            self("buffer_store_dwordx4 %s, v%d, s[%d:%d], 0 offen offset:%d" % (vr(vt + 4, 4), vt, R_WS, R_WS + 3, 16 * q))
            self("s_waitcnt vmcnt(0)")
        self("s_mov_b64 exec, -1")
    def signal(self, vown, vtmp, val):
        self("v_mov_b32 v%d, %d" % (vtmp, val))
        self("s_mov_b64 exec, 1")
        self.lg("ds_write_b32 v%d, v%d" % (vown, vtmp))
        self("s_mov_b64 exec, -1")
    def wait_words(self, vaddr, off, nw, val, vt, first_issued=None):
        L = self.lbl("w"); D = self.lbl("wd")
        self("s_mov_b32 s%d, 0" % (S_T0 + 19))
        if first_issued is None:
            self.label(L)
            self._rdw(vaddr, off, nw, vt)
        self("s_waitcnt lgkmcnt(0)")
        if first_issued is not None:
            pass
        self._chk(nw, vt, val)
        if first_issued is None:
            self("s_cbranch_scc1 %s" % D)
            self("s_add_u32 s%d, s%d, 1" % (S_T0 + 19, S_T0 + 19))
            self("s_cmp_lt_u32 s%d, %d" % (S_T0 + 19, LIM_LDS))
            self("s_cbranch_scc1 %s" % L)
        else:
            self("s_cbranch_scc1 %s" % D)
            self.label(L)
            self._rdw(vaddr, off, nw, vt)
            self("s_waitcnt lgkmcnt(0)")
            self._chk(nw, vt, val)
            self("s_cbranch_scc1 %s" % D)
            self("s_add_u32 s%d, s%d, 1" % (S_T0 + 19, S_T0 + 19))
            self("s_cmp_lt_u32 s%d, %d" % (S_T0 + 19, LIM_LDS))
            self("s_cbranch_scc1 %s" % L)
        self.label(D)
    def _rdw(self, vaddr, off, nw, vt):
        op = {1: "ds_read_b32", 2: "ds_read_b64", 4: "ds_read_b128"}[nw]
        return self.lg("%s %s, v%d offset:%d" % (op, vr(vt, nw), vaddr, off))
    def _chk(self, nw, vt, val):
        if nw == 4:
            self("v_min3_u32 v%d, v%d, v%d, v%d" % (vt, vt, vt + 1, vt + 2))
            self("v_min_u32 v%d, v%d, v%d" % (vt, vt, vt + 3))
        elif nw == 2:
            self("v_min_u32 v%d, v%d, v%d" % (vt, vt, vt + 1))
        self("v_readfirstlane_b32 s%d, v%d" % (S_T0 + 18, vt))
        self("s_cmp_ge_u32 s%d, %d" % (S_T0 + 18, val))

    def gather(self, loads, vt, between=None):
        n = len(loads)
        SP, SI, ST = S_T0 + 17, S_T0 + 16, S_T0 + 15
        L = self.lbl("g"); D = self.lbl("gd")
        self("s_mov_b32 s%d, %d" % (SP, (1 << n) - 1))
        self("s_mov_b32 s%d, 0" % SI)
        self.label(L)
        for p, (dst, nr, txt) in enumerate(loads):
            sk = self.lbl("gs")
            self("s_bitcmp1_b32 s%d, %d" % (SP, p))
            self("s_cbranch_scc0 %s" % sk)
            for t in txt:
                self(t)
            self.label(sk)
        self("s_waitcnt vmcnt(0)")
        for p, (dst, nr, txt) in enumerate(loads):
            if nr == 4:
                self("v_max3_u32 v%d, v%d, v%d, v%d" % (vt + p, dst, dst + 1, dst + 2))
                self("v_max_u32 v%d, v%d, v%d" % (vt + p, vt + p, dst + 3))
            elif nr == 2:
                self("v_max_u32 v%d, v%d, v%d" % (vt + p, dst, dst + 1))
        T = vt + n
        idx = list(range(n))
        if n == 1:
            self("v_mov_b32 v%d, v%d" % (T, vt))
        elif n == 2:
            self("v_max_u32 v%d, v%d, v%d" % (T, vt, vt + 1))
        else:
            self("v_max3_u32 v%d, v%d, v%d, v%d" % (T, vt, vt + 1, vt + 2))
            i = 3
            while i < n:
                if i + 1 < n:
                    self("v_max3_u32 v%d, v%d, v%d, v%d" % (T, T, vt + i, vt + i + 1)); i += 2
                else:
                    self("v_max_u32 v%d, v%d, v%d" % (T, T, vt + i)); i += 1
        self("v_cmp_eq_u32 vcc, -1, v%d" % T)
        self("s_nop 1")
        self("s_cbranch_vccz %s" % D)
        self("s_mov_b32 s%d, 0" % SP)
        for p in range(n):
            self("v_cmp_eq_u32 vcc, -1, v%d" % (vt + p))
            self("s_nop 1")
            self("s_cmp_lg_u64 vcc, 0")
            self("s_cselect_b32 s%d, %d, 0" % (ST, 1 << p))
            self("s_or_b32 s%d, s%d, s%d" % (SP, SP, ST))
        self("s_add_u32 s%d, s%d, 1" % (SI, SI))
        self("s_cmp_lt_u32 s%d, %d" % (SI, LIM_GLB))
        self("s_cbranch_scc1 %s" % L)
        self.label(D)


def flag_addr(k, va, T):
    k("v_and_b32 v%d, 15, v1" % T)
    k("v_lshlrev_b32 v%d, 2, v%d" % (T, T))
    k("s_lshl_b32 s60, s%d, 8" % S_HP)
    k("s_lshl_b32 s61, s%d, 8" % S_RB); k("s_add_u32 s61, s61, 4096")
    k("v_mov_b32 v%d, s60" % (T + 1)); k("v_mov_b32 v%d, s61" % (T + 2))
    k("s_mov_b32 vcc_lo, 0xffff"); k("s_mov_b32 vcc_hi, 0xffff")
    k("v_cndmask_b32 v%d, v%d, v%d, vcc" % (va, T + 2, T + 1))
    k("v_add_u32 v%d, v%d, v%d" % (va, va, T))
    k("v_lshrrev_b32 v%d, 5, v1" % T)
    k("v_lshl_add_u32 v%d, v%d, 13, v%d" % (va, T, va))


def poll_flags(k, va, vold, vt, hi_mask, issued=False):
    LP = k.lbl("pf"); LD = k.lbl("pfd"); LC = k.lbl("pfc")
    k("s_mov_b32 s%d, 0" % (S_T0 + 19))
    k("s_mov_b32 exec_lo, 0"); k("s_mov_b32 exec_hi, 0x%x" % hi_mask)
    if issued is not False:
        k("s_waitcnt vmcnt(%d)" % issued)
        k("s_branch %s" % LC)
    k.label(LP)
    k("buffer_load_dword v%d, v%d, s[%d:%d], 0 offen sc1" % (vt, va, R_WS, R_WS + 3))
    k("s_waitcnt vmcnt(0)")
    k.label(LC)
    k("v_cmp_eq_u32 vcc, v%d, v%d" % (vt, vold))
    k("s_nop 1")
    k("s_cbranch_vccz %s" % LD)
    k("s_add_u32 s%d, s%d, 1" % (S_T0 + 19, S_T0 + 19))
    k("s_cmp_lt_u32 s%d, %d" % (S_T0 + 19, LIM_GLB))
    k("s_cbranch_scc1 %s" % LP)
    k.label(LD)
    k("s_mov_b64 exec, -1")
```

```python
from common import *

V_LANE = 1
V_XO, V_WO_, V_BW0, V_BW1 = 2, 3, 4, 5
V_BR = 6
V_TR, V_TRQ = 10, 11
V_SY, V_OWN = 12, 13
V_T = 16
V_WF = 32
V_AQ, V_AK, V_AV, V_P = 64, 80, 96, 112
V_X = 128
S_L2E = 62
V_XI = 112


def softmax(k, P, E, out, T, round_p):
    if round_p:
        for j in range(8):
            k("v_cvt_pk_bf16_f32 v%d, v%d, v%d" % (E + j, P + 2 * j, P + 2 * j + 1))
        for j in range(8):
            k("v_lshlrev_b32 v%d, 16, v%d" % (P + 2 * j, E + j))
            k("v_and_b32 v%d, 0xffff0000, v%d" % (P + 2 * j + 1, E + j))
    mx0, mx1, mn0, mn1, a, b, c, d = T, T + 1, T + 2, T + 3, T + 4, T + 5, T + 6, T + 7
    for op, dst in (("max", (mx0, mx1)), ("min", (mn0, mn1))):
        for t in range(2):
            p = P + 8 * t
            k("v_%s3_f32 v%d, v%d, v%d, v%d" % (op, dst[t], p, p + 1, p + 2))
        for t in range(2):
            p = P + 8 * t
            k("v_%s3_f32 v%d, v%d, v%d, v%d" % (op, dst[t], dst[t], p + 3, p + 4))
        for t in range(2):
            p = P + 8 * t
            k("v_%s3_f32 v%d, v%d, v%d, v%d" % (op, dst[t], dst[t], p + 5, p + 6))
        for t in range(2):
            p = P + 8 * t
            k("v_%s_f32 v%d, v%d, v%d" % (op, dst[t], dst[t], p + 7))
    k("v_permlane32_swap_b32 v%d, v%d" % (mx0, mx1))
    k("v_permlane32_swap_b32 v%d, v%d" % (mn0, mn1))
    k("v_max_f32 v%d, v%d, v%d" % (a, mx0, mx1))
    k("v_min_f32 v%d, v%d, v%d" % (c, mn0, mn1))
    k("v_mul_f32 v%d, s%d, v%d" % (a, S_L2E, a))
    k("v_mul_f32 v%d, s%d, v%d" % (c, S_L2E, c))
    k("v_mov_b32 v%d, v%d" % (b, a))
    k("v_mov_b32 v%d, v%d" % (d, c))
    k("v_permlane32_swap_b32 v%d, v%d" % (a, b))
    k("v_permlane32_swap_b32 v%d, v%d" % (c, d))
    mxl = (a, b); mnl = (c, d)
    for i in range(16):
        t = i // 8
        k("v_fma_f32 v%d, v%d, s%d, -v%d" % (E + i, P + i, S_L2E, mxl[t]))
        k("v_fma_f32 v%d, -v%d, s%d, v%d" % (E + 16 + i, P + i, S_L2E, mnl[t]))
    for i in range(32):
        k("v_exp_f32 v%d, v%d" % (E + i, E + i))
    S = [[T + 8, T + 9], [T + 10, T + 11]]
    for sg in range(2):
        for t in range(2):
            e = E + 16 * sg + 8 * t
            k("v_add_f32 v%d, v%d, v%d" % (S[sg][t], e, e + 1))
    for j in range(2, 8):
        for sg in range(2):
            for t in range(2):
                e = E + 16 * sg + 8 * t
                k("v_add_f32 v%d, v%d, v%d" % (S[sg][t], S[sg][t], e + j))
    for sg in range(2):
        k("v_permlane32_swap_b32 v%d, v%d" % (S[sg][0], S[sg][1]))
    R = [[T, T + 1], [T + 2, T + 3]]
    for sg in range(2):
        k("v_add_f32 v%d, v%d, v%d" % (R[sg][0], S[sg][0], S[sg][1]))
    for sg in range(2):
        k("v_rcp_f32 v%d, v%d" % (R[sg][0], R[sg][0]))
    for sg in range(2):
        k("v_mov_b32 v%d, v%d" % (R[sg][1], R[sg][0]))
    for sg in range(2):
        k("v_permlane32_swap_b32 v%d, v%d" % (R[sg][0], R[sg][1]))
    for sg in range(2):
        for i in range(16):
            k("v_mul_f32 v%d, v%d, v%d" % (E + 16 * sg + i, E + 16 * sg + i, R[sg][i // 8]))
    for t in range(2):
        for sg in range(2):
            for j in range(4):
                e = E + 16 * sg + 8 * t + 2 * j
                k("v_cvt_pk_bf16_f32 v%d, v%d, v%d" % (out + (2 * t + sg) * 4 + j, e, e + 1))


def role_a(k, opt):
    T = V_T
    aw = S_RW
    DPPM = opt.get("dpp", 0xff)
    V_XD = 14
    k("s_lshl_b32 s60, s%d, 6" % S_HP)
    k("s_sub_u32 s61, %d, s60" % (512 * 3072))
    k.srd(R_B, S_W, "s61", off_sgpr=60)
    k("v_lshrrev_b32 v%d, 2, v%d" % (T + 2, V_LANE))
    k("v_and_b32 v%d, 3, v%d" % (T + 3, V_LANE))
    k("s_movk_i32 s60, 3072")
    k("v_mul_lo_u32 v%d, v%d, s60" % (V_WO_, T + 2))
    k("v_lshl_add_u32 v%d, v%d, 4, v%d" % (V_WO_, T + 3, V_WO_))
    k("s_mul_i32 s66, s%d, %d" % (aw, 16 * 3072))
    k("s_lshl_b32 s67, s%d, 10" % aw)
    k("s_lshl_b32 s63, s%d, 1" % S_RB); k("s_add_u32 s63, s63, s%d" % S_HP)
    if not opt.get("rot", 1):
        k("s_mov_b32 s63, 0")
    last = {}
    def wdma(part_lds, part_goff, p):
        k("s_add_u32 s64, s63, %d" % p); k("s_and_b32 s64, s64, 7")
        k("s_mul_i32 s65, s64, %d" % (64 * 3072)); k("s_add_u32 s65, s65, s66")
        r = None
        for lds, go in zip(part_lds, part_goff):
            k("s_add_u32 s68, s65, %d" % go)
            k("s_add_u32 m0, s67, %d" % (lds + p * 4096))
            r = k.vm("buffer_load_dwordx4 v%d, s[%d:%d], s68 offen lds" % (V_WO_, R_B, R_B + 3))
        return r
    def issue(item):
        kind, p = item
        if kind == "w":
            last[item] = wdma((WK, WV), (1024, 2048), p)
        elif kind == "q":
            last[item] = wdma((WQ,), (0,), p)
        elif kind == "x":
            k("s_add_u32 s64, s63, %d" % p); k("s_and_b32 s64, s64, 7"); k("s_lshl_b32 s64, s64, 7")
            for i in range(4):
                if DPPM >> p & 1:
                    last[item] = k.vm("buffer_load_dwordx4 %s, v%d, s[%d:%d], s64 offen offset:%d" % (vr(V_X + 16 * p + 4 * i, 4), V_XD, R_A, R_A + 3, 1024 * i))
                    continue
                if i:
                    k("s_add_u32 s64, s64, 8192")
                last[item] = k.vm("buffer_load_dwordx4 %s, v%d, s[%d:%d], s64 offen" % (vr(V_X + 16 * p + 4 * i, 4), V_XO, R_A, R_A + 3))
        elif kind == "phi":
            k("s_mov_b32 m0, %d" % WPHI)
            k.vm("buffer_load_dwordx4 v%d, s[%d:%d], 0 offen lds" % (15, R_C, R_C + 3))
    order = [("w", p) for p in range(4)] + [("x", 0), ("x", 1)] + [("w", p) for p in range(4, 8)] + [("x", p) for p in range(2, 7)] + [("phi", 0), ("x", 7)] + [("q", p) for p in range(8)]
    NUP = opt.get("nup", 13)
    PERIT = opt.get("perit", 2)
    for it in order[:4]:
        issue(it)
    k("s_lshl_b32 s60, s%d, 17" % S_RB); k("s_lshl_b32 s61, s%d, 15" % aw); k("s_add_u32 s60, s60, s61")
    k.srd(R_A, S_X, 32768, off_sgpr=60)
    k("v_lshrrev_b32 v%d, 3, v%d" % (T, V_LANE))
    k("v_and_b32 v%d, 7, v%d" % (T + 1, V_LANE))
    k("v_lshlrev_b32 v%d, 10, v%d" % (V_XO, T))
    k("v_lshl_add_u32 v%d, v%d, 4, v%d" % (V_XO, T + 1, V_XO))
    k("v_lshrrev_b32 v%d, 5, v%d" % (T + 7, V_LANE))
    k("v_and_b32 v%d, 28, v%d" % (V_XD, V_LANE))
    k("v_lshlrev_b32 v%d, 10, v%d" % (V_XD, V_XD))
    k("v_lshl_add_u32 v%d, v%d, 6, v%d" % (V_XD, T + 7, V_XD))
    k("v_lshl_add_u32 v%d, v%d, 4, v%d" % (V_XD, T + 3, V_XD))
    k("s_lshl_b32 s60, s%d, 10" % S_HP)
    k.srd(R_C, S_WPHI, 1024, off_sgpr=60)
    k("v_lshlrev_b32 v15, 4, v%d" % V_LANE)
    for it in order[4:NUP]:
        issue(it)
    rest = order[NUP:]
    k("s_lshl_b32 s60, s%d, 12" % aw)
    k("s_add_u32 s60, s60, %d" % BOUNCE)
    k("v_lshrrev_b32 v%d, 4, v%d" % (T + 4, V_LANE))
    k("v_xor_b32 v%d, v%d, v%d" % (T + 5, T + 1, T + 4))
    k("v_lshlrev_b32 v%d, 7, v%d" % (V_BW0, T))
    k("v_lshl_add_u32 v%d, v%d, 4, v%d" % (V_BW0, T + 5, V_BW0))
    k("v_add_u32 v%d, s60, v%d" % (V_BW0, V_BW0))
    k("v_xor_b32 v%d, 64, v%d" % (V_BW1, V_BW0))
    k("v_and_b32 v%d, 31, v%d" % (T + 6, V_LANE))
    k("v_bfe_u32 v%d, v%d, 1, 3" % (T + 8, V_LANE))
    k("v_lshlrev_b32 v%d, 2, v%d" % (T + 9, T + 7))
    k("v_xor_b32 v%d, v%d, v%d" % (T + 8, T + 8, T + 9))
    k("v_lshlrev_b32 v%d, 7, v%d" % (V_BR, T + 6))
    k("v_lshl_add_u32 v%d, v%d, 4, v%d" % (V_BR, T + 8, V_BR))
    k("v_add_u32 v%d, s60, v%d" % (V_BR, V_BR))
    for j in range(1, 4):
        k("v_xor_b32 v%d, %d, v%d" % (V_BR + j, 16 * j, V_BR))
    k("v_bfe_u32 v%d, v%d, 2, 2" % (T + 9, V_LANE))
    k("v_lshl_add_u32 v%d, v%d, 5, v%d" % (T + 10, T + 7, T + 9))
    k("v_and_b32 v%d, 1, v%d" % (T + 11, T + 4))
    k("v_lshlrev_b32 v%d, 6, v%d" % (V_TR, T + 10))
    k("v_lshl_add_u32 v%d, v%d, 5, v%d" % (V_TR, T + 11, V_TR))
    k("v_lshl_add_u32 v%d, v%d, 3, v%d" % (V_TR, T + 3, V_TR))
    k("v_add_u32 v%d, 0x10000, v%d" % (V_TRQ, V_TR))
    k("v_mov_b32 v%d, %d" % (V_SY, SYNC))
    k("s_lshl_b32 s60, s%d, 2" % aw)
    k("s_add_u32 s60, s60, %d" % SYNC)
    k("v_mov_b32 v%d, s60" % V_OWN)
    k("s_mov_b32 s%d, 0x3fb8aa3b" % S_L2E)
    k("s_mov_b32 s70, 0x55555555"); k("s_mov_b32 s71, 0x55555555")
    k("s_mov_b32 s72, 0x33333333"); k("s_mov_b32 s73, 0x33333333")
    if opt.get("aprio", 0):
        k("s_setprio %d" % opt.get("aprio", 0))
    k.stamp()
    PT = T + 12
    def wfreg(buf, ks):
        return (32 + 8 * ks) if buf == 0 else (64 + 8 * ks if ks < 2 else 112 + 8 * (ks - 2))
    def xreg(c, j):
        if DPPM >> c & 1:
            j = (0, 2, 1, 3)[j]
        return V_X + 16 * c + 4 * j
    xr = {}
    def arrive(c):
        k.wait_vm(last[("x", c)])
        if opt.get("exp"):
            k.stamp()
        if c in (0, 2, 4):
            k.signal(V_OWN, T, 1 + c // 2)
    def bw(c, i):
        if i == 0:
            arrive(c)
        k.lg("ds_write_b128 v%d, %s offset:%d" % (V_BW0 + (i % 2), vr(V_X + 16 * c + 4 * i, 4), 1024 * i))
    def br(c, j):
        xr[(c, j)] = k.lg("ds_read_b128 %s, v%d" % (vr(V_X + 16 * c + 4 * j, 4), V_BR + j))
    def dp(c, g):
        R = [V_X + 16 * c + 4 * i for i in range(4)]
        t0, t2 = T + 4, T + 8
        def cnd(d, a, b, qp):
            for w in range(4):
                k("v_cndmask_b32_dpp v%d, v%d, v%d, vcc quad_perm:%s row_mask:0xf bank_mask:0xf" % (d + w, a + w, b + w, qp))
        if g == 0:
            arrive(c)
            for j in range(4):
                xr[(c, j)] = -1
            k("s_mov_b64 vcc, s[70:71]")
            cnd(t0, R[1], R[0], "[0,0,2,2]"); cnd(t2, R[3], R[2], "[0,0,2,2]")
        elif g == 1:
            k("s_not_b64 vcc, s[70:71]")
            cnd(R[1], R[0], R[1], "[1,1,3,3]"); cnd(R[3], R[2], R[3], "[1,1,3,3]")
        elif g == 2:
            k("s_mov_b64 vcc, s[72:73]")
            cnd(R[0], t2, t0, "[0,1,0,1]"); cnd(R[2], R[3], R[1], "[0,1,0,1]")
        else:
            k("s_not_b64 vcc, s[72:73]")
            cnd(R[3], R[1], R[3], "[2,3,2,3]"); cnd(R[1], t0, t2, "[2,3,2,3]")
    wr = {}
    def tr(c, n):
        ks, part, t = n // 4, (n // 2) % 2, n % 2
        off = (WK, WV)[part] + c * 4096 + ks * 512 + 256 * t
        wr[(c, n)] = k.lg("ds_read_b64_tr_b16 %s, v%d offset:%d" % (vr(wfreg(c % 2, ks) + 4 * part + 2 * t, 2), V_TR, off))
    if DPPM & 1:
        dp(0, 0)
        k.wait_words(V_SY, 0, 4, 1, PT)
        for n in range(16):
            tr(0, n)
        for g in range(1, 4):
            dp(0, g)
    else:
        for i in range(4):
            bw(0, i)
        for j in range(4):
            br(0, j)
        k.wait_words(V_SY, 0, 4, 1, PT)
        for n in range(16):
            tr(0, n)
    waited = -1
    schedB = [["t0", "t1", "t2", "t3"], ["t4", "t5", "t6", "t7"], ["t8", "t9", "t10", "t11", "I"], ["w0", "w1"], ["w2", "w3"], ["r0", "r1", "r2", "r3"], ["t12", "t13", "t14", "t15"], ["S"]]
    schedD = [["t0", "t1", "t2", "t3"], ["t4", "t5", "t6", "t7"], ["t8", "t9", "t10", "t11", "I"], ["t12", "t13", "t14", "t15"], ["d0"], ["d1"], ["d2"], ["d3", "S"]]
    for c in range(8):
        sched = schedD if (DPPM >> (c + 1) & 1) else schedB
        for m in range(8):
            ks, part = m // 2, m % 2
            need = max(wr[(c, 4 * ks + 2 * part + 1)], xr[(c, ks)])
            if need > waited:
                waited = need
                k.wait_lg(need)
            acc = (V_AK, V_AV)[part]
            k("v_mfma_f32_32x32x16_bf16 %s, %s, %s, %s" % (vr(acc, 16), vr(wfreg(c % 2, ks) + 4 * part, 4), vr(xreg(c, ks), 4), vr(acc, 16) if (c or ks) else "0"))
            for op in sched[m]:
                if op == "I":
                    for it in rest[:PERIT]:
                        issue(it)
                    rest = rest[PERIT:]
                elif op == "S":
                    if c in (2, 6):
                        k.wait_words(V_SY, 0, 4, 2 if c == 2 else 3, PT)
                        waited = k.nlg - 1
                elif c < 7:
                    n = int(op[1:])
                    {"t": tr, "w": bw, "r": br, "d": dp}[op[0]](c + 1, n)
    for it in rest:
        issue(it)
    lastq = last[("q", 7)]
    k.stamp()
    if opt.get("exp"):
        k("s_waitcnt vmcnt(0)")
        k.stamp()
        k.dump_stamps(32)
        return
    VA = T
    k("v_lshrrev_b32 v%d, 5, v%d" % (VA + 1, V_LANE))
    k("v_bfe_u32 v%d, v%d, 2, 2" % (VA + 2, V_LANE))
    k("v_lshl_add_u32 v%d, v%d, 2, v%d" % (VA + 1, VA + 1, VA + 2))
    k("v_bfe_u32 v%d, v%d, 4, 1" % (VA + 2, V_LANE))
    k("v_and_b32 v%d, 3, v%d" % (VA + 3, V_LANE))
    k("v_lshlrev_b32 v%d, 5, v%d" % (VA, VA + 1))
    k("v_lshl_add_u32 v%d, v%d, 9, v%d" % (VA, VA + 2, VA))
    k("v_lshl_add_u32 v%d, v%d, 3, v%d" % (VA, VA + 3, VA))
    k("v_add_u32 v%d, %d, v%d" % (VA, WPHI, VA))
    RAW = 104
    PH0, PH1 = 96, 100
    VB, KB_ = 32, 40
    s_raw0 = k.lg("ds_read_b64_tr_b16 %s, v%d" % (vr(T + 4, 2), VA))
    s_raw1 = k.lg("ds_read_b64_tr_b16 %s, v%d offset:256" % (vr(T + 6, 2), VA))
    VS = T + 8
    k("v_and_b32 v%d, 31, v%d" % (VS, V_LANE))
    k("v_lshrrev_b32 v%d, 5, v%d" % (VS + 1, V_LANE))
    k("v_lshlrev_b32 v%d, 5, v%d" % (VS, VS))
    k("v_lshl_add_u32 v%d, v%d, 4, v%d" % (VS, VS + 1, VS))
    k("s_lshl_b32 s60, s%d, 10" % aw)
    k("v_add_u32 v%d, s60, v%d" % (14, VS))
    k("s_lshl_b32 s60, s%d, 12" % aw); k("s_add_u32 s60, s60, %d" % BOUNCE)
    k("v_add_u32 v%d, s60, v%d" % (15, VS))
    VS = 14
    k("v_cmp_eq_u32 vcc, 0, v%d" % (VA + 2))
    for j in range(8):
        k("v_cvt_pk_bf16_f32 v%d, v%d, v%d" % (KB_ + j, V_AK + 2 * j, V_AK + 2 * j + 1))
    for j in range(8):
        k("v_cvt_pk_bf16_f32 v%d, v%d, v%d" % (VB + j, V_AV + 2 * j, V_AV + 2 * j + 1))
    k.wait_lg(s_raw1)
    for j in range(4):
        k("v_cndmask_b32 v%d, 0, v%d, vcc" % (PH0 + j, T + 4 + j))
        k("v_cndmask_b32 v%d, v%d, 0, vcc" % (PH1 + j, T + 4 + j))
    if opt.get("dump_kv"):
        k("s_lshl_b32 s60, s2, 2"); k("s_add_u32 s60, s60, s%d" % aw); k("s_lshl_b32 s60, s60, 12"); k("s_add_u32 s60, s60, %d" % (WS_DBG + 0x100000))
        k("v_lshlrev_b32 v15, 4, v%d" % V_LANE)
        for j, r in enumerate((KB_, KB_ + 4, VB, VB + 4)):
            k.vm("buffer_store_dwordx4 %s, v15, s[%d:%d], s60 offen offset:%d" % (vr(r, 4), R_WS, R_WS + 3, 1024 * j))
    k("v_mfma_f32_32x32x16_bf16 %s, %s, %s, 0" % (vr(V_P, 16), vr(PH0, 4), vr(KB_, 4)))
    k("v_mfma_f32_32x32x16_bf16 %s, %s, %s, %s" % (vr(V_P, 16), vr(PH1, 4), vr(KB_ + 4, 4), vr(V_P, 16)))
    for t in range(2):
        k.lg("ds_write_b128 v15, %s offset:%d" % (vr(VB + 4 * t, 4), t * 1024))
    if opt.get("dump_kv"):
        k("s_waitcnt vmcnt(0)")
    PHI = V_AK
    softmax(k, V_P, 32, PHI, T, opt.get("round_p", 0))
    for g in range(4):
        k.lg("ds_write_b128 v%d, %s offset:%d" % (VS, vr(PHI + 4 * g, 4), g * 4096))
    k.wait_vm(lastq)
    k.signal(V_OWN, T, 9)
    k("v_lshrrev_b32 v%d, 2, v%d" % (T, V_LANE))
    k("v_and_b32 v%d, 3, v%d" % (T + 1, V_LANE))
    k("v_lshlrev_b32 v%d, 5, v%d" % (T, T))
    k("v_lshl_add_u32 v%d, v%d, 3, v%d" % (T, T + 1, T))
    k("s_lshl_b32 s60, s%d, 12" % aw)
    k("s_lshr_b32 s61, s%d, 1" % aw); k("s_lshl_b32 s61, s61, 10"); k("s_add_u32 s61, s61, %d" % BOUNCE)
    k("v_add_u32 v%d, s60, v%d" % (T + 2, T))
    k("v_add_u32 v%d, s61, v%d" % (T + 3, T))
    ONES = T + 4
    for j in range(4):
        k("v_mov_b32 v%d, 0x3f803f80" % (ONES + j))
    k.wait_words(V_SY, 0, 4, 9, PT)
    k.stamp()
    seqs = []
    for e in range(4):
        for ab in range(2):
            for t in range(2):
                seqs.append(k.lg("ds_read_b64_tr_b16 %s, v%d offset:%d" % (vr(32 + 8 * e + 4 * ab + 2 * t, 2), T + 2 + ab, (4096 if ab else 1024) * e + 512 * t)))
    KV, ZZ = 104, 108
    for e in range(4):
        k.wait_lg(seqs[4 * e + 3])
        k("v_mfma_f32_16x16x32_bf16 %s, %s, %s, %s" % (vr(KV, 4), vr(32 + 8 * e, 4), vr(36 + 8 * e, 4), vr(KV, 4) if e else "0"))
        k("v_mfma_f32_16x16x32_bf16 %s, %s, %s, %s" % (vr(ZZ, 4), vr(32 + 8 * e, 4), vr(ONES, 4), vr(ZZ, 4) if e else "0"))
    k.signal(V_OWN, T, 10)
    k.wait_words(V_SY, 32, 1, 4, PT)
    k("s_lshl_b32 s60, s%d, 4" % S_HP); k("s_add_u32 s60, s60, s%d" % S_RB); k("s_mul_i32 s60, s60, %d" % KVP_STRIDE)
    k("s_add_u32 s60, s60, %d" % WS_KVP)
    k("s_lshl_b32 s61, s%d, 10" % aw)
    k("v_lshlrev_b32 v%d, 4, v%d" % (T, V_LANE))
    k("v_add_u32 v%d, s61, v%d" % (T, T))
    k("s_lshl_b32 s61, s%d, 6" % aw); k("s_add_u32 s61, s61, 4096")
    k("v_and_b32 v%d, 0x30, v%d" % (T + 1, V_LANE))
    k("v_add_u32 v%d, s61, v%d" % (T + 1, T + 1))
    for j in range(8):
        k("v_min_u32 v%d, -2, v%d" % (KV + j, KV + j))
    k.vm("buffer_store_dwordx4 %s, v%d, s[%d:%d], s60 offen sc1" % (vr(KV, 4), T, R_WS, R_WS + 3))
    k("s_mov_b32 s68, 0x00010001"); k("s_mov_b32 s69, 0x00010001")
    k("s_mov_b64 exec, s[68:69]")
    k.vm("buffer_store_dwordx4 %s, v%d, s[%d:%d], s60 offen sc1" % (vr(ZZ, 4), T + 1, R_WS, R_WS + 3))
    k("s_mov_b64 exec, -1")
    k("v_mov_b32 v15, v%d" % T)
    k.stamp()
    k("s_lshr_b32 s60, s%d, 1" % S_HP); k("s_lshl_b32 s60, s60, 7")
    k("s_sub_u32 s61, %d, s60" % (512 * 1024))
    k.srd(R_C, S_WO, "s61", off_sgpr=60)
    k("v_lshrrev_b32 v%d, 3, v%d" % (T + 2, V_LANE))
    k("v_and_b32 v%d, 7, v%d" % (T + 3, V_LANE))
    k("v_bfe_u32 v%d, v%d, 4, 1" % (T + 4, V_LANE))
    k("v_lshlrev_b32 v%d, 2, v%d" % (T + 4, T + 4))
    k("v_xor_b32 v%d, v%d, v%d" % (T + 3, T + 3, T + 4))
    k("v_lshlrev_b32 v%d, 10, v%d" % (V_XO, T + 2))
    k("v_lshl_add_u32 v%d, v%d, 4, v%d" % (V_XO, T + 3, V_XO))
    k("s_lshl_b32 s66, s%d, 13" % aw)
    def wodma(part, lds):
        for i in range(8):
            k("s_add_u32 s68, s66, %d" % ((part * 256 + 32 * i) * 1024))
            k("s_add_u32 m0, s67, %d" % (lds + i * 4096))
            r = k.vm("buffer_load_dwordx4 v%d, s[%d:%d], s68 offen lds" % (V_XO, R_C, R_C + 3))
        return r
    wodma(0, WV)
    for half in range(4):
        seqs = []
        for ks in range(8):
            for t in range(2):
                off = (half * 2 + ks // 4) * 4096 + (ks % 4) * 512 + 256 * t
                seqs.append(k.lg("ds_read_b64_tr_b16 %s, v%d offset:%d" % (vr(V_WF + 4 * ks + 2 * t, 2), V_TRQ, off)))
        for ks in range(8):
            k.wait_lg(seqs[2 * ks + 1])
            k("v_mfma_f32_32x32x16_bf16 %s, %s, %s, %s" % (vr(V_AQ, 16), vr(V_WF + 4 * ks, 4), vr(xreg(half * 2 + ks // 4, ks % 4), 4), vr(V_AQ, 16) if (half or ks) else "0"))
        if half == 0:
            k.wait_words(V_SY, 0, 4, 10, PT)
            wodma(1, WK)
    for j in range(8):
        k("v_cvt_pk_bf16_f32 v%d, v%d, v%d" % (KB_ + j, V_AQ + 2 * j, V_AQ + 2 * j + 1))
    k("v_mfma_f32_32x32x16_bf16 %s, %s, %s, 0" % (vr(V_P, 16), vr(PH0, 4), vr(KB_, 4)))
    k("v_mfma_f32_32x32x16_bf16 %s, %s, %s, %s" % (vr(V_P, 16), vr(PH1, 4), vr(KB_ + 4, 4), vr(V_P, 16)))
    softmax(k, V_P, 32, PHI, T, opt.get("round_p", 0))
    k.stamp()
    k.wait_words(V_SY, 36, 1, 1, PT)
    k("v_lshlrev_b32 v%d, 2, v%d" % (T, V_LANE))
    k("v_add_u32 v%d, %d, v%d" % (T, OLDS, T))
    k.lg("ds_read_b32 v3, v%d" % T)
    flag_addr(k, 4, T + 4)
    k("s_mul_i32 s60, s%d, %d" % (S_HP, 16 * KVP_STRIDE)); k("s_add_u32 s60, s60, %d" % WS_KVP)
    k("v_and_b32 v%d, 15, v%d" % (T, V_LANE))
    k("s_movk_i32 s61, %d" % KVP_STRIDE)
    k("v_mul_lo_u32 v%d, v%d, s61" % (T + 1, T))
    k("v_and_b32 v%d, 0x30, v%d" % (T + 2, V_LANE))
    k("v_add_u32 v%d, v%d, v%d" % (T + 1, T + 1, T + 2))
    k("s_lshl_b32 s61, s%d, 6" % aw); k("s_add_u32 s61, s61, 4096")
    k("v_add_u32 v%d, s61, v%d" % (T + 1, T + 1))
    G0 = 128
    loads = []
    for p in range(16):
        loads.append((G0 + 4 * p, 4, ["s_add_u32 s68, s60, %d" % (p * KVP_STRIDE),
                                      "buffer_load_dwordx4 %s, v15, s[%d:%d], s68 offen sc1" % (vr(G0 + 4 * p, 4), R_WS, R_WS + 3)]))
    loads.append((G0 + 64, 4, ["buffer_load_dwordx4 %s, v%d, s[%d:%d], s60 offen sc1" % (vr(G0 + 64, 4), T + 1, R_WS, R_WS + 3)]))
    k.gather(loads, 196)
    k.stamp()
    k("buffer_load_dword v5, v4, s[%d:%d], 0 offen sc1" % (R_WS, R_WS + 3))
    for step in (8, 4, 2, 1):
        for p in range(step):
            for j in range(4):
                k("v_add_f32 v%d, v%d, v%d" % (G0 + 4 * p + j, G0 + 4 * p + j, G0 + 4 * (p + step) + j))
        for j in range(4):
            k("v_add_f32_dpp v%d, v%d, v%d row_ror:%d row_mask:0xf bank_mask:0xf" % (G0 + 64 + j, G0 + 64 + j, G0 + 64 + j, step))
    k("v_cvt_pk_bf16_f32 v%d, v%d, v%d" % (T + 4, G0, G0 + 1)); k("v_cvt_pk_bf16_f32 v%d, v%d, v%d" % (T + 5, G0 + 2, G0 + 3))
    k("v_cvt_pk_bf16_f32 v%d, v%d, v%d" % (T + 6, G0 + 64, G0 + 65)); k("v_cvt_pk_bf16_f32 v%d, v%d, v%d" % (T + 7, G0 + 66, G0 + 67))
    k("v_lshrrev_b32 v%d, 4, v%d" % (T + 2, V_LANE))
    k("v_lshlrev_b32 v%d, 5, v%d" % (T, T))
    k("v_lshl_add_u32 v%d, v%d, 3, v%d" % (T, T + 2, T))
    k("s_lshl_b32 s60, s%d, 12" % aw); k("s_add_u32 s60, s60, %d" % BOUNCE)
    k("v_add_u32 v%d, s60, v%d" % (T, T))
    k.lg("ds_write_b64 v%d, %s" % (T, vr(T + 4, 2)))
    k.lg("ds_write_b64 v%d, %s offset:512" % (T, vr(T + 6, 2)))
    k.signal(V_OWN, T + 8, 11)
    k("v_and_b32 v%d, 31, v%d" % (T + 1, V_LANE))
    k("v_lshrrev_b32 v%d, 5, v%d" % (T + 2, V_LANE))
    k("v_lshlrev_b32 v%d, 5, v%d" % (T + 1, T + 1))
    k("v_lshl_add_u32 v%d, v%d, 4, v%d" % (T + 1, T + 2, T + 1))
    k("v_add_u32 v%d, %d, v%d" % (T + 1, BOUNCE, T + 1))
    k.wait_words(V_SY, 40, 1, 4, PT)
    k.wait_words(V_SY, 0, 4, 11, PT)
    seqs = [k.lg("ds_read_b128 %s, v%d offset:%d" % (vr(32 + 4 * g, 4), T + 1, 4096 * g)) for g in range(4)]
    D0 = (48, 64)
    for t in range(2):
        k.wait_lg(seqs[2 * t + 1])
        k("v_mfma_f32_32x32x16_bf16 %s, %s, %s, 0" % (vr(D0[t], 16), vr(32 + 8 * t, 4), vr(PHI + 8 * t, 4)))
        k("v_mfma_f32_32x32x16_bf16 %s, %s, %s, %s" % (vr(D0[t], 16), vr(36 + 8 * t, 4), vr(PHI + 8 * t + 4, 4), vr(D0[t], 16)))
    k("s_lshl_b32 s60, s%d, 2" % S_RB); k("s_add_u32 s60, s60, s%d" % aw); k("s_lshl_b32 s60, s60, 4"); k("s_add_u32 s60, s60, s%d" % S_HP)
    k("s_lshl_b32 s60, s60, 11"); k("s_add_u32 s60, s60, %d" % WS_OF)
    k("v_lshlrev_b32 v15, 4, v%d" % V_LANE)
    k("s_mov_b32 s61, 0x358637bd")
    OP = 96
    for t in range(2):
        k("v_add_f32 v%d, s61, v%d" % (T + 4 + t, D0[t] + 8))
        k("v_rcp_f32 v%d, v%d" % (T + 4 + t, T + 4 + t))
        for i in range(8):
            k("v_mul_f32 v%d, v%d, v%d" % (D0[t] + i, D0[t] + i, T + 4 + t))
        for j in range(4):
            k("v_cvt_pk_bf16_f32 v%d, v%d, v%d" % (OP + 4 * t + j, D0[t] + 2 * j, D0[t] + 2 * j + 1))
        for j in range(4):
            k("v_min_u32 v%d, -2, v%d" % (OP + 4 * t + j, OP + 4 * t + j))
        k.vm("buffer_store_dwordx4 %s, v15, s[%d:%d], s60 offen offset:%d sc1" % (vr(OP + 4 * t, 4), R_WS, R_WS + 3, 1024 * t))
    k.stamp()
    k("v_lshrrev_b32 v%d, 5, v%d" % (T, V_LANE))
    k("v_bfe_u32 v%d, v%d, 2, 2" % (T + 1, V_LANE))
    k("v_lshl_add_u32 v%d, v%d, 3, v%d" % (T, T, T + 1))
    k("v_lshlrev_b32 v%d, 7, v%d" % (T, T))
    k("v_bfe_u32 v%d, v%d, 3, 1" % (T + 1, V_LANE))
    k("v_lshl_add_u32 v%d, v%d, 6, v%d" % (T, T + 1, T))
    k("v_bfe_u32 v%d, v%d, 4, 1" % (T + 1, V_LANE))
    k("v_lshl_add_u32 v%d, v%d, 5, v%d" % (T, T + 1, T))
    k("v_and_b32 v%d, 3, v%d" % (T + 1, V_LANE))
    k("v_lshl_add_u32 v%d, v%d, 3, v%d" % (T, T + 1, T))
    k("s_lshr_b32 s61, s%d, 1" % aw)
    k("s_xor_b32 s60, s61, 1"); k("s_lshl_b32 s60, s60, 15")
    k("v_add_u32 v%d, s60, v%d" % (T, T))
    k("v_xor_b32 v%d, 64, v%d" % (T + 1, T))
    WF = 128
    n = 0
    for ks in range(16):
        for ct in range(2):
            for t in range(2):
                k.lg("ds_read_b64_tr_b16 %s, v%d offset:%d" % (vr(WF + 8 * ks + 4 * ct + 2 * t, 2), T + ct, 2048 * ks + 512 * t))
    k("s_lshl_b32 s60, s%d, 2" % S_RB); k("s_and_b32 s68, s%d, 1" % S_HP); k("s_lshl_b32 s68, s68, 1"); k("s_add_u32 s60, s60, s68")
    k("s_and_b32 s68, s%d, 1" % aw); k("s_add_u32 s60, s60, s68")
    k("s_mov_b32 s70, s60")
    k("s_lshl_b32 s60, s60, 1"); k("s_add_u32 s60, s60, s61"); k("s_lshl_b32 s60, s60, 14"); k("s_add_u32 s60, s60, %d" % WS_OF)
    G1 = 32
    loads = []
    for p in range(16):
        loads.append((G1 + 4 * p, 4, ["s_add_u32 s68, s60, %d" % ((p // 4) * 4096),
                                      "buffer_load_dwordx4 %s, v15, s[%d:%d], s68 offen offset:%d sc1" % (vr(G1 + 4 * p, 4), R_WS, R_WS + 3, (p % 4) * 1024)]))
    poll_flags(k, 4, 3, 5, 0xffff0000, issued=2)
    k.gather(loads, 96)
    k("s_waitcnt lgkmcnt(0)")
    k.stamp()
    AC = (96, 112)
    for ks in range(16):
        for ct in range(2):
            k("v_mfma_f32_32x32x16_bf16 %s, %s, %s, %s" % (vr(AC[ct], 16), vr(WF + 8 * ks + 4 * ct, 4), vr(G1 + 4 * ks, 4), vr(AC[ct], 16) if ks else "0"))
    k("s_lshl_b32 s60, s%d, 12" % aw); k("s_add_u32 s60, s60, %d" % WQ)
    k("v_add_u32 v%d, s60, v15" % T)
    k("s_xor_b32 s68, s60, 8192")
    k("v_add_u32 v%d, s68, v15" % (T + 1))
    k("v_xor_b32 v%d, 8, v%d" % (T + 2, V_OWN))
    k("s_lshl_b32 s68, s70, 16")
    k("s_lshr_b32 s69, s%d, 1" % S_HP); k("s_lshl_b32 s69, s69, 7"); k("s_add_u32 s68, s68, s69")
    k("s_lshl_b32 s69, s61, 6"); k("s_add_u32 s68, s68, s69")
    k("v_and_b32 v%d, 31, v%d" % (T + 3, V_LANE))
    k("v_lshrrev_b32 v%d, 5, v%d" % (T + 4, V_LANE))
    k("v_lshlrev_b32 v%d, 11, v%d" % (T + 3, T + 3))
    k("v_lshl_add_u32 v%d, v%d, 4, v%d" % (T + 3, T + 4, T + 3))
    k.srd(R_D, S_OUT, 2048 * 2048)
    L1 = k.lbl("kh1"); LJ = k.lbl("khj")
    k("s_cmp_eq_u32 s61, 1")
    k("s_cbranch_scc1 %s" % L1)
    FIN = 32
    for kh in range(2):
        if kh == 1:
            k.label(L1)
            k.settle(12)
        snd, keep = AC[1 - kh], AC[kh]
        for j in range(4):
            k.lg("ds_write_b128 v%d, %s offset:%d" % (T, vr(snd + 4 * j, 4), 1024 * j))
        k.signal(V_OWN, T + 8, 12)
        k.wait_words(T + 2, 0, 1, 12, PT)
        seqs = [k.lg("ds_read_b128 %s, v%d offset:%d" % (vr(48 + 4 * j, 4), T + 1, 1024 * j)) for j in range(4)]
        for j in range(4):
            k.wait_lg(seqs[j])
            for i in range(4):
                k("v_add_f32 v%d, v%d, v%d" % (48 + 4 * j + i, 48 + 4 * j + i, keep + 4 * j + i))
        if kh == 0:
            k("s_branch %s" % LJ)
    k.label(LJ)
    for j in range(8):
        k("v_cvt_pk_bf16_f32 v%d, v%d, v%d" % (FIN + j, 48 + 2 * j, 48 + 2 * j + 1))
    for b in (0, 4):
        k("v_permlane32_swap_b32 v%d, v%d" % (FIN + b, FIN + b + 2))
        k("v_permlane32_swap_b32 v%d, v%d" % (FIN + b + 1, FIN + b + 3))
    for b in (0, 1):
        k.vm("buffer_store_dwordx4 %s, v%d, s[%d:%d], s68 offen offset:%d" % (vr(FIN + 4 * b, 4), T + 3, R_D, R_D + 3, 32 * b))
    k("s_waitcnt vmcnt(0)")
    k.stamp()
    k.dump_stamps(32)
```

```python
from common import *
import math, struct

def f2u(f):
    return struct.unpack("<I", struct.pack("<f", f))[0]

V_LANE = 1
V_OLD, V_FA = 2, 3
V_SY, V_OWN, V_PAR = 4, 5, 6
V_UF = 8
V_DS = 16
V_LF = 20
T = 192
PT = 24
S_D, S_NH, S_DI, S_PB = 62, 63, 64, 65


def role_b(k, opt):
    bw = S_RW
    if opt.get("no_b"):
        k("s_endpgm")
    if opt.get("bprio", 3):
        k("s_setprio %d" % opt.get("bprio", 3))
    k("s_and_b32 s%d, s%d, 1" % (S_NH, bw))
    k("s_lshr_b32 s%d, s%d, 1" % (S_DI, bw))
    k("s_lshl_b32 s%d, s%d, 5" % (S_D, S_HP)); k("s_lshl_b32 s60, s%d, 1" % S_RB); k("s_add_u32 s%d, s%d, s60" % (S_D, S_D))
    k("s_lshl_b32 s60, s%d, 1" % S_D)
    k("s_load_dword s66, s[%d:%d], s60" % (S_LDT, S_LDT + 1))
    k("s_mov_b32 s67, s%d" % S_D)
    k("s_add_u32 s%d, s%d, s%d" % (S_D, S_D, S_DI))
    k("s_mul_i32 s%d, s%d, %d" % (S_PB, S_DI, DSTRIDE)); k("s_add_u32 s%d, s%d, %d" % (S_PB, S_PB, BREG))
    flag_addr(k, V_FA, T)
    k.vm("buffer_load_dword v%d, v%d, s[%d:%d], 0 offen sc1" % (V_OLD, V_FA, R_WS, R_WS + 3))
    k("s_lshl_b32 s60, s%d, 17" % S_RB); k("s_lshl_b32 s61, s%d, 15" % bw); k("s_add_u32 s60, s60, s61")
    k("s_lshl_b32 s61, s%d, 6" % S_HP); k("s_add_u32 s60, s60, s61")
    k.srd(R_A, S_U, 32768 - 960, off_sgpr=60)
    k("v_lshrrev_b32 v%d, 2, v%d" % (T, V_LANE))
    k("v_and_b32 v%d, 3, v%d" % (T + 1, V_LANE))
    k("v_lshlrev_b32 v%d, 10, v%d" % (T + 2, T))
    k("v_lshl_add_u32 v%d, v%d, 4, v%d" % (T + 2, T + 1, T + 2))
    k("s_lshl_b32 s68, s%d, 11" % bw); k("s_add_u32 s68, s68, %d" % BREG)
    k("s_mov_b32 m0, s68")
    k.vm("buffer_load_dwordx4 v%d, s[%d:%d], 0 offen lds" % (T + 2, R_A, R_A + 3))
    k("s_add_u32 m0, s68, 1024")
    k("s_mov_b32 s60, 16384")
    s_ut = k.vm("buffer_load_dwordx4 v%d, s[%d:%d], s60 offen lds" % (T + 2, R_A, R_A + 3))
    k("s_lshl_b32 s60, s%d, 8" % S_D); k("s_lshl_b32 s61, s%d, 7" % S_NH); k("s_add_u32 s60, s60, s61")
    k("v_lshlrev_b32 v%d, 1, v%d" % (T + 3, V_LANE))
    PR = 28
    for i, sp in enumerate((S_ARE, S_AIM, S_BRE, S_BIM, S_CRE, S_CIM)):
        r = (R_B, R_C)[i % 2]
        k.srd(r, sp, 131072)
        s_par = k.vm("buffer_load_ushort v%d, v%d, s[%d:%d], s60 offen" % (PR + i, T + 3, r, r + 3))
    k.srd(R_B, S_DSK, 1024)
    k("v_lshrrev_b32 v%d, 4, v%d" % (T + 4, V_LANE))
    k("v_lshlrev_b32 v%d, 4, v%d" % (T + 4, T + 4))
    k("s_lshl_b32 s60, s%d, 6" % S_HP)
    k.vm("buffer_load_dwordx4 %s, v%d, s[%d:%d], s60 offen" % (vr(V_DS, 4), T + 4, R_B, R_B + 3))
    k("v_lshlrev_b32 v7, 4, v%d" % V_LANE)
    SEN = 52
    for j in range(4):
        k("v_mov_b32 v%d, -1" % (SEN + j))
    SE = vr(SEN, 4)
    def clear_kv():
        k("s_lshl_b32 s60, s%d, 4" % S_HP); k("s_add_u32 s60, s60, s%d" % S_RB); k("s_mul_i32 s60, s60, %d" % KVP_STRIDE)
        k("s_add_u32 s60, s60, %d" % WS_KVP)
        k("s_lshl_b32 s61, s%d, 10" % bw); k("s_add_u32 s61, s61, s60")
        k.vm("buffer_store_dwordx4 %s, v7, s[%d:%d], s61 offen sc1" % (SE, R_WS, R_WS + 3))
        k("s_lshl_b32 s61, s%d, 6" % bw); k("s_add_u32 s61, s61, s60"); k("s_add_u32 s61, s61, 4096")
        k("s_mov_b64 exec, 15")
        k.vm("buffer_store_dwordx4 %s, v7, s[%d:%d], s61 offen sc1" % (SE, R_WS, R_WS + 3))
        k("s_mov_b64 exec, -1")
    def clear_oy():
        k("s_lshl_b32 s60, s%d, 2" % S_RB); k("s_add_u32 s60, s60, s%d" % bw); k("s_lshl_b32 s60, s60, 4"); k("s_add_u32 s60, s60, s%d" % S_HP)
        k("s_lshl_b32 s60, s60, 11"); k("s_add_u32 s60, s60, %d" % WS_OF)
        for j in range(2):
            k.vm("buffer_store_dwordx4 %s, v7, s[%d:%d], s60 offen offset:%d sc1" % (SE, R_WS, R_WS + 3, 1024 * j))
        k("s_lshl_b32 s60, s67, 12"); k("s_lshl_b32 s61, s%d, 11" % bw); k("s_add_u32 s60, s60, s61"); k("s_add_u32 s60, s60, %d" % WS_YT)
        for j in range(2):
            k.vm("buffer_store_dwordx4 %s, v7, s[%d:%d], s60 offen offset:%d sc1" % (SE, R_WS, R_WS + 3, 1024 * j))
    k("v_mov_b32 v%d, %d" % (V_SY, SYNC + 16))
    k("s_lshl_b32 s60, s%d, 2" % bw); k("s_add_u32 s60, s60, %d" % (SYNC + 16))
    k("v_mov_b32 v%d, s60" % V_OWN)
    k("v_xor_b32 v%d, 4, v%d" % (V_PAR, V_OWN))
    k.stamp()
    k("v_and_b32 v%d, 15, v%d" % (T, V_LANE))
    k("v_bfe_u32 v%d, v%d, 2, 2" % (T + 1, V_LANE))
    k("v_and_b32 v%d, 3, v%d" % (T + 2, V_LANE))
    k("v_cvt_f32_u32 v%d, v%d" % (V_LF, T))
    k("v_lshlrev_b32 v%d, 4, v%d" % (T + 3, T))
    k("v_cvt_f32_u32 v%d, v%d" % (V_LF + 3, T + 3))
    k("v_lshlrev_b32 v%d, 2, v%d" % (T + 3, T + 1))
    k("v_lshl_add_u32 v%d, v%d, 1, v%d" % (T + 3, T + 2, T + 3))
    k("v_add_u32 v%d, 256, v%d" % (T + 3, T + 3))
    k("v_mov_b32 v%d, 1808" % (T + 4))
    k("v_cmp_eq_u32 vcc, 3, v%d" % (T + 2))
    k("v_cndmask_b32 v%d, v%d, v%d, vcc" % (T + 3, T + 3, T + 4))
    k("v_cvt_f32_u32 v%d, v%d" % (V_LF + 1, T + 3))
    k("v_lshlrev_b32 v%d, 8, v%d" % (T + 3, T + 1))
    k("v_lshl_add_u32 v%d, v%d, 2, v%d" % (T + 3, T + 2, T + 3))
    k("v_add_u32 v%d, 512, v%d" % (T + 3, T + 3))
    k("v_lshlrev_b32 v%d, 9, v%d" % (T + 4, T + 1))
    k("v_bfe_u32 v%d, v%d, 1, 1" % (T + 5, V_LANE))
    k("v_lshl_add_u32 v%d, v%d, 8, v%d" % (T + 4, T + 5, T + 4))
    k("v_and_b32 v%d, 1, v%d" % (T + 5, V_LANE))
    k("v_lshl_add_u32 v%d, v%d, 3, v%d" % (T + 4, T + 5, T + 4))
    k("v_cmp_lt_u32 vcc, 1, v%d" % (T + 1))
    k("v_cndmask_b32 v%d, v%d, v%d, vcc" % (T + 3, T + 3, T + 4))
    k("v_cvt_f32_u32 v%d, v%d" % (V_LF + 2, T + 3))
    k("v_lshrrev_b32 v%d, 4, v%d" % (T, V_LANE))
    k("v_lshl_add_u32 v%d, v%d, 3, v%d" % (T + 3, T, T + 1))
    k("v_sub_u32 v%d, 27, v%d" % (T + 3, T + 3))
    k("v_lshlrev_b32 v%d, 6, v%d" % (T + 3, T + 3))
    k("v_lshl_add_u32 v%d, v%d, 3, v%d" % (T + 3, T + 2, T + 3))
    k("v_add_u32 v%d, s68, v%d" % (T + 3, T + 3))
    k("v_and_b32 v%d, 15, v%d" % (T + 4, V_LANE))
    k("v_lshlrev_b32 v%d, 6, v%d" % (T + 5, T + 4))
    k("v_lshl_add_u32 v%d, v%d, 4, v%d" % (T + 5, T, T + 5))
    k("v_add_u32 v%d, s68, v%d" % (T + 5, T + 5))
    k("v_lshlrev_b32 v%d, 12, v%d" % (T + 6, T + 4))
    k("v_lshl_add_u32 v%d, v%d, 4, v%d" % (T + 6, T, T + 6))
    k("s_lshl_b32 s60, s%d, 17" % S_HP); k("s_add_u32 s60, s60, %d" % (WS_UT + 4096 - 64))
    k("s_lshl_b32 s61, s%d, 8" % S_RB); k("s_sub_u32 s60, s60, s61")
    k("s_lshl_b32 s61, s%d, 6" % bw); k("s_sub_u32 s60, s60, s61")
    k("s_add_u32 s61, s60, 65536")
    k.wait_vm(s_ut)
    sq = []
    for j in range(2):
        for t in range(2):
            sq.append(k.lg("ds_read_b64_tr_b16 %s, v%d offset:%d" % (vr(T + 16 + 4 * j + 2 * t, 2), T + 3, 32 * j + 256 * (1 - t))))
    for j in range(2):
        k.lg("ds_read_b128 %s, v%d offset:%d" % (vr(V_UF + 4 * j, 4), T + 5, 1024 * j))
    for j in range(2):
        k.wait_lg(sq[2 * j + 1])
        k.vm("buffer_store_dwordx4 %s, v%d, s[%d:%d], s%d offen sc1" % (vr(T + 16 + 4 * j, 4), T + 6, R_WS, R_WS + 3, 60 + j))
    clear_kv()
    k("s_setprio %d" % opt.get("bprio2", 0))
    k.stamp()
    k("s_waitcnt lgkmcnt(0)")
    k("s_lshl_b32 s60, s%d, 4" % S_DI); k("s_lshr_b32 s66, s66, s60"); k("s_lshl_b32 s66, s66, 16")
    k("s_mov_b32 s69, 0x3fb8aa3b")
    k("v_mov_b32 v%d, s66" % T)
    k("v_mul_f32 v%d, s69, v%d" % (T, T))
    k("v_exp_f32 v%d, v%d" % (T, T))
    k("v_cvt_pk_bf16_f32 v%d, v%d, v%d" % (T, T, T))
    k("v_and_b32 v%d, 0xffff0000, v%d" % (T, T))
    k.wait_vm(s_par)
    for i in range(6):
        k("v_lshlrev_b32 v%d, 16, v%d" % (PR + i, PR + i))
    for i in range(4):
        k("v_mul_f32 v%d, v%d, v%d" % (PR + i, PR + i, T))
    TB = T + 4
    k("v_mul_f32 v%d, s69, v%d" % (TB, PR))
    k("v_mul_f32 v%d, 0.15915494, v%d" % (TB + 1, PR + 1))
    k("v_mul_f32 v%d, v%d, v%d" % (TB + 2, PR + 4, PR + 2))
    k("v_mul_f32 v%d, v%d, v%d" % (TB + 3, PR + 4, PR + 3))
    k("v_fma_f32 v%d, -v%d, v%d, v%d" % (TB + 2, PR + 5, PR + 3, TB + 2))
    k("v_fma_f32 v%d, v%d, v%d, v%d" % (TB + 3, PR + 5, PR + 2, TB + 3))
    k("s_lshl_b32 s60, s%d, 10" % S_NH); k("s_add_u32 s60, s60, s%d" % S_PB); k("s_add_u32 s60, s60, %d" % KBO)
    k("v_add_u32 v%d, s60, v7" % (T + 1))
    k.lg("ds_write_b128 v%d, %s" % (T + 1, vr(TB, 4)))
    k("v_and_b32 v%d, 0x30, v%d" % (T + 2, V_LANE))
    k("v_lshlrev_b32 v%d, 2, v%d" % (T + 2, T + 2))
    k("v_add_u32 v%d, s60, v%d" % (T + 2, T + 2))
    TAB = 64
    tseq = []
    for ks in range(4):
        for j in range(4):
            tseq.append(k.lg("ds_read_b128 %s, v%d offset:%d" % (vr(TAB + 16 * ks + 4 * j, 4), T + 2, 256 * ks + 16 * j)))
    FR = 128
    VA = 40
    W = 160
    for ks in range(4):
        F = FR + 16 * (ks % 2)
        for j in range(4):
            k.wait_lg(tseq[4 * ks + j])
            e = TAB + 16 * ks + 4 * j
            X, PHs, SN, CS = W, W + 4, W + 8, W + 12
            for t in range(4):
                k("v_mul_f32 v%d, v%d, v%d" % (PHs + t, e + 1, V_LF + t))
            for t in range(4):
                k("v_mul_f32 v%d, v%d, v%d" % (X + t, e, V_LF + t))
            for t in range(4):
                k("v_fract_f32 v%d, v%d" % (PHs + t, PHs + t))
            for t in range(4):
                k("v_exp_f32 v%d, v%d" % (X + t, X + t))
            for t in range(4):
                k("v_sin_f32 v%d, v%d" % (SN + t, PHs + t))
            for t in range(4):
                k("v_cos_f32 v%d, v%d" % (CS + t, PHs + t))
            for t in (3, 0, 1, 2):
                k("v_mul_f32 v%d, v%d, v%d" % (SN + t, SN + t, X + t))
            for t in (3, 0, 1, 2):
                k("v_mul_f32 v%d, v%d, v%d" % (CS + t, CS + t, X + t))
            k("v_mul_f32 v%d, v%d, v%d" % (W + 16, CS + 3, e + 2))
            k("v_mul_f32 v%d, -v%d, v%d" % (W + 17, CS + 3, e + 3))
            for t in range(3):
                k("v_cvt_pk_bf16_f32 v%d, v%d, v%d" % (F + 4 * t + j, CS + t, SN + t))
            k("v_fma_f32 v%d, -v%d, v%d, v%d" % (W + 16, SN + 3, e + 3, W + 16))
            k("v_fma_f32 v%d, -v%d, v%d, v%d" % (W + 17, SN + 3, e + 2, W + 17))
            k("v_cvt_pk_bf16_f32 v%d, v%d, v%d" % (F + 12 + j, W + 16, W + 17))
        for t in range(3):
            k("v_mfma_f32_16x16x32_bf16 %s, %s, %s, %s" % (vr(VA + 4 * t, 4), vr(F + 4 * t, 4), vr(F + 12, 4), vr(VA + 4 * t, 4) if ks else "0"))
        if ks == opt.get("pub_ks", 1):
            k("s_waitcnt vmcnt(0)")
            k("v_mov_b32 v%d, %d" % (W + 20, SYNC + 32)); k("v_mov_b32 v%d, 1" % (W + 21))
            k("s_mov_b64 exec, 1")
            k.lg("ds_add_rtn_u32 v%d, v%d, v%d" % (W + 22, W + 20, W + 21))
            k("s_mov_b64 exec, -1")
            k("s_lshl_b32 s70, 1, s%d" % S_RB); k("s_lshl_b32 s71, 0x10000, s%d" % S_HP); k("s_or_b32 s70, s70, s71"); k("s_mov_b32 s71, 0")
            k("v_add_u32 v%d, 1, v%d" % (W + 23, V_OLD))
            k("s_waitcnt lgkmcnt(0)")
            k("v_readfirstlane_b32 s60, v%d" % (W + 22))
            Ls = k.lbl("nopub")
            k("s_cmp_lg_u32 s60, 3")
            k("s_cbranch_scc1 %s" % Ls)
            k("s_mov_b64 exec, s[70:71]")
            k("buffer_store_dword v%d, v%d, s[%d:%d], 0 offen sc1" % (W + 23, V_FA, R_WS, R_WS + 3))
            k("s_mov_b64 exec, -1")
            k.label(Ls)
        if ks == opt.get("clr_ks", 1):
            clear_oy()
    k.stamp()
    if opt.get("exp"):
        k.dump_stamps(32)
        return
    k("s_waitcnt vmcnt(0)")
    k("v_mov_b32 v%d, %d" % (W + 20, SYNC + 40)); k("v_mov_b32 v%d, 1" % (W + 21))
    k("s_mov_b64 exec, 1")
    k.lg("ds_add_u32 v%d, v%d" % (W + 20, W + 21))
    k("s_mov_b64 exec, -1")
    LN1 = k.lbl("nh1"); LJ = k.lbl("nhj")
    k("s_add_u32 s60, s%d, %d" % (S_PB, KBO + 1024))
    k("v_add_u32 v%d, s60, v7" % (T + 1))
    k("s_cmp_eq_u32 s%d, 1" % S_NH)
    k("s_cbranch_scc1 %s" % LN1)
    k.wait_words(V_PAR, 0, 1, 1, PT)
    sq = [k.lg("ds_read_b128 %s, v%d offset:%d" % (vr(W + 4 * t, 4), T + 1, 1024 * t)) for t in range(3)]
    k("v_and_b32 v%d, 15, v%d" % (T + 2, V_LANE))
    k("v_lshrrev_b32 v%d, 4, v%d" % (T + 3, V_LANE))
    k("s_add_u32 s60, s%d, %d" % (S_PB, KBO))
    k("v_lshlrev_b32 v%d, 5, v%d" % (T + 2, T + 2))
    k("v_add_u32 v%d, s60, v%d" % (T + 2, T + 2))
    k("v_lshl_add_u32 v%d, v%d, 3, v%d" % (T + 4, T + 3, T + 2))
    k("v_lshl_add_u32 v%d, v%d, 9, v%d" % (T + 5, T + 3, T + 2))
    k("v_add_u32 v%d, %d, v%d" % (T + 5, 120 + 1024 - 4, T + 5))
    k("v_lshl_add_u32 v%d, v%d, 10, v%d" % (T + 6, T + 3, T + 2))
    k("v_add_u32 v%d, %d, v%d" % (T + 6, 120 - 8, T + 6))
    k("v_lshlrev_b32 v%d, 2, v%d" % (T + 7, V_LANE))
    k("v_add_u32 v%d, s60, v%d" % (T + 7, T + 7))
    k("v_mov_b32 v%d, 0" % (T + 8))
    for t in range(3):
        k.wait_lg(sq[t])
        for i in range(4):
            k("v_add_f32 v%d, v%d, v%d" % (VA + 4 * t + i, VA + 4 * t + i, W + 4 * t + i))
    Q = T + 16
    V0, V1, V2 = VA, VA + 4, VA + 8
    pk = [(V2, V2), (V2, V2 + 1), (V2 + 1, V2 + 1), (V2 + 2, V2 + 2), (V2 + 2, V2 + 3), (V2 + 3, V2 + 3),
          (V1, V1), (V1 + 1, V1 + 2), (V0, V0 + 1), (V0 + 2, V0 + 3), (V1 + 3, V1 + 3)]
    for i, (a, b) in enumerate(pk):
        k("v_cvt_pk_bf16_f32 v%d, v%d, v%d" % (Q + i, a, b))
    aa, ab, bb, cc, cd, dd = [Q + i for i in range(6)]
    k("s_mov_b32 s70, 0"); k("s_mov_b32 s71, -1")
    k("s_mov_b64 exec, s[70:71]")
    for run, (x, xy, y) in enumerate(((aa, ab, bb), (cc, cd, dd))):
        o = 128 * run
        for i, (p, q) in enumerate(((x, x), (x, x), (xy, y), (y, y))):
            k.lg("ds_write2_b32 v%d, v%d, v%d offset0:%d offset1:%d" % (T + 6, p, q, o + 2 * i, o + 2 * i + 1))
    k("s_mov_b32 exec_lo, -1"); k("s_mov_b32 exec_hi, 0")
    for i, (p, q) in enumerate(((aa, aa), (ab, bb), (cc, cc), (cd, dd))):
        k.lg("ds_write2_b32 v%d, v%d, v%d offset0:%d offset1:%d" % (T + 5, p, q, 2 * i, 2 * i + 1))
    k("s_mov_b64 exec, -1")
    k.lg("ds_write_b64 v%d, %s offset:%d" % (T + 4, vr(Q + 6, 2), 120 + 512))
    k.lg("ds_write_b64 v%d, %s offset:%d" % (T + 4, vr(Q + 8, 2), 120))
    k("s_mov_b64 exec, 0x8000")
    k.lg("ds_write_b32 v%d, v%d offset:%d" % (T + 2, Q + 10, 120 + 4088 - 480))
    k.lg("ds_write_b32 v%d, v%d offset:%d" % (T + 2, Q + 10, 120 + 4092 - 480))
    k("s_mov_b64 exec, 0x3fffffff")
    k.lg("ds_write_b32 v%d, v%d" % (T + 7, T + 8))
    k("s_mov_b64 exec, -1")
    k("s_branch %s" % LJ)
    k.label(LN1)
    k.settle(8)
    for t in range(3):
        k.lg("ds_write_b128 v%d, %s offset:%d" % (T + 1, vr(VA + 4 * t, 4), 1024 * t))
    k.signal(V_OWN, T + 8, 1)
    LW3 = k.lbl("w3"); LRD = k.lbl("rdy")
    k("s_cmp_eq_u32 s%d, 3" % bw)
    k("s_cbranch_scc1 %s" % LW3)
    LP = k.lbl("poll"); LPD = k.lbl("polld")
    k("s_mov_b32 s61, 0")
    k("s_mov_b32 exec_lo, -1"); k("s_mov_b32 exec_hi, 0")
    k.label(LP)
    k("buffer_load_dword v%d, v%d, s[%d:%d], 0 offen sc1" % (T + 8, V_FA, R_WS, R_WS + 3))
    k("s_waitcnt vmcnt(0)")
    k("v_cmp_eq_u32 vcc, v%d, v%d" % (T + 8, V_OLD))
    k("s_nop 1")
    k("s_cbranch_vccz %s" % LPD)
    k("s_add_u32 s61, s61, 1")
    k("s_cmp_lt_u32 s61, %d" % LIM_GLB)
    k("s_cbranch_scc1 %s" % LP)
    k.label(LPD)
    k("s_mov_b64 exec, -1")
    k("v_lshlrev_b32 v%d, 2, v%d" % (T + 11, V_LANE))
    k("v_add_u32 v%d, %d, v%d" % (T + 11, OLDS, T + 11))
    k.lg("ds_write_b32 v%d, v%d" % (T + 11, V_OLD))
    k("s_mov_b64 exec, 1")
    k("v_mov_b32 v%d, %d" % (T + 9, SYNC + 36)); k("v_mov_b32 v%d, 1" % (T + 10))
    k.lg("ds_write_b32 v%d, v%d" % (T + 9, T + 10))
    k("s_mov_b64 exec, -1")
    k.wait_words(V_SY, 24, 1, 4, PT)
    k("s_mov_b32 s71, s70")
    k("s_mov_b64 exec, s[70:71]")
    k("v_add_u32 v%d, 2, v%d" % (T + 8, V_OLD))
    k("buffer_store_dword v%d, v%d, s[%d:%d], 0 offen sc1" % (T + 8, V_FA, R_WS, R_WS + 3))
    k("s_mov_b64 exec, -1")
    k("s_branch %s" % LRD)
    k.label(LW3)
    k.wait_words(V_SY, 20, 1, 1, PT)
    k.label(LRD)
    k.stamp()
    k("s_lshl_b32 s60, s%d, 12" % S_D)
    k.srd(R_A, S_WS, 4096, off_sgpr=60, off_imm=WS_UT)
    UL = 64
    k.nvm = 0
    sq = []
    for rd in range(4):
        k.vm("buffer_load_dwordx4 %s, v7, s[%d:%d], 0 offen offset:%d sc1" % (vr(UL + 8 * rd, 4), R_A, R_A + 3, 1024 * rd))
        if rd < 3:
            sq.append(k.vm("buffer_load_dwordx2 %s, v7, s[%d:%d], 0 offen offset:%d sc1" % (vr(UL + 8 * rd + 4, 2), R_A, R_A + 3, 1024 * rd + 16)))
        else:
            k("s_mov_b32 s60, 16")
            sq.append(k.vm("buffer_load_dwordx2 %s, v7, s[%d:%d], s60 offen offset:%d sc1" % (vr(UL + 8 * rd + 4, 2), R_A, R_A + 3, 1024 * rd)))
    k("v_add_u32 v%d, s%d, v7" % (T + 2, S_PB))
    for j in range(4):
        k("v_mov_b32 v%d, 0" % (T + 4 + j))
    k("s_mov_b64 exec, 0xffffff")
    for c in range(4):
        k.lg("ds_write_b128 v%d, %s offset:%d" % (T + 2, vr(T + 4, 4), c * UCS + 4096))
    k("s_mov_b64 exec, -1")
    for rd in range(4):
        D = UL + 8 * rd
        O = 128 + 16 * (rd % 2)
        k.wait_vm(sq[rd])
        for j in range(5):
            k("v_alignbit_b32 v%d, v%d, v%d, 16" % (O + j, D + j + 1, D + j))
        for j in range(4):
            k("v_mov_b32 v%d, v%d" % (O + 8 + j, D + 1 + j))
            k("v_mov_b32 v%d, v%d" % (O + 12 + j, O + 1 + j))
        k.lg("ds_write_b128 v%d, %s offset:%d" % (T + 2, vr(D, 4), 3 * UCS + 1024 * rd))
        k.lg("ds_write_b128 v%d, %s offset:%d" % (T + 2, vr(O, 4), 2 * UCS + 1024 * rd))
        k.lg("ds_write_b128 v%d, %s offset:%d" % (T + 2, vr(O + 8, 4), 1 * UCS + 1024 * rd))
        k.lg("ds_write_b128 v%d, %s offset:%d" % (T + 2, vr(O + 12, 4), 0 * UCS + 1024 * rd))
    k.label(LJ)
    k.signal(V_OWN, T + 8, 2)
    k("v_and_b32 v%d, 3, v%d" % (T, V_LANE))
    k("v_bfe_u32 v%d, v%d, 2, 2" % (T + 1, V_LANE))
    k("v_and_b32 v%d, 0x30, v%d" % (T + 2, V_LANE))
    k("s_movk_i32 s60, %d" % UCS)
    k("v_mul_lo_u32 v%d, v%d, s60" % (T + 3, T))
    k("v_lshlrev_b32 v%d, 7, v%d" % (T + 1, T + 1))
    k("v_sub_u32 v%d, v%d, v%d" % (T + 3, T + 3, T + 1))
    k("v_add_u32 v%d, v%d, v%d" % (T + 3, T + 3, T + 2))
    k("s_lshl_b32 s61, s%d, 8" % S_NH); k("s_add_u32 s61, s61, s%d" % S_PB)
    k("s_add_u32 s60, s61, 384")
    k("v_add_u32 v%d, s60, v%d" % (T + 3, T + 3))
    k("v_and_b32 v%d, 15, v%d" % (T + 4, V_LANE))
    k("v_lshl_add_u32 v%d, v%d, 3, v%d" % (T + 4, T + 4, T + 2))
    k("s_add_u32 s60, s61, %d" % KBO)
    k("v_add_u32 v%d, s60, v%d" % (T + 4, T + 4))
    UD = 208
    for j in range(2):
        for i in range(4):
            k("v_lshlrev_b32 v%d, 16, v%d" % (T + 8, V_UF + 4 * j + i))
            k("v_and_b32 v%d, 0xffff0000, v%d" % (T + 9, V_UF + 4 * j + i))
            k("v_lshlrev_b32 v%d, 16, v%d" % (T + 10, V_DS + i))
            k("v_and_b32 v%d, 0xffff0000, v%d" % (T + 11, V_DS + i))
            k("v_mul_f32 v%d, v%d, v%d" % (T + 8, T + 8, T + 10))
            k("v_mul_f32 v%d, v%d, v%d" % (T + 9, T + 9, T + 11))
            k("v_cvt_pk_bf16_f32 v%d, v%d, v%d" % (T + 8, T + 8, T + 9))
            k("v_lshlrev_b32 v%d, 16, v%d" % (UD + 8 * j + 2 * i, T + 8))
            k("v_and_b32 v%d, 0xffff0000, v%d" % (UD + 8 * j + 2 * i + 1, T + 8))
    k.wait_words(V_PAR, 0, 1, 2, PT)
    k.stamp()
    if opt.get("dump_k"):
        pass
    AC = 32
    AF = (64, 96); BF = (128, 160)
    def rdfr(ri):
        s = {}
        buf = ri % 2
        for i in range(8):
            s[("A", i)] = k.lg("ds_read_b128 %s, v%d offset:%d" % (vr(AF[buf] + 4 * i, 4), T + 3, 512 * (7 - i) + 64 * ri))
            k.lg("ds_read_b64 %s, v%d offset:%d" % (vr(BF[buf] + 4 * i, 2), T + 4, 512 * i + 64 * ri))
            s[("B", i)] = k.lg("ds_read_b64 %s, v%d offset:%d" % (vr(BF[buf] + 4 * i + 2, 2), T + 4, 512 * i + 64 * ri + 8))
        return s
    cur = rdfr(0)
    touched = set()
    for ri in range(4):
        buf = ri % 2
        pairs = sorted([(a, b) for a in range(8) for b in range(8) if a + b <= 7], key=lambda p: (max(p), p))
        order = []
        rem = pairs[:]
        while rem:
            for idx, p in enumerate(rem):
                if not order or (order[-1][0] + order[-1][1]) != (p[0] + p[1]) or idx == len(rem) - 1:
                    order.append(rem.pop(idx)); break
        nxt = None
        waited = -1
        for n, (a, b) in enumerate(order):
            if n == 12 and ri < 3:
                need = max(cur.values())
                if need > waited:
                    k.wait_lg(need); waited = need
                nxt = rdfr(ri + 1)
            need = max(cur[("A", b)], cur[("B", a)])
            if need > waited:
                k.wait_lg(need); waited = need
            q = a + b
            k("v_mfma_f32_16x16x32_bf16 %s, %s, %s, %s" % (vr(AC + 4 * q, 4), vr(AF[buf] + 4 * b, 4), vr(BF[buf] + 4 * a, 4), vr(AC + 4 * q, 4) if q in touched else "0"))
            touched.add(q)
        cur = nxt
    k.signal(V_OWN, T + 8, 3)
    k.stamp()
    k("s_mul_i32 s60, s%d, %d" % (S_NH, UCS)); k("s_add_u32 s60, s60, s%d" % S_PB)
    k("v_add_u32 v%d, s60, v7" % T)
    k("s_xor_b32 s61, s%d, 1" % S_NH); k("s_mul_i32 s61, s61, %d" % UCS); k("s_add_u32 s61, s61, s%d" % S_PB)
    k("v_add_u32 v%d, s61, v7" % (T + 1))
    k("v_lshlrev_b32 v%d, 3, v%d" % (T + 2, V_LANE))
    k("s_lshl_b32 s60, s%d, 12" % S_D); k("s_lshl_b32 s61, s%d, 11" % S_NH); k("s_add_u32 s60, s60, s61"); k("s_add_u32 s60, s60, %d" % WS_YT)
    k.wait_words(V_PAR, 0, 1, 3, PT)
    L1 = k.lbl("c1"); LJ2 = k.lbl("cj")
    k("s_cmp_eq_u32 s%d, 1" % S_NH)
    k("s_cbranch_scc1 %s" % L1)
    for nh in range(2):
        if nh == 1:
            k.label(L1)
        snd, keep = AC + 16 * (1 - nh), AC + 16 * nh
        for j in range(4):
            k.lg("ds_write_b128 v%d, %s offset:%d" % (T, vr(snd + 4 * j, 4), 1024 * j))
        k.signal(V_OWN, T + 8, 4)
        k.wait_words(V_PAR, 0, 1, 4, PT)
        sq = [k.lg("ds_read_b128 %s, v%d offset:%d" % (vr(64 + 4 * j, 4), T + 1, 1024 * j)) for j in range(4)]
        for j in range(4):
            k.wait_lg(sq[j])
            for i in range(4):
                k("v_add_f32 v%d, v%d, v%d" % (64 + 4 * j + i, 64 + 4 * j + i, keep + 4 * j + i))
        if nh == 0:
            k("s_branch %s" % LJ2)
    k.label(LJ2)
    for j in range(8):
        k("v_cvt_pk_bf16_f32 v%d, v%d, v%d" % (96 + j, 64 + 2 * j, 64 + 2 * j + 1))
    for j in range(8):
        k("v_min_u32 v%d, -2, v%d" % (96 + j, 96 + j))
    for j in range(4):
        k.vm("buffer_store_dwordx2 %s, v%d, s[%d:%d], s60 offen offset:%d sc1" % (vr(96 + 2 * j, 2), T + 2, R_WS, R_WS + 3, 512 * j))
    k.stamp()
    k("v_lshrrev_b32 v%d, 4, v%d" % (T, V_LANE))
    k("v_and_b32 v%d, 15, v%d" % (T + 1, V_LANE))
    k("v_lshlrev_b32 v%d, 12, v%d" % (T + 2, T))
    k("v_lshl_add_u32 v%d, v%d, 4, v%d" % (T + 2, T + 1, T + 2))
    k("s_lshl_b32 s60, s%d, 17" % S_HP); k("s_lshl_b32 s61, s%d, 15" % bw); k("s_add_u32 s60, s60, s61")
    k("s_lshl_b32 s61, s%d, 8" % S_RB); k("s_add_u32 s60, s60, s61"); k("s_add_u32 s60, s60, %d" % WS_YT)
    k("s_add_u32 s61, s60, 16384")
    STG = BREG + 2 * UCS
    k("s_movk_i32 s66, 288")
    k("v_mul_lo_u32 v%d, v%d, s66" % (T + 3, T))
    k("v_lshl_add_u32 v%d, v%d, 4, v%d" % (T + 3, T + 1, T + 3))
    k("s_mul_i32 s66, s%d, %d" % (bw, 8 * 288 + 128)); k("s_add_u32 s66, s66, %d" % STG)
    k("v_add_u32 v%d, s66, v%d" % (T + 3, T + 3))
    k("s_movk_i32 s66, %d" % (8 * 288 + 128))
    k("v_mul_lo_u32 v%d, v%d, s66" % (T + 4, T))
    k("v_bfe_u32 v%d, v%d, 2, 2" % (T + 5, V_LANE))
    k("s_movk_i32 s66, 288")
    k("v_mul_lo_u32 v%d, v%d, s66" % (T + 5, T + 5))
    k("v_add_u32 v%d, v%d, v%d" % (T + 4, T + 4, T + 5))
    k("v_and_b32 v%d, 3, v%d" % (T + 5, V_LANE))
    k("v_lshl_add_u32 v%d, v%d, 3, v%d" % (T + 4, T + 5, T + 4))
    k("s_lshl_b32 s66, s%d, 6" % bw); k("s_add_u32 s66, s66, %d" % STG)
    k("v_add_u32 v%d, s66, v%d" % (T + 4, T + 4))
    k("v_lshlrev_b32 v%d, 11, v%d" % (T + 5, T + 1))
    k("v_lshl_add_u32 v%d, v%d, 4, v%d" % (T + 5, T, T + 5))
    k("s_lshl_b32 s66, s%d, 18" % S_RB); k("s_lshl_b32 s67, s%d, 16" % bw); k("s_add_u32 s66, s66, s67")
    k("s_lshl_b32 s67, s%d, 6" % S_HP); k("s_add_u32 s66, s66, s67"); k("s_add_u32 s66, s66, 1024")
    k("s_add_u32 s67, s66, 32768")
    k.srd(R_D, S_OUT, 2048 * 2048)
    loads = [(64 + 4 * j, 4, ["buffer_load_dwordx4 %s, v%d, s[%d:%d], s%d offen sc1" % (vr(64 + 4 * j, 4), T + 2, R_WS, R_WS + 3, 60 + j)]) for j in range(2)]
    poll_flags(k, V_FA, V_OLD, T + 8, 0x0000ffff)
    k.gather(loads, 72)
    k.stamp()
    k.wait_words(V_SY, 0, 2, 3, PT)
    for j in range(2):
        k.lg("ds_write_b128 v%d, %s offset:%d" % (T + 3, vr(64 + 4 * j, 4), 4 * 288 * j))
    k.signal(V_OWN, T + 8, 5)
    k.wait_words(V_SY, 0, 4, 5, PT)
    sq = []
    for j in range(2):
        for t in range(2):
            sq.append(k.lg("ds_read_b64_tr_b16 %s, v%d offset:%d" % (vr(80 + 4 * j + 2 * t, 2), T + 4, 32 * j + 4 * 288 * t)))
    for j in range(2):
        k.wait_lg(sq[2 * j + 1])
        for i in range(4):
            y = 80 + 4 * j + i
            k("v_lshlrev_b32 v%d, 16, v%d" % (T + 8, y))
            k("v_and_b32 v%d, 0xffff0000, v%d" % (T + 9, y))
            k("v_add_f32 v%d, v%d, v%d" % (T + 8, T + 8, UD + 8 * j + 2 * i))
            k("v_add_f32 v%d, v%d, v%d" % (T + 9, T + 9, UD + 8 * j + 2 * i + 1))
            k("v_cvt_pk_bf16_f32 v%d, v%d, v%d" % (96 + 4 * j + i, T + 8, T + 9))
        k.vm("buffer_store_dwordx4 %s, v%d, s[%d:%d], s%d offen" % (vr(96 + 4 * j, 4), T + 5, R_D, R_D + 3, 66 + j))
    k("s_waitcnt vmcnt(0)")
    k.stamp()
    k.dump_stamps(32)
```

```python
from asmlib import Asm, vr, sr

NAME = "concat_heads__linear_kernel_hedgehog__ssm_conv_s4__prompt_kernel"

WK, WV, WQ = 0, 32768, 65536
BOUNCE = 98304
BREG = 114688
DSTRIDE = 22272
UCS = 4512
KBO = 18048
WPHI = 159232
SYNC = 160256
OLDS = 160512
LDS_TOTAL = 160768
WS_FLAGS = 0
WS_UT = 0x10000
WS_YT = 0x210000
WS_OF = 0x410000
WS_KVP = 0x610000
KVP_STRIDE = 4608
WS_DBG = 0x800000
WS_SIZE = 0x1000000
S_X, S_W, S_WPHI, S_WO, S_U, S_ARE, S_AIM, S_BRE, S_BIM, S_CRE, S_CIM, S_LDT, S_DSK, S_OUT, S_DBG, S_WS = [4 + 2 * i for i in range(16)]
S_WAVE, S_RB, S_HP, S_RW = 36, 37, 38, 39
R_WS = 40
R_A = 44
R_B = 48
R_C = 52
R_D = 56
S_T0 = 60
S_STAMP = 84
OUTF = ["", " sc1", " nt", " sc0 sc1", " sc1 nt"]
LIM_LDS = 200000
LIM_GLB = 20000


class K(Asm):
    def __init__(self, dbg=False):
        super().__init__()
        self.nvm = 0
        self.nlg = 0
        self.uid = 0
        self.dbg = dbg
        self.nstamp = 0
        self.slp = 0
    def lbl(self, base):
        self.uid += 1
        return "L_%s_%d" % (base, self.uid)
    def vm(self, text):
        self(text); self.nvm += 1
        return self.nvm - 1
    def lg(self, text):
        self(text); self.nlg += 1
        return self.nlg - 1
    def wait_vm(self, seq):
        n = self.nvm - 1 - seq
        assert n >= 0
        if n <= 63:
            self("s_waitcnt vmcnt(%d)" % n)
        else:
            raise AssertionError("vmcnt overflow %d" % n)
    def wait_lg(self, seq):
        n = self.nlg - 1 - seq
        assert n >= 0
        self("s_waitcnt lgkmcnt(%d)" % min(n, 15))
    def srd(self, r, ptr, nbytes, off_sgpr=None, off_imm=0):
        if off_sgpr is None and off_imm == 0:
            self("s_mov_b32 s%d, s%d" % (r, ptr)); self("s_mov_b32 s%d, s%d" % (r + 1, ptr + 1))
        else:
            first = True
            for o in ([("s%d" % off_sgpr)] if off_sgpr is not None else []) + ([str(off_imm)] if off_imm else []):
                a, b = (ptr, ptr + 1) if first else (r, r + 1)
                self("s_add_u32 s%d, s%d, %s" % (r, a, o)); self("s_addc_u32 s%d, s%d, 0" % (r + 1, b))
                first = False
        self("s_mov_b32 s%d, %s" % (r + 2, nbytes if isinstance(nbytes, str) else hex(nbytes)))
        self("s_mov_b32 s%d, 0x00020000" % (r + 3))
    def stamp(self):
        if not self.dbg:
            return
        i = self.nstamp; self.nstamp += 1
        assert i < 16
        self("s_memrealtime s[80:81]"); self("s_waitcnt lgkmcnt(0)"); self("s_mov_b32 s%d, s80" % (S_STAMP + i))
    def dump_stamps(self, vt):
        if not self.dbg:
            return
        self("s_lshl_b32 s80, s2, 3"); self("s_add_u32 s80, s80, s%d" % S_WAVE); self("s_lshl_b32 s80, s80, 6")
        self("s_add_u32 s80, s80, %d" % WS_DBG)
        self("v_mov_b32 v%d, s80" % vt)
        self("s_mov_b64 exec, 1")
        for q in range(4):
            for i in range(4):
                self("v_mov_b32 v%d, s%d" % (vt + 4 + i, S_STAMP + 4 * q + i))
            self("buffer_store_dwordx4 %s, v%d, s[%d:%d], 0 offen offset:%d" % (vr(vt + 4, 4), vt, R_WS, R_WS + 3, 16 * q))
            self("s_waitcnt vmcnt(0)")
        self("s_mov_b64 exec, -1")
    def signal(self, vown, vtmp, val):
        self("v_mov_b32 v%d, %d" % (vtmp, val))
        self("s_mov_b64 exec, 1")
        self.lg("ds_write_b32 v%d, v%d" % (vown, vtmp))
        self("s_mov_b64 exec, -1")
    def wait_words(self, vaddr, off, nw, val, vt, first_issued=None):
        L = self.lbl("w"); D = self.lbl("wd")
        self("s_mov_b32 s%d, 0" % (S_T0 + 19))
        if first_issued is None:
            self.label(L)
            self._rdw(vaddr, off, nw, vt)
        self("s_waitcnt lgkmcnt(0)")
        if first_issued is not None:
            pass
        self._chk(nw, vt, val)
        if first_issued is None:
            self("s_cbranch_scc1 %s" % D)
            self("s_add_u32 s%d, s%d, 1" % (S_T0 + 19, S_T0 + 19))
            self("s_cmp_lt_u32 s%d, %d" % (S_T0 + 19, LIM_LDS))
            self("s_cbranch_scc1 %s" % L)
        else:
            self("s_cbranch_scc1 %s" % D)
            self.label(L)
            self._rdw(vaddr, off, nw, vt)
            self("s_waitcnt lgkmcnt(0)")
            self._chk(nw, vt, val)
            self("s_cbranch_scc1 %s" % D)
            self("s_add_u32 s%d, s%d, 1" % (S_T0 + 19, S_T0 + 19))
            self("s_cmp_lt_u32 s%d, %d" % (S_T0 + 19, LIM_LDS))
            self("s_cbranch_scc1 %s" % L)
        self.label(D)
    def wait_words2(self, vaddr, off, nw, val, vt, seq=None):
        if seq is None:
            return self.wait_words(vaddr, off, nw, val, vt)
        L = self.lbl("w"); D = self.lbl("wd")
        self.wait_lg(seq)
        self._chk(nw, vt, val)
        self("s_cbranch_scc1 %s" % D)
        self("s_mov_b32 s%d, 0" % (S_T0 + 19))
        self.label(L)
        n = self.nlg
        self._rdw(vaddr, off, nw, vt)
        self.nlg = n
        self("s_waitcnt lgkmcnt(0)")
        self._chk(nw, vt, val)
        self("s_cbranch_scc1 %s" % D)
        self("s_add_u32 s%d, s%d, 1" % (S_T0 + 19, S_T0 + 19))
        self("s_cmp_lt_u32 s%d, %d" % (S_T0 + 19, LIM_LDS))
        self("s_cbranch_scc1 %s" % L)
        self.label(D)
    def _rdw(self, vaddr, off, nw, vt):
        op = {1: "ds_read_b32", 2: "ds_read_b64", 4: "ds_read_b128"}[nw]
        return self.lg("%s %s, v%d offset:%d" % (op, vr(vt, nw), vaddr, off))
    def _chk(self, nw, vt, val):
        if nw == 4:
            self("v_min3_u32 v%d, v%d, v%d, v%d" % (vt, vt, vt + 1, vt + 2))
            self("v_min_u32 v%d, v%d, v%d" % (vt, vt, vt + 3))
        elif nw == 2:
            self("v_min_u32 v%d, v%d, v%d" % (vt, vt, vt + 1))
        self("v_readfirstlane_b32 s%d, v%d" % (S_T0 + 18, vt))
        self("s_cmp_ge_u32 s%d, %d" % (S_T0 + 18, val))

    def gather(self, loads, vt, between=None):
        n = len(loads)
        SP, SI, ST = S_T0 + 17, S_T0 + 16, S_T0 + 15
        L = self.lbl("g"); D = self.lbl("gd")
        self("s_mov_b32 s%d, %d" % (SP, (1 << n) - 1))
        self("s_mov_b32 s%d, 0" % SI)
        self.label(L)
        for p, (dst, nr, txt) in enumerate(loads):
            sk = self.lbl("gs")
            self("s_bitcmp1_b32 s%d, %d" % (SP, p))
            self("s_cbranch_scc0 %s" % sk)
            for t in txt:
                self(t)
            self.label(sk)
        self("s_waitcnt vmcnt(0)")
        for p, (dst, nr, txt) in enumerate(loads):
            if nr == 4:
                self("v_max3_u32 v%d, v%d, v%d, v%d" % (vt + p, dst, dst + 1, dst + 2))
                self("v_max_u32 v%d, v%d, v%d" % (vt + p, vt + p, dst + 3))
            elif nr == 2:
                self("v_max_u32 v%d, v%d, v%d" % (vt + p, dst, dst + 1))
        T = vt + n
        idx = list(range(n))
        if n == 1:
            self("v_mov_b32 v%d, v%d" % (T, vt))
        elif n == 2:
            self("v_max_u32 v%d, v%d, v%d" % (T, vt, vt + 1))
        else:
            self("v_max3_u32 v%d, v%d, v%d, v%d" % (T, vt, vt + 1, vt + 2))
            i = 3
            while i < n:
                if i + 1 < n:
                    self("v_max3_u32 v%d, v%d, v%d, v%d" % (T, T, vt + i, vt + i + 1)); i += 2
                else:
                    self("v_max_u32 v%d, v%d, v%d" % (T, T, vt + i)); i += 1
        self("v_cmp_eq_u32 vcc, -1, v%d" % T)
        self("s_nop 1")
        self("s_cbranch_vccz %s" % D)
        self("s_mov_b32 s%d, 0" % SP)
        for p in range(n):
            self("v_cmp_eq_u32 vcc, -1, v%d" % (vt + p))
            self("s_nop 1")
            self("s_cmp_lg_u64 vcc, 0")
            self("s_cselect_b32 s%d, %d, 0" % (ST, 1 << p))
            self("s_or_b32 s%d, s%d, s%d" % (SP, SP, ST))
        if self.slp:
            self("s_sleep %d" % self.slp)
        self("s_add_u32 s%d, s%d, 1" % (SI, SI))
        self("s_cmp_lt_u32 s%d, %d" % (SI, LIM_GLB))
        self("s_cbranch_scc1 %s" % L)
        self.label(D)


def flag_addr(k, va, T):
    k("v_and_b32 v%d, 15, v1" % T)
    k("v_lshlrev_b32 v%d, 2, v%d" % (T, T))
    k("s_lshl_b32 s60, s%d, 8" % S_HP)
    k("s_lshl_b32 s61, s%d, 8" % S_RB); k("s_add_u32 s61, s61, 4096")
    k("v_mov_b32 v%d, s60" % (T + 1)); k("v_mov_b32 v%d, s61" % (T + 2))
    k("s_mov_b32 vcc_lo, 0xffff"); k("s_mov_b32 vcc_hi, 0xffff")
    k("v_cndmask_b32 v%d, v%d, v%d, vcc" % (va, T + 2, T + 1))
    k("v_add_u32 v%d, v%d, v%d" % (va, va, T))
    k("v_lshrrev_b32 v%d, 5, v1" % T)
    k("v_lshl_add_u32 v%d, v%d, 13, v%d" % (va, T, va))


def poll_flags(k, va, vold, vt, hi_mask, issued=False):
    LP = k.lbl("pf"); LD = k.lbl("pfd"); LC = k.lbl("pfc")
    k("s_mov_b32 s%d, 0" % (S_T0 + 19))
    k("s_mov_b32 exec_lo, 0"); k("s_mov_b32 exec_hi, 0x%x" % hi_mask)
    if issued is not False:
        k("s_waitcnt vmcnt(%d)" % issued)
        k("s_branch %s" % LC)
    k.label(LP)
    k("buffer_load_dword v%d, v%d, s[%d:%d], 0 offen sc1" % (vt, va, R_WS, R_WS + 3))
    k("s_waitcnt vmcnt(0)")
    k.label(LC)
    k("v_cmp_eq_u32 vcc, v%d, v%d" % (vt, vold))
    k("s_nop 1")
    k("s_cbranch_vccz %s" % LD)
    if k.slp:
        k("s_sleep %d" % k.slp)
    k("s_add_u32 s%d, s%d, 1" % (S_T0 + 19, S_T0 + 19))
    k("s_cmp_lt_u32 s%d, %d" % (S_T0 + 19, LIM_GLB))
    k("s_cbranch_scc1 %s" % LP)
    k.label(LD)
    k("s_mov_b64 exec, -1")


def wg_map(k, mp):
    if mp == 3:
        k("s_and_b32 s60, s2, 7"); k("s_lshl_b32 s60, s60, 1"); k("s_bfe_u32 s61, s2, 0x10003"); k("s_add_u32 s%d, s60, s61" % S_RB)
        k("s_lshr_b32 s%d, s2, 4" % S_HP)
        return
    if mp == 4:
        k("s_and_b32 s60, s2, 1"); k("s_lshl_b32 s60, s60, 3"); k("s_bfe_u32 s61, s2, 0x30003"); k("s_add_u32 s%d, s60, s61" % S_RB)
        k("s_bfe_u32 s60, s2, 0x20001"); k("s_lshl_b32 s60, s60, 2"); k("s_lshr_b32 s61, s2, 6"); k("s_add_u32 s%d, s60, s61" % S_HP)
        return
    k("s_and_b32 s60, s2, 3"); k("s_lshl_b32 s60, s60, 2"); k("s_bfe_u32 s61, s2, 0x20003"); k("s_add_u32 s%d, s60, s61" % S_RB)
    k("s_bfe_u32 s60, s2, 0x10002")
    if mp == 0:
        k("s_lshl_b32 s60, s60, 3"); k("s_lshr_b32 s61, s2, 5"); k("s_add_u32 s%d, s60, s61" % S_HP)
    elif mp == 1:
        k("s_lshl_b32 s60, s60, 1"); k("s_lshr_b32 s61, s2, 6"); k("s_lshl_b32 s61, s61, 2"); k("s_add_u32 s60, s60, s61")
        k("s_bfe_u32 s61, s2, 0x10005"); k("s_add_u32 s%d, s60, s61" % S_HP)
    elif mp == 2:
        k("s_lshl_b32 s60, s60, 2"); k("s_lshr_b32 s61, s2, 7"); k("s_lshl_b32 s61, s61, 3"); k("s_add_u32 s60, s60, s61")
        k("s_bfe_u32 s61, s2, 0x20005"); k("s_add_u32 s%d, s60, s61" % S_HP)
```

```python
from common import *

V_LANE = 1
V_XO, V_WO_, V_BW0, V_BW1 = 2, 3, 4, 5
V_BR = 6
V_TR, V_TRQ = 10, 11
V_SY, V_OWN = 12, 13
V_T = 16
V_WF = 32
V_AQ, V_AK, V_AV, V_P = 64, 80, 96, 112
V_X = 128
S_L2E = 62
V_XI = 112


def softmax(k, P, E, out, T, round_p):
    if round_p:
        for j in range(8):
            k("v_cvt_pk_bf16_f32 v%d, v%d, v%d" % (E + j, P + 2 * j, P + 2 * j + 1))
        for j in range(8):
            k("v_lshlrev_b32 v%d, 16, v%d" % (P + 2 * j, E + j))
            k("v_and_b32 v%d, 0xffff0000, v%d" % (P + 2 * j + 1, E + j))
    mx0, mx1, mn0, mn1, a, b, c, d = T, T + 1, T + 2, T + 3, T + 4, T + 5, T + 6, T + 7
    for op, dst in (("max", (mx0, mx1)), ("min", (mn0, mn1))):
        for t in range(2):
            p = P + 8 * t
            k("v_%s3_f32 v%d, v%d, v%d, v%d" % (op, dst[t], p, p + 1, p + 2))
        for t in range(2):
            p = P + 8 * t
            k("v_%s3_f32 v%d, v%d, v%d, v%d" % (op, dst[t], dst[t], p + 3, p + 4))
        for t in range(2):
            p = P + 8 * t
            k("v_%s3_f32 v%d, v%d, v%d, v%d" % (op, dst[t], dst[t], p + 5, p + 6))
        for t in range(2):
            p = P + 8 * t
            k("v_%s_f32 v%d, v%d, v%d" % (op, dst[t], dst[t], p + 7))
    k("v_permlane32_swap_b32 v%d, v%d" % (mx0, mx1))
    k("v_permlane32_swap_b32 v%d, v%d" % (mn0, mn1))
    k("v_max_f32 v%d, v%d, v%d" % (a, mx0, mx1))
    k("v_min_f32 v%d, v%d, v%d" % (c, mn0, mn1))
    k("v_mul_f32 v%d, s%d, v%d" % (a, S_L2E, a))
    k("v_mul_f32 v%d, s%d, v%d" % (c, S_L2E, c))
    k("v_mov_b32 v%d, v%d" % (b, a))
    k("v_mov_b32 v%d, v%d" % (d, c))
    k("v_permlane32_swap_b32 v%d, v%d" % (a, b))
    k("v_permlane32_swap_b32 v%d, v%d" % (c, d))
    mxl = (a, b); mnl = (c, d)
    for i in range(16):
        t = i // 8
        k("v_fma_f32 v%d, v%d, s%d, -v%d" % (E + i, P + i, S_L2E, mxl[t]))
        k("v_fma_f32 v%d, -v%d, s%d, v%d" % (E + 16 + i, P + i, S_L2E, mnl[t]))
    for i in range(32):
        k("v_exp_f32 v%d, v%d" % (E + i, E + i))
    S = [[T + 8, T + 9], [T + 10, T + 11]]
    for sg in range(2):
        for t in range(2):
            e = E + 16 * sg + 8 * t
            k("v_add_f32 v%d, v%d, v%d" % (S[sg][t], e, e + 1))
    for j in range(2, 8):
        for sg in range(2):
            for t in range(2):
                e = E + 16 * sg + 8 * t
                k("v_add_f32 v%d, v%d, v%d" % (S[sg][t], S[sg][t], e + j))
    for sg in range(2):
        k("v_permlane32_swap_b32 v%d, v%d" % (S[sg][0], S[sg][1]))
    R = [[T, T + 1], [T + 2, T + 3]]
    for sg in range(2):
        k("v_add_f32 v%d, v%d, v%d" % (R[sg][0], S[sg][0], S[sg][1]))
    for sg in range(2):
        k("v_rcp_f32 v%d, v%d" % (R[sg][0], R[sg][0]))
    for sg in range(2):
        k("v_mov_b32 v%d, v%d" % (R[sg][1], R[sg][0]))
    for sg in range(2):
        k("v_permlane32_swap_b32 v%d, v%d" % (R[sg][0], R[sg][1]))
    for sg in range(2):
        for i in range(16):
            k("v_mul_f32 v%d, v%d, v%d" % (E + 16 * sg + i, E + 16 * sg + i, R[sg][i // 8]))
    for t in range(2):
        for sg in range(2):
            for j in range(4):
                e = E + 16 * sg + 8 * t + 2 * j
                k("v_cvt_pk_bf16_f32 v%d, v%d, v%d" % (out + (2 * t + sg) * 4 + j, e, e + 1))


Q8 = "q0 q1 q2 q3 q4 q5 q6 q7"
SCHEDS = {
    0: dict(order="w0 w1 w2 w3 x0 x1 w4 w5 w6 w7 x2 x3 x4 x5 x6 p x7 " + Q8, nup=28,
            ev={"pro": "s1:w3 w1", 0: "L,,L,,L,,L,", 1: "s2:w7 L,,L,,L,,L,", 2: "L,,L,,L,p,L,", 3: "w2 L,,L,,L,,L,L", 4: "s3:x4 L,,L,,L,,L,",
                5: "L,,L,,L,,L,", 6: "L,,L,,L,,L,", 7: ",,,,,p,,", "epi": "w3"}),
    1: dict(order="w0 w1 w2 w3 x0 x1 w4 w5 w6 w7 x2 x3 x4 x5 x6 p x7 " + Q8, nup=24,
            ev={"pro": "s1:w3 w1", 0: "L L,L,L L,L,L L,L,L L,L", 1: "s2:w7 L,,L,,L,,L,", 2: "L,,L,,L,p,L,", 3: "w2 L,,L,,L,,L,L", 4: "s3:x4 L,,L,,L,,L,",
                5: "L,,L,,L,,L,", 6: "L,,L,,L,,L,", 7: ",,,,,p,,", "epi": "w3"}),
    2: dict(order="w0 w1 w2 w3 x0 x1 w4 w5 w6 w7 x2 x3 x4 x5 x6 p x7 " + Q8, nup=24,
            ev={"pro": "s1:w3 w1", 0: "L L,L,L L,L,L L,L,L L,L", 1: "s2:w7 L,L,L,L,L,L,L,L", 2: "L,L,L,,L,p,L,", 3: "w2 L,,L,,L,,L,", 4: "s3:x4 L,,L,,L,,L,",
                5: "L,,L,,L,,L,", 6: "L,,L,,L,,L,", 7: ",,,,,p,,", "epi": "w3"}),
    3: dict(order="w0 w1 w2 w3 x0 x1 x2 w4 w5 w6 w7 x3 x4 x5 x6 p x7 " + Q8, nup=20,
            ev={"pro": "s1:w3 w1", 0: "L,L,L,L,L,L,L,L", 1: "L,L,L,L,L,L,L,L", 2: "s2:w7 L,L,L,L,L,p L,L,L", 3: "w2 L,L,L,,L,,L,", 4: "s3:x4 L,,L,,L,,L,",
                5: "L,,L,,L,,L,", 6: "L,,L,,L,,L,", 7: ",,,,,p,,", "epi": "w3"}),
    4: dict(order="w0 w1 x0 x1 w2 w3 x2 w4 w5 x3 w6 w7 x4 x5 x6 p x7 " + Q8, nup=20,
            ev={"pro": "s1:w1 w1", 0: "L,L,L,L s2:w3,L,L,L,p L", 1: "w2 L,L,L,L,L,L,L,L", 2: "s3:w5 L,L,L,L,L,p L,L,L", 3: "w3 s4:w7 L,L,L,,L,,L,", 4: "s5:x4 L,,L,,L,p,L,",
                5: "w4 L,,L,,L,,L,", 6: "L,,L,,L,,L,", 7: ",,,,,p,,", "epi": "w5"}),
    5: dict(order="w0 w1 x0 x1 w2 w3 x2 w4 w5 x3 w6 w7 x4 x5 x6 p x7 " + Q8, nup=12,
            ev={"pro": "s1:w1 w1", -1: "L,L,L,L,L,L,L,L", 0: "L,L,L,L,L,L s2:w3,L,p L", 1: "w2 L,L,L,L,L,L,L,L", 2: "s3:w5 L,L,L,L,L,p L,L,L", 3: "w3 s4:w7 L,L,L,,L,,L,", 4: "s5:x4 L,,L,,L,p,L,",
                5: "w4 L,,L,,L,,L,", 6: "L,,L,,L,,L,", 7: ",,,,,p,,", "epi": "w5"}),
    6: dict(order="w0 x0 w1 x1 w2 x2 w3 x3 w4 x4 w5 x5 w6 x6 w7 p x7 " + Q8, nup=12,
            ev={"pro": "s1:w0 w1", -1: "L,L,L,L,L,L s2:w1,,p", 0: "w2 L,L,L,L,L,L s3:w2,,p", 1: "w3 L,L,L,L,L,L s4:w3,,p", 2: "w4 L,L,L,L,L,L s5:w4,,p", 3: "w5 L,L,L,L,L,L s6:w5,,p",
                4: "w6 L,L,L,L,L,L s7:w6,L,p", 5: "w7 L,,L,,L,s8:w7,L,p", 6: "w8 L,,L,,L,,L,", 7: ",,,,,,,"}),
    7: dict(order="w0 x0 w1 x1 w2 x2 w3 x3 w4 x4 w5 x5 w6 x6 w7 p x7 " + Q8, nup=18,
            ev={"pro": "s1:w0 w1", -1: "L,L,L,L,L,L s2:w1,,p", 0: "w2 L,L,L,L,L,L s3:w2,,p", 1: "w3 L,L,L,L,L,L s4:w3,,p", 2: "w4 L,L,L,L,L,L s5:w4,,p", 3: "w5 L,L,L,L,L,L s6:w5,L,p",
                4: "w6 L,,L,,L,s7:w6,L,p", 5: "w7 L,,L,,L,s8:w7,L,p", 6: "w8 L,,L,,L,,L,", 7: ",,,,,,,"}),
}


def role_a(k, opt):
    T = V_T
    aw = S_RW
    DPPM = opt.get("dpp", 0xff)
    V_XD = 14
    k("s_lshl_b32 s60, s%d, 6" % S_HP)
    k("s_sub_u32 s61, %d, s60" % (512 * 3072))
    k.srd(R_B, S_W, "s61", off_sgpr=60)
    k("v_lshrrev_b32 v%d, 2, v%d" % (T + 2, V_LANE))
    k("v_and_b32 v%d, 3, v%d" % (T + 3, V_LANE))
    k("s_movk_i32 s60, 3072")
    k("v_mul_lo_u32 v%d, v%d, s60" % (V_WO_, T + 2))
    k("v_lshl_add_u32 v%d, v%d, 4, v%d" % (V_WO_, T + 3, V_WO_))
    k("s_mul_i32 s66, s%d, %d" % (aw, 16 * 3072))
    k("s_lshl_b32 s67, s%d, 10" % aw)
    k("s_lshl_b32 s63, s%d, 1" % S_RB); k("s_add_u32 s63, s63, s%d" % S_HP)
    if not opt.get("rot", 1):
        k("s_mov_b32 s63, 0")
    last = {}
    def micro(item):
        kind, p = item
        out = []
        if kind in ("w", "q"):
            parts = ((WK, 1024), (WV, 2048)) if kind == "w" else ((WQ, 0),)
            for n, (lds, go) in enumerate(parts):
                def f(n=n, lds=lds, go=go):
                    if n == 0:
                        k("s_add_u32 s64, s63, %d" % p); k("s_and_b32 s64, s64, 7")
                        k("s_mul_i32 s65, s64, %d" % (64 * 3072)); k("s_add_u32 s65, s65, s66")
                    if go:
                        k("s_add_u32 s68, s65, %d" % go)
                    k("s_add_u32 m0, s67, %d" % (lds + p * 4096))
                    last[item] = k.vm("buffer_load_dwordx4 v%d, s[%d:%d], s%d offen lds" % (V_WO_, R_B, R_B + 3, 68 if go else 65))
                out.append(f)
        elif kind == "x":
            for i in range(4):
                def f(i=i):
                    if i == 0:
                        k("s_add_u32 s64, s63, %d" % p); k("s_and_b32 s64, s64, 7"); k("s_lshl_b32 s64, s64, 7")
                    last[item] = k.vm("buffer_load_dwordx4 %s, v%d, s[%d:%d], s64 offen offset:%d" % (vr(V_X + 16 * p + 4 * i, 4), V_XD, R_A, R_A + 3, 1024 * i))
                out.append(f)
        elif kind == "phi":
            def f():
                k("s_mov_b32 m0, %d" % WPHI)
                last[item] = k.vm("buffer_load_dwordx4 v%d, s[%d:%d], 0 offen lds" % (15, R_C, R_C + 3))
            out.append(f)
        return out
    SCH = SCHEDS[opt.get("sch", 0)]
    order = [(s[0] if s[0] != "p" else "phi", int(s[1:]) if s[0] != "p" else 0) for s in SCH["order"].split()]
    mq = [f for it in order for f in micro(it)]
    NW0 = 0
    while order[NW0][0] == "w":
        NW0 += 1
    NUP = opt.get("nup", SCH["nup"])
    for f in mq[:2 * NW0]:
        f()
    k("s_lshl_b32 s60, s%d, 17" % S_RB); k("s_lshl_b32 s61, s%d, 15" % aw); k("s_add_u32 s60, s60, s61")
    k.srd(R_A, S_X, 32768, off_sgpr=60)
    k("v_lshrrev_b32 v%d, 5, v%d" % (T + 7, V_LANE))
    k("v_and_b32 v%d, 28, v%d" % (V_XD, V_LANE))
    k("v_lshlrev_b32 v%d, 10, v%d" % (V_XD, V_XD))
    k("v_lshl_add_u32 v%d, v%d, 6, v%d" % (V_XD, T + 7, V_XD))
    k("v_lshl_add_u32 v%d, v%d, 4, v%d" % (V_XD, T + 3, V_XD))
    if opt.get("xpat"):
        k("v_lshrrev_b32 v%d, 3, v%d" % (T, V_LANE)); k("v_and_b32 v%d, 7, v%d" % (T + 1, V_LANE))
        k("v_lshlrev_b32 v%d, 12, v%d" % (V_XD, T)); k("v_lshl_add_u32 v%d, v%d, 4, v%d" % (V_XD, T + 1, V_XD))
    k("s_lshl_b32 s60, s%d, 10" % S_HP)
    k.srd(R_C, S_WPHI, 1024, off_sgpr=60)
    k("v_lshlrev_b32 v15, 4, v%d" % V_LANE)
    for f in mq[2 * NW0:NUP]:
        f()
    rest = mq[NUP:]
    k("v_lshrrev_b32 v%d, 4, v%d" % (T + 4, V_LANE))
    k("v_bfe_u32 v%d, v%d, 2, 2" % (T + 9, V_LANE))
    k("v_lshl_add_u32 v%d, v%d, 5, v%d" % (T + 10, T + 7, T + 9))
    k("v_and_b32 v%d, 1, v%d" % (T + 11, T + 4))
    k("v_lshlrev_b32 v%d, 6, v%d" % (V_TR, T + 10))
    k("v_lshl_add_u32 v%d, v%d, 5, v%d" % (V_TR, T + 11, V_TR))
    k("v_lshl_add_u32 v%d, v%d, 3, v%d" % (V_TR, T + 3, V_TR))
    k("v_add_u32 v%d, 0x10000, v%d" % (V_TRQ, V_TR))
    k("v_mov_b32 v%d, %d" % (V_SY, SYNC))
    k("s_lshl_b32 s60, s%d, 2" % aw)
    k("s_add_u32 s60, s60, %d" % SYNC)
    k("v_mov_b32 v%d, s60" % V_OWN)
    k("s_mov_b32 s%d, 0x3fb8aa3b" % S_L2E)
    k("s_mov_b32 s70, 0x55555555"); k("s_mov_b32 s71, 0x55555555")
    k("s_mov_b32 s72, 0x33333333"); k("s_mov_b32 s73, 0x33333333")
    if opt.get("aprio", 0):
        k("s_setprio %d" % opt.get("aprio", 0))
    k.stamp()
    PT = T + 12
    if opt.get("exp") == 2:
        k("s_waitcnt vmcnt(0)")
        k.stamp()
        k("s_barrier")
        k.stamp()
        k("s_memtime s[74:75]")
    def wfreg(buf, ks):
        return (32 + 8 * ks) if buf == 0 else (64 + 8 * ks if ks < 2 else 112 + 8 * (ks - 2))
    def xreg(c, j):
        if DPPM >> c & 1:
            j = (0, 2, 1, 3)[j]
        return V_X + 16 * c + 4 * j
    def arrive(c):
        k.wait_vm(last[("x", c)])
        if opt.get("exp") == 1:
            k.stamp()
    def dp(c, g, half):
        R = [V_X + 16 * c + 4 * i for i in range(4)]
        t0, t2 = T + 4, T + 8
        def cnd(d, a, b, qp):
            for w in range(4):
                k("v_cndmask_b32_dpp v%d, v%d, v%d, vcc quad_perm:%s row_mask:0xf bank_mask:0xf" % (d + w, a + w, b + w, qp))
        tab = [("s_mov_b64 vcc, s[70:71]", (t0, R[1], R[0]), (t2, R[3], R[2]), "[0,0,2,2]"),
               ("s_not_b64 vcc, s[70:71]", (R[1], R[0], R[1]), (R[3], R[2], R[3]), "[1,1,3,3]"),
               ("s_mov_b64 vcc, s[72:73]", (R[0], t2, t0), (R[2], R[3], R[1]), "[0,1,0,1]"),
               ("s_not_b64 vcc, s[72:73]", (R[3], R[1], R[3]), (R[1], t0, t2), "[2,3,2,3]")][g]
        if half == 0:
            if g == 0:
                arrive(c)
            k(tab[0])
        cnd(*tab[1 + half], tab[3])
    wr = {}
    def tr(c, n):
        ks, part, t = n // 4, (n // 2) % 2, n % 2
        off = (WK, WV)[part] + c * 4096 + ks * 512 + 256 * t
        wr[(c, n)] = k.lg("ds_read_b64_tr_b16 %s, v%d offset:%d" % (vr(wfreg(c % 2, ks) + 4 * part + 2 * t, 2), V_TR, off))
    pre = {}
    def event(e):
        nonlocal rest
        if e == "L":
            if rest:
                rest[0](); rest = rest[1:]
        elif e[0] == "s":
            v, it = e[1:].split(":")
            k.wait_vm(last[(it[0], int(it[1:]))])
            k.signal(V_OWN, T, int(v))
        elif e[0] == "p":
            pre["seq"] = k._rdw(V_SY, 0, 4, PT)
        elif e[0] == "w":
            k.wait_words2(V_SY, 0, 4, int(e[1:]), PT, pre.pop("seq", None))
        else:
            raise ValueError(e)
    EV = SCH["ev"]
    for e in EV.get("pro", "").split():
        event(e)
    for m in range(8):
        tr(0, 2 * m); tr(0, 2 * m + 1)
        dp(0, m // 2, m % 2)
        for e in EV.get(-1, ",,,,,,,").split(",")[m].split():
            event(e)
    waited = -1
    for c in range(8):
        for m in range(8):
            ks, part = m // 2, m % 2
            need = wr[(c, 4 * ks + 3)]
            if need > waited:
                waited = need
                k.wait_lg(need)
            acc = (V_AK, V_AV)[part]
            k("v_mfma_f32_32x32x16_bf16 %s, %s, %s, %s" % (vr(acc, 16), vr(wfreg(c % 2, ks) + 4 * part, 4), vr(xreg(c, ks), 4), vr(acc, 16) if (c or ks) else "0"))
            evs = EV.get(c, "........").split(",")[m].split()
            for e in evs:
                if e[0] == "w":
                    event(e)
            if c < 7:
                tr(c + 1, 2 * m); tr(c + 1, 2 * m + 1)
                dp(c + 1, m // 2, m % 2)
            for e in evs:
                if e[0] != "w":
                    event(e)
    for e in EV.get("epi", "").split():
        event(e)
    for f in rest:
        f()
    lastq = last[("q", 7)]
    k.stamp()
    if opt.get("exp") == 2:
        k("s_memtime s[76:77]")
        k("s_waitcnt lgkmcnt(0)")
        k("s_sub_u32 s%d, s76, s74" % (S_STAMP + 12))
    if opt.get("exp"):
        k("s_waitcnt vmcnt(0)")
        k.stamp()
        k.dump_stamps(32)
        return
    VA = T
    k("v_lshrrev_b32 v%d, 5, v%d" % (VA + 1, V_LANE))
    k("v_bfe_u32 v%d, v%d, 2, 2" % (VA + 2, V_LANE))
    k("v_lshl_add_u32 v%d, v%d, 2, v%d" % (VA + 1, VA + 1, VA + 2))
    k("v_bfe_u32 v%d, v%d, 4, 1" % (VA + 2, V_LANE))
    k("v_and_b32 v%d, 3, v%d" % (VA + 3, V_LANE))
    k("v_lshlrev_b32 v%d, 5, v%d" % (VA, VA + 1))
    k("v_lshl_add_u32 v%d, v%d, 9, v%d" % (VA, VA + 2, VA))
    k("v_lshl_add_u32 v%d, v%d, 3, v%d" % (VA, VA + 3, VA))
    k("v_add_u32 v%d, %d, v%d" % (VA, WPHI, VA))
    RAW = 104
    PH0, PH1 = 96, 100
    VB, KB_ = 32, 40
    s_raw0 = k.lg("ds_read_b64_tr_b16 %s, v%d" % (vr(T + 4, 2), VA))
    s_raw1 = k.lg("ds_read_b64_tr_b16 %s, v%d offset:256" % (vr(T + 6, 2), VA))
    VS = T + 8
    k("v_and_b32 v%d, 31, v%d" % (VS, V_LANE))
    k("v_lshrrev_b32 v%d, 5, v%d" % (VS + 1, V_LANE))
    k("v_lshlrev_b32 v%d, 5, v%d" % (VS, VS))
    k("v_lshl_add_u32 v%d, v%d, 4, v%d" % (VS, VS + 1, VS))
    k("s_lshl_b32 s60, s%d, 10" % aw)
    k("v_add_u32 v%d, s60, v%d" % (14, VS))
    k("s_lshl_b32 s60, s%d, 12" % aw); k("s_add_u32 s60, s60, %d" % BOUNCE)
    k("v_add_u32 v%d, s60, v%d" % (15, VS))
    VS = 14
    k("v_cmp_eq_u32 vcc, 0, v%d" % (VA + 2))
    for j in range(8):
        k("v_cvt_pk_bf16_f32 v%d, v%d, v%d" % (KB_ + j, V_AK + 2 * j, V_AK + 2 * j + 1))
    for j in range(8):
        k("v_cvt_pk_bf16_f32 v%d, v%d, v%d" % (VB + j, V_AV + 2 * j, V_AV + 2 * j + 1))
    k.wait_lg(s_raw1)
    for j in range(4):
        k("v_cndmask_b32 v%d, 0, v%d, vcc" % (PH0 + j, T + 4 + j))
        k("v_cndmask_b32 v%d, v%d, 0, vcc" % (PH1 + j, T + 4 + j))
    if opt.get("dump_kv"):
        k("s_lshl_b32 s60, s2, 2"); k("s_add_u32 s60, s60, s%d" % aw); k("s_lshl_b32 s60, s60, 12"); k("s_add_u32 s60, s60, %d" % (WS_DBG + 0x100000))
        k("v_lshlrev_b32 v15, 4, v%d" % V_LANE)
        for j, r in enumerate((KB_, KB_ + 4, VB, VB + 4)):
            k.vm("buffer_store_dwordx4 %s, v15, s[%d:%d], s60 offen offset:%d" % (vr(r, 4), R_WS, R_WS + 3, 1024 * j))
    k("v_mfma_f32_32x32x16_bf16 %s, %s, %s, 0" % (vr(V_P, 16), vr(PH0, 4), vr(KB_, 4)))
    k("v_mfma_f32_32x32x16_bf16 %s, %s, %s, %s" % (vr(V_P, 16), vr(PH1, 4), vr(KB_ + 4, 4), vr(V_P, 16)))
    for t in range(2):
        k.lg("ds_write_b128 v15, %s offset:%d" % (vr(VB + 4 * t, 4), t * 1024))
    if opt.get("dump_kv"):
        k("s_waitcnt vmcnt(0)")
    PHI = V_AK
    softmax(k, V_P, 32, PHI, T, opt.get("round_p", 0))
    for g in range(4):
        k.lg("ds_write_b128 v%d, %s offset:%d" % (VS, vr(PHI + 4 * g, 4), g * 4096))
    k.wait_vm(lastq)
    k.signal(V_OWN, T, 9)
    k("v_lshrrev_b32 v%d, 2, v%d" % (T, V_LANE))
    k("v_and_b32 v%d, 3, v%d" % (T + 1, V_LANE))
    k("v_lshlrev_b32 v%d, 5, v%d" % (T, T))
    k("v_lshl_add_u32 v%d, v%d, 3, v%d" % (T, T + 1, T))
    k("s_lshl_b32 s60, s%d, 12" % aw)
    k("s_lshr_b32 s61, s%d, 1" % aw); k("s_lshl_b32 s61, s61, 10"); k("s_add_u32 s61, s61, %d" % BOUNCE)
    k("v_add_u32 v%d, s60, v%d" % (T + 2, T))
    k("v_add_u32 v%d, s61, v%d" % (T + 3, T))
    ONES = T + 4
    for j in range(4):
        k("v_mov_b32 v%d, 0x3f803f80" % (ONES + j))
    k.wait_words(V_SY, 0, 4, 9, PT)
    k.stamp()
    seqs = []
    for e in range(4):
        for ab in range(2):
            for t in range(2):
                seqs.append(k.lg("ds_read_b64_tr_b16 %s, v%d offset:%d" % (vr(32 + 8 * e + 4 * ab + 2 * t, 2), T + 2 + ab, (4096 if ab else 1024) * e + 512 * t)))
    KV, ZZ = 104, 108
    for e in range(4):
        k.wait_lg(seqs[4 * e + 3])
        k("v_mfma_f32_16x16x32_bf16 %s, %s, %s, %s" % (vr(KV, 4), vr(32 + 8 * e, 4), vr(36 + 8 * e, 4), vr(KV, 4) if e else "0"))
        k("v_mfma_f32_16x16x32_bf16 %s, %s, %s, %s" % (vr(ZZ, 4), vr(32 + 8 * e, 4), vr(ONES, 4), vr(ZZ, 4) if e else "0"))
    k.signal(V_OWN, T, 10)
    k.wait_words(V_SY, 32, 1, 4, PT)
    k("s_lshl_b32 s60, s%d, 4" % S_HP); k("s_add_u32 s60, s60, s%d" % S_RB); k("s_mul_i32 s60, s60, %d" % KVP_STRIDE)
    k("s_add_u32 s60, s60, %d" % WS_KVP)
    k("s_lshl_b32 s61, s%d, 10" % aw)
    k("v_lshlrev_b32 v%d, 4, v%d" % (T, V_LANE))
    k("v_add_u32 v%d, s61, v%d" % (T, T))
    k("s_lshl_b32 s61, s%d, 6" % aw); k("s_add_u32 s61, s61, 4096")
    k("v_and_b32 v%d, 0x30, v%d" % (T + 1, V_LANE))
    k("v_add_u32 v%d, s61, v%d" % (T + 1, T + 1))
    for j in range(8):
        k("v_min_u32 v%d, -2, v%d" % (KV + j, KV + j))
    k.vm("buffer_store_dwordx4 %s, v%d, s[%d:%d], s60 offen sc1" % (vr(KV, 4), T, R_WS, R_WS + 3))
    k("s_mov_b32 s68, 0x00010001"); k("s_mov_b32 s69, 0x00010001")
    k("s_mov_b64 exec, s[68:69]")
    k.vm("buffer_store_dwordx4 %s, v%d, s[%d:%d], s60 offen sc1" % (vr(ZZ, 4), T + 1, R_WS, R_WS + 3))
    k("s_mov_b64 exec, -1")
    k("v_mov_b32 v15, v%d" % T)
    k.stamp()
    k("s_lshr_b32 s60, s%d, 1" % S_HP); k("s_lshl_b32 s60, s60, 7")
    k("s_sub_u32 s61, %d, s60" % (512 * 1024))
    k.srd(R_C, S_WO, "s61", off_sgpr=60)
    k("v_lshrrev_b32 v%d, 3, v%d" % (T + 2, V_LANE))
    k("v_and_b32 v%d, 7, v%d" % (T + 3, V_LANE))
    k("v_bfe_u32 v%d, v%d, 4, 1" % (T + 4, V_LANE))
    k("v_lshlrev_b32 v%d, 2, v%d" % (T + 4, T + 4))
    k("v_xor_b32 v%d, v%d, v%d" % (T + 3, T + 3, T + 4))
    k("v_lshlrev_b32 v%d, 10, v%d" % (V_XO, T + 2))
    k("v_lshl_add_u32 v%d, v%d, 4, v%d" % (V_XO, T + 3, V_XO))
    k("s_lshl_b32 s66, s%d, 13" % aw)
    def wodma(part, lds):
        for i in range(8):
            k("s_add_u32 s68, s66, %d" % ((part * 256 + 32 * i) * 1024))
            k("s_add_u32 m0, s67, %d" % (lds + i * 4096))
            r = k.vm("buffer_load_dwordx4 v%d, s[%d:%d], s68 offen lds" % (V_XO, R_C, R_C + 3))
        return r
    wodma(0, WV)
    for half in range(4):
        seqs = []
        for ks in range(8):
            for t in range(2):
                off = (half * 2 + ks // 4) * 4096 + (ks % 4) * 512 + 256 * t
                seqs.append(k.lg("ds_read_b64_tr_b16 %s, v%d offset:%d" % (vr(V_WF + 4 * ks + 2 * t, 2), V_TRQ, off)))
        for ks in range(8):
            k.wait_lg(seqs[2 * ks + 1])
            k("v_mfma_f32_32x32x16_bf16 %s, %s, %s, %s" % (vr(V_AQ, 16), vr(V_WF + 4 * ks, 4), vr(xreg(half * 2 + ks // 4, ks % 4), 4), vr(V_AQ, 16) if (half or ks) else "0"))
        if half == 0:
            k.wait_words(V_SY, 0, 4, 10, PT)
            wodma(1, WK)
    for j in range(8):
        k("v_cvt_pk_bf16_f32 v%d, v%d, v%d" % (KB_ + j, V_AQ + 2 * j, V_AQ + 2 * j + 1))
    k("v_mfma_f32_32x32x16_bf16 %s, %s, %s, 0" % (vr(V_P, 16), vr(PH0, 4), vr(KB_, 4)))
    k("v_mfma_f32_32x32x16_bf16 %s, %s, %s, %s" % (vr(V_P, 16), vr(PH1, 4), vr(KB_ + 4, 4), vr(V_P, 16)))
    softmax(k, V_P, 32, PHI, T, opt.get("round_p", 0))
    k.stamp()
    k.wait_words(V_SY, 36, 1, 1, PT)
    k("v_lshlrev_b32 v%d, 2, v%d" % (T, V_LANE))
    k("v_add_u32 v%d, %d, v%d" % (T, OLDS, T))
    k.lg("ds_read_b32 v3, v%d" % T)
    flag_addr(k, 4, T + 4)
    k("s_mul_i32 s60, s%d, %d" % (S_HP, 16 * KVP_STRIDE)); k("s_add_u32 s60, s60, %d" % WS_KVP)
    k("v_and_b32 v%d, 15, v%d" % (T, V_LANE))
    k("s_movk_i32 s61, %d" % KVP_STRIDE)
    k("v_mul_lo_u32 v%d, v%d, s61" % (T + 1, T))
    k("v_and_b32 v%d, 0x30, v%d" % (T + 2, V_LANE))
    k("v_add_u32 v%d, v%d, v%d" % (T + 1, T + 1, T + 2))
    k("s_lshl_b32 s61, s%d, 6" % aw); k("s_add_u32 s61, s61, 4096")
    k("v_add_u32 v%d, s61, v%d" % (T + 1, T + 1))
    G0 = 128
    loads = []
    for p in range(16):
        loads.append((G0 + 4 * p, 4, ["s_add_u32 s68, s60, %d" % (p * KVP_STRIDE),
                                      "buffer_load_dwordx4 %s, v15, s[%d:%d], s68 offen sc1" % (vr(G0 + 4 * p, 4), R_WS, R_WS + 3)]))
    loads.append((G0 + 64, 4, ["buffer_load_dwordx4 %s, v%d, s[%d:%d], s60 offen sc1" % (vr(G0 + 64, 4), T + 1, R_WS, R_WS + 3)]))
    k.gather(loads, 196)
    k.stamp()
    k("buffer_load_dword v5, v4, s[%d:%d], 0 offen sc1" % (R_WS, R_WS + 3))
    for step in (8, 4, 2, 1):
        for p in range(step):
            for j in range(4):
                k("v_add_f32 v%d, v%d, v%d" % (G0 + 4 * p + j, G0 + 4 * p + j, G0 + 4 * (p + step) + j))
        for j in range(4):
            k("v_add_f32_dpp v%d, v%d, v%d row_ror:%d row_mask:0xf bank_mask:0xf" % (G0 + 64 + j, G0 + 64 + j, G0 + 64 + j, step))
    k("v_cvt_pk_bf16_f32 v%d, v%d, v%d" % (T + 4, G0, G0 + 1)); k("v_cvt_pk_bf16_f32 v%d, v%d, v%d" % (T + 5, G0 + 2, G0 + 3))
    k("v_cvt_pk_bf16_f32 v%d, v%d, v%d" % (T + 6, G0 + 64, G0 + 65)); k("v_cvt_pk_bf16_f32 v%d, v%d, v%d" % (T + 7, G0 + 66, G0 + 67))
    k("v_lshrrev_b32 v%d, 4, v%d" % (T + 2, V_LANE))
    k("v_lshlrev_b32 v%d, 5, v%d" % (T, T))
    k("v_lshl_add_u32 v%d, v%d, 3, v%d" % (T, T + 2, T))
    k("s_lshl_b32 s60, s%d, 12" % aw); k("s_add_u32 s60, s60, %d" % BOUNCE)
    k("v_add_u32 v%d, s60, v%d" % (T, T))
    k.lg("ds_write_b64 v%d, %s" % (T, vr(T + 4, 2)))
    k.lg("ds_write_b64 v%d, %s offset:512" % (T, vr(T + 6, 2)))
    k.signal(V_OWN, T + 8, 11)
    k("v_and_b32 v%d, 31, v%d" % (T + 1, V_LANE))
    k("v_lshrrev_b32 v%d, 5, v%d" % (T + 2, V_LANE))
    k("v_lshlrev_b32 v%d, 5, v%d" % (T + 1, T + 1))
    k("v_lshl_add_u32 v%d, v%d, 4, v%d" % (T + 1, T + 2, T + 1))
    k("v_add_u32 v%d, %d, v%d" % (T + 1, BOUNCE, T + 1))
    k.wait_words(V_SY, 40, 1, 4, PT)
    k.wait_words(V_SY, 0, 4, 11, PT)
    seqs = [k.lg("ds_read_b128 %s, v%d offset:%d" % (vr(32 + 4 * g, 4), T + 1, 4096 * g)) for g in range(4)]
    D0 = (48, 64)
    for t in range(2):
        k.wait_lg(seqs[2 * t + 1])
        k("v_mfma_f32_32x32x16_bf16 %s, %s, %s, 0" % (vr(D0[t], 16), vr(32 + 8 * t, 4), vr(PHI + 8 * t, 4)))
        k("v_mfma_f32_32x32x16_bf16 %s, %s, %s, %s" % (vr(D0[t], 16), vr(36 + 8 * t, 4), vr(PHI + 8 * t + 4, 4), vr(D0[t], 16)))
    k("s_lshl_b32 s60, s%d, 2" % S_RB); k("s_add_u32 s60, s60, s%d" % aw); k("s_lshl_b32 s60, s60, 4"); k("s_add_u32 s60, s60, s%d" % S_HP)
    k("s_lshl_b32 s60, s60, 11"); k("s_add_u32 s60, s60, %d" % WS_OF)
    k("v_lshlrev_b32 v15, 4, v%d" % V_LANE)
    k("s_mov_b32 s61, 0x358637bd")
    OP = 96
    for t in range(2):
        k("v_add_f32 v%d, s61, v%d" % (T + 4 + t, D0[t] + 8))
        k("v_rcp_f32 v%d, v%d" % (T + 4 + t, T + 4 + t))
        for i in range(8):
            k("v_mul_f32 v%d, v%d, v%d" % (D0[t] + i, D0[t] + i, T + 4 + t))
        for j in range(4):
            k("v_cvt_pk_bf16_f32 v%d, v%d, v%d" % (OP + 4 * t + j, D0[t] + 2 * j, D0[t] + 2 * j + 1))
        for j in range(4):
            k("v_min_u32 v%d, -2, v%d" % (OP + 4 * t + j, OP + 4 * t + j))
        k.vm("buffer_store_dwordx4 %s, v15, s[%d:%d], s60 offen offset:%d sc1" % (vr(OP + 4 * t, 4), R_WS, R_WS + 3, 1024 * t))
    k.stamp()
    k("v_lshrrev_b32 v%d, 5, v%d" % (T, V_LANE))
    k("v_bfe_u32 v%d, v%d, 2, 2" % (T + 1, V_LANE))
    k("v_lshl_add_u32 v%d, v%d, 3, v%d" % (T, T, T + 1))
    k("v_lshlrev_b32 v%d, 7, v%d" % (T, T))
    k("v_bfe_u32 v%d, v%d, 3, 1" % (T + 1, V_LANE))
    k("v_lshl_add_u32 v%d, v%d, 6, v%d" % (T, T + 1, T))
    k("v_bfe_u32 v%d, v%d, 4, 1" % (T + 1, V_LANE))
    k("v_lshl_add_u32 v%d, v%d, 5, v%d" % (T, T + 1, T))
    k("v_and_b32 v%d, 3, v%d" % (T + 1, V_LANE))
    k("v_lshl_add_u32 v%d, v%d, 3, v%d" % (T, T + 1, T))
    k("s_lshr_b32 s61, s%d, 1" % aw)
    k("s_xor_b32 s60, s61, 1"); k("s_lshl_b32 s60, s60, 15")
    k("v_add_u32 v%d, s60, v%d" % (T, T))
    k("v_xor_b32 v%d, 64, v%d" % (T + 1, T))
    WF = 128
    n = 0
    for ks in range(16):
        for ct in range(2):
            for t in range(2):
                k.lg("ds_read_b64_tr_b16 %s, v%d offset:%d" % (vr(WF + 8 * ks + 4 * ct + 2 * t, 2), T + ct, 2048 * ks + 512 * t))
    k("s_lshl_b32 s60, s%d, 2" % S_RB); k("s_and_b32 s68, s%d, 1" % S_HP); k("s_lshl_b32 s68, s68, 1"); k("s_add_u32 s60, s60, s68")
    k("s_and_b32 s68, s%d, 1" % aw); k("s_add_u32 s60, s60, s68")
    k("s_mov_b32 s70, s60")
    k("s_lshl_b32 s60, s60, 1"); k("s_add_u32 s60, s60, s61"); k("s_lshl_b32 s60, s60, 14"); k("s_add_u32 s60, s60, %d" % WS_OF)
    G1 = 32
    loads = []
    for p in range(16):
        loads.append((G1 + 4 * p, 4, ["s_add_u32 s68, s60, %d" % ((p // 4) * 4096),
                                      "buffer_load_dwordx4 %s, v15, s[%d:%d], s68 offen offset:%d sc1" % (vr(G1 + 4 * p, 4), R_WS, R_WS + 3, (p % 4) * 1024)]))
    poll_flags(k, 4, 3, 5, 0xffff0000, issued=2)
    k.gather(loads, 96)
    k("s_waitcnt lgkmcnt(0)")
    k.stamp()
    AC = (96, 112)
    for ks in range(16):
        for ct in range(2):
            k("v_mfma_f32_32x32x16_bf16 %s, %s, %s, %s" % (vr(AC[ct], 16), vr(WF + 8 * ks + 4 * ct, 4), vr(G1 + 4 * ks, 4), vr(AC[ct], 16) if ks else "0"))
    k("s_lshl_b32 s60, s%d, 12" % aw); k("s_add_u32 s60, s60, %d" % WQ)
    k("v_add_u32 v%d, s60, v15" % T)
    k("s_xor_b32 s68, s60, 8192")
    k("v_add_u32 v%d, s68, v15" % (T + 1))
    k("v_xor_b32 v%d, 8, v%d" % (T + 2, V_OWN))
    k("s_lshl_b32 s68, s70, 16")
    k("s_lshr_b32 s69, s%d, 1" % S_HP); k("s_lshl_b32 s69, s69, 7"); k("s_add_u32 s68, s68, s69")
    k("s_lshl_b32 s69, s61, 6"); k("s_add_u32 s68, s68, s69")
    k("v_and_b32 v%d, 31, v%d" % (T + 3, V_LANE))
    k("v_lshrrev_b32 v%d, 5, v%d" % (T + 4, V_LANE))
    k("v_lshlrev_b32 v%d, 11, v%d" % (T + 3, T + 3))
    k("v_lshl_add_u32 v%d, v%d, 4, v%d" % (T + 3, T + 4, T + 3))
    k.srd(R_D, S_OUT, 2048 * 2048)
    L1 = k.lbl("kh1"); LJ = k.lbl("khj")
    k("s_cmp_eq_u32 s61, 1")
    k("s_cbranch_scc1 %s" % L1)
    FIN = 32
    for kh in range(2):
        if kh == 1:
            k.label(L1)
            k.settle(12)
        snd, keep = AC[1 - kh], AC[kh]
        for j in range(4):
            k.lg("ds_write_b128 v%d, %s offset:%d" % (T, vr(snd + 4 * j, 4), 1024 * j))
        k.signal(V_OWN, T + 8, 12)
        k.wait_words(T + 2, 0, 1, 12, PT)
        seqs = [k.lg("ds_read_b128 %s, v%d offset:%d" % (vr(48 + 4 * j, 4), T + 1, 1024 * j)) for j in range(4)]
        for j in range(4):
            k.wait_lg(seqs[j])
            for i in range(4):
                k("v_add_f32 v%d, v%d, v%d" % (48 + 4 * j + i, 48 + 4 * j + i, keep + 4 * j + i))
        if kh == 0:
            k("s_branch %s" % LJ)
    k.label(LJ)
    for j in range(8):
        k("v_cvt_pk_bf16_f32 v%d, v%d, v%d" % (FIN + j, 48 + 2 * j, 48 + 2 * j + 1))
    for b in (0, 4):
        k("v_permlane32_swap_b32 v%d, v%d" % (FIN + b, FIN + b + 2))
        k("v_permlane32_swap_b32 v%d, v%d" % (FIN + b + 1, FIN + b + 3))
    for b in (0, 1):
        k.vm("buffer_store_dwordx4 %s, v%d, s[%d:%d], s68 offen offset:%d%s" % (vr(FIN + 4 * b, 4), T + 3, R_D, R_D + 3, 32 * b, OUTF[opt.get("outf", 0)]))
    if k.dbg or not opt.get("nofin"):
        k("s_waitcnt vmcnt(0)")
    k.stamp()
    k.dump_stamps(32)
```

```python
from common import *
import math, struct

def f2u(f):
    return struct.unpack("<I", struct.pack("<f", f))[0]

V_LANE = 1
V_OLD, V_FA = 2, 3
V_SY, V_OWN, V_PAR = 4, 5, 6
V_UF = 8
V_DS = 16
V_LF = 20
T = 192
PT = 24
S_D, S_NH, S_DI, S_PB = 62, 63, 64, 65


def role_b(k, opt):
    bw = S_RW
    if opt.get("no_b"):
        k("s_endpgm")
    if opt.get("bprio", 3):
        k("s_setprio %d" % opt.get("bprio", 3))
    k("s_and_b32 s%d, s%d, 1" % (S_NH, bw))
    k("s_lshr_b32 s%d, s%d, 1" % (S_DI, bw))
    k("s_lshl_b32 s%d, s%d, 5" % (S_D, S_HP)); k("s_lshl_b32 s60, s%d, 1" % S_RB); k("s_add_u32 s%d, s%d, s60" % (S_D, S_D))
    k("s_lshl_b32 s60, s%d, 1" % S_D)
    k("s_load_dword s66, s[%d:%d], s60" % (S_LDT, S_LDT + 1))
    k("s_mov_b32 s67, s%d" % S_D)
    k("s_add_u32 s%d, s%d, s%d" % (S_D, S_D, S_DI))
    k("s_mul_i32 s%d, s%d, %d" % (S_PB, S_DI, DSTRIDE)); k("s_add_u32 s%d, s%d, %d" % (S_PB, S_PB, BREG))
    k("s_lshl_b32 s60, s%d, 8" % S_D); k("s_lshl_b32 s61, s%d, 7" % S_NH); k("s_add_u32 s60, s60, s61")
    k("v_lshlrev_b32 v%d, 1, v%d" % (T + 3, V_LANE))
    PR = 28
    for i, sp in enumerate((S_ARE, S_AIM, S_BRE, S_BIM, S_CRE, S_CIM)):
        r = (R_B, R_C)[i % 2]
        k.srd(r, sp, 131072)
        s_par = k.vm("buffer_load_ushort v%d, v%d, s[%d:%d], s60 offen" % (PR + i, T + 3, r, r + 3))
    flag_addr(k, V_FA, T)
    k.vm("buffer_load_dword v%d, v%d, s[%d:%d], 0 offen sc1" % (V_OLD, V_FA, R_WS, R_WS + 3))
    k("s_lshl_b32 s60, s%d, 17" % S_RB); k("s_lshl_b32 s61, s%d, 15" % bw); k("s_add_u32 s60, s60, s61")
    k("s_lshl_b32 s61, s%d, 6" % S_HP); k("s_add_u32 s60, s60, s61")
    k.srd(R_A, S_U, 32768 - 960, off_sgpr=60)
    k("v_lshrrev_b32 v%d, 2, v%d" % (T, V_LANE))
    k("v_and_b32 v%d, 3, v%d" % (T + 1, V_LANE))
    k("v_lshlrev_b32 v%d, 10, v%d" % (T + 2, T))
    k("v_lshl_add_u32 v%d, v%d, 4, v%d" % (T + 2, T + 1, T + 2))
    k("s_lshl_b32 s68, s%d, 11" % bw); k("s_add_u32 s68, s68, %d" % BREG)
    k("v_mov_b32 v%d, v%d" % (T + 56, T + 2))
    k.srd(R_B, S_DSK, 1024)
    k("v_lshrrev_b32 v%d, 4, v%d" % (T + 57, V_LANE))
    k("v_lshlrev_b32 v%d, 4, v%d" % (T + 57, T + 57))
    if opt.get("upf"):
        for r in range(32):
            k("s_load_dword s74, s[%d:%d], %d" % (R_A, R_A + 1, 1024 * r))
    SU = {}
    def uld():
        k("s_mov_b32 m0, s68")
        k.vm("buffer_load_dwordx4 v%d, s[%d:%d], 0 offen lds" % (T + 56, R_A, R_A + 3))
        k("s_add_u32 m0, s68, 1024")
        k("s_mov_b32 s60, 16384")
        SU["s"] = k.vm("buffer_load_dwordx4 v%d, s[%d:%d], s60 offen lds" % (T + 56, R_A, R_A + 3))
        k("s_lshl_b32 s60, s%d, 6" % S_HP)
        k.vm("buffer_load_dwordx4 %s, v%d, s[%d:%d], s60 offen" % (vr(V_DS, 4), T + 57, R_B, R_B + 3))
    if opt.get("h_uld", -2) == -2:
        uld()
    k("v_lshlrev_b32 v7, 4, v%d" % V_LANE)
    SEN = 52
    for j in range(4):
        k("v_mov_b32 v%d, -1" % (SEN + j))
    SE = vr(SEN, 4)
    def clear_kv():
        k("s_lshl_b32 s60, s%d, 4" % S_HP); k("s_add_u32 s60, s60, s%d" % S_RB); k("s_mul_i32 s60, s60, %d" % KVP_STRIDE)
        k("s_add_u32 s60, s60, %d" % WS_KVP)
        k("s_lshl_b32 s61, s%d, 10" % bw); k("s_add_u32 s61, s61, s60")
        k.vm("buffer_store_dwordx4 %s, v7, s[%d:%d], s61 offen sc1" % (SE, R_WS, R_WS + 3))
        k("s_lshl_b32 s61, s%d, 6" % bw); k("s_add_u32 s61, s61, s60"); k("s_add_u32 s61, s61, 4096")
        k("s_mov_b64 exec, 15")
        k.vm("buffer_store_dwordx4 %s, v7, s[%d:%d], s61 offen sc1" % (SE, R_WS, R_WS + 3))
        k("s_mov_b64 exec, -1")
    def clear_oy():
        k("s_lshl_b32 s60, s%d, 2" % S_RB); k("s_add_u32 s60, s60, s%d" % bw); k("s_lshl_b32 s60, s60, 4"); k("s_add_u32 s60, s60, s%d" % S_HP)
        k("s_lshl_b32 s60, s60, 11"); k("s_add_u32 s60, s60, %d" % WS_OF)
        for j in range(2):
            k.vm("buffer_store_dwordx4 %s, v7, s[%d:%d], s60 offen offset:%d sc1" % (SE, R_WS, R_WS + 3, 1024 * j))
        k("s_lshl_b32 s60, s67, 12"); k("s_lshl_b32 s61, s%d, 11" % bw); k("s_add_u32 s60, s60, s61"); k("s_add_u32 s60, s60, %d" % WS_YT)
        for j in range(2):
            k.vm("buffer_store_dwordx4 %s, v7, s[%d:%d], s60 offen offset:%d sc1" % (SE, R_WS, R_WS + 3, 1024 * j))
    k("v_mov_b32 v%d, %d" % (V_SY, SYNC + 16))
    k("s_lshl_b32 s60, s%d, 2" % bw); k("s_add_u32 s60, s60, %d" % (SYNC + 16))
    k("v_mov_b32 v%d, s60" % V_OWN)
    k("v_xor_b32 v%d, 4, v%d" % (V_PAR, V_OWN))
    k.stamp()
    k("v_and_b32 v%d, 15, v%d" % (T, V_LANE))
    k("v_bfe_u32 v%d, v%d, 2, 2" % (T + 1, V_LANE))
    k("v_and_b32 v%d, 3, v%d" % (T + 2, V_LANE))
    k("v_cvt_f32_u32 v%d, v%d" % (V_LF, T))
    k("v_lshlrev_b32 v%d, 4, v%d" % (T + 3, T))
    k("v_cvt_f32_u32 v%d, v%d" % (V_LF + 3, T + 3))
    k("v_lshlrev_b32 v%d, 2, v%d" % (T + 3, T + 1))
    k("v_lshl_add_u32 v%d, v%d, 1, v%d" % (T + 3, T + 2, T + 3))
    k("v_add_u32 v%d, 256, v%d" % (T + 3, T + 3))
    k("v_mov_b32 v%d, 1808" % (T + 4))
    k("v_cmp_eq_u32 vcc, 3, v%d" % (T + 2))
    k("v_cndmask_b32 v%d, v%d, v%d, vcc" % (T + 3, T + 3, T + 4))
    k("v_cvt_f32_u32 v%d, v%d" % (V_LF + 1, T + 3))
    k("v_lshlrev_b32 v%d, 8, v%d" % (T + 3, T + 1))
    k("v_lshl_add_u32 v%d, v%d, 2, v%d" % (T + 3, T + 2, T + 3))
    k("v_add_u32 v%d, 512, v%d" % (T + 3, T + 3))
    k("v_lshlrev_b32 v%d, 9, v%d" % (T + 4, T + 1))
    k("v_bfe_u32 v%d, v%d, 1, 1" % (T + 5, V_LANE))
    k("v_lshl_add_u32 v%d, v%d, 8, v%d" % (T + 4, T + 5, T + 4))
    k("v_and_b32 v%d, 1, v%d" % (T + 5, V_LANE))
    k("v_lshl_add_u32 v%d, v%d, 3, v%d" % (T + 4, T + 5, T + 4))
    k("v_cmp_lt_u32 vcc, 1, v%d" % (T + 1))
    k("v_cndmask_b32 v%d, v%d, v%d, vcc" % (T + 3, T + 3, T + 4))
    k("v_cvt_f32_u32 v%d, v%d" % (V_LF + 2, T + 3))
    UA = T + 40
    UDt = T + 48
    TT = BREG + 8192
    k("v_lshrrev_b32 v%d, 4, v%d" % (T, V_LANE))
    k("v_lshl_add_u32 v%d, v%d, 3, v%d" % (UA, T, T + 1))
    k("v_sub_u32 v%d, 27, v%d" % (UA, UA))
    k("v_lshlrev_b32 v%d, 6, v%d" % (UA, UA))
    k("v_lshl_add_u32 v%d, v%d, 3, v%d" % (UA, T + 2, UA))
    k("v_add_u32 v%d, s68, v%d" % (UA, UA))
    k("v_and_b32 v%d, 15, v%d" % (T + 4, V_LANE))
    k("v_lshlrev_b32 v%d, 6, v%d" % (UA + 1, T + 4))
    k("v_lshl_add_u32 v%d, v%d, 4, v%d" % (UA + 1, T, UA + 1))
    k("v_add_u32 v%d, s68, v%d" % (UA + 1, UA + 1))
    k("s_movk_i32 s60, 272")
    k("v_mul_lo_u32 v%d, v%d, s60" % (UA + 2, T + 4))
    k("v_lshl_add_u32 v%d, v%d, 4, v%d" % (UA + 2, T, UA + 2))
    k("s_lshl_b32 s61, s%d, 6" % bw); k("s_sub_u32 s61, %d, s61" % (TT + 192))
    k("v_add_u32 v%d, s61, v%d" % (UA + 2, UA + 2))
    k("v_mul_lo_u32 v%d, v%d, s60" % (UA + 3, T))
    k("v_lshl_add_u32 v%d, v%d, 4, v%d" % (UA + 3, T + 4, UA + 3))
    k("s_mul_i32 s61, s%d, %d" % (bw, 8 * 272)); k("s_add_u32 s61, s61, %d" % TT)
    k("v_add_u32 v%d, s61, v%d" % (UA + 3, UA + 3))
    k("v_lshlrev_b32 v%d, 12, v%d" % (UA + 4, T))
    k("v_lshl_add_u32 v%d, v%d, 4, v%d" % (UA + 4, T + 4, UA + 4))
    k("s_lshl_b32 s72, s%d, 17" % S_HP); k("s_add_u32 s72, s72, %d" % (WS_UT + 4096 - 256))
    k("s_lshl_b32 s61, s%d, 8" % S_RB); k("s_sub_u32 s72, s72, s61")
    k("s_lshl_b32 s61, s%d, 15" % bw); k("s_add_u32 s72, s72, s61")
    k("s_add_u32 s73, s72, 16384")
    k("v_mov_b32 v%d, %d" % (UA + 5, SYNC + 44))
    def ut1():
        k.wait_vm(SU["s"])
        sq = []
        for j in range(2):
            for t in range(2):
                sq.append(k.lg("ds_read_b64_tr_b16 %s, v%d offset:%d" % (vr(UDt + 4 * j + 2 * t, 2), UA, 32 * j + 256 * (1 - t))))
        for j in range(2):
            k.lg("ds_read_b128 %s, v%d offset:%d" % (vr(V_UF + 4 * j, 4), UA + 1, 1024 * j))
        for j in range(2):
            k.wait_lg(sq[2 * j + 1])
            k.lg("ds_write_b128 v%d, %s offset:%d" % (UA + 2, vr(UDt + 4 * j, 4), 16 * 272 * j))
        k("v_mov_b32 v%d, 1" % (UA + 6))
        k("s_mov_b64 exec, 1")
        k.lg("ds_add_u32 v%d, v%d" % (UA + 5, UA + 6))
        k("s_mov_b64 exec, -1")
    def ut2():
        k.wait_words(UA + 5, 0, 1, 4, PT)
        sq = [k.lg("ds_read_b128 %s, v%d offset:%d" % (vr(UDt + 4 * j, 4), UA + 3, 4 * 272 * j)) for j in range(2)]
        for j in range(2):
            k.wait_lg(sq[j])
            k.vm("buffer_store_dwordx4 %s, v%d, s[%d:%d], s%d offen sc1" % (vr(UDt + 4 * j, 4), UA + 4, R_WS, R_WS + 3, 72 + j))
    W = 160
    def pub():
        k("s_waitcnt vmcnt(0)")
        k("v_mov_b32 v%d, %d" % (W + 20, SYNC + 32)); k("v_mov_b32 v%d, 1" % (W + 21))
        k("s_mov_b64 exec, 1")
        k.lg("ds_add_rtn_u32 v%d, v%d, v%d" % (W + 22, W + 20, W + 21))
        k("s_mov_b64 exec, -1")
        k("s_lshl_b32 s70, 1, s%d" % S_RB); k("s_lshl_b32 s71, 0x10000, s%d" % S_HP); k("s_or_b32 s70, s70, s71"); k("s_mov_b32 s71, 0")
        k("v_add_u32 v%d, 1, v%d" % (W + 23, V_OLD))
        k("s_waitcnt lgkmcnt(0)")
        k("v_readfirstlane_b32 s60, v%d" % (W + 22))
        Ls = k.lbl("nopub")
        k("s_cmp_lg_u32 s60, 3")
        k("s_cbranch_scc1 %s" % Ls)
        k("s_mov_b64 exec, s[70:71]")
        k("buffer_store_dword v%d, v%d, s[%d:%d], 0 offen sc1" % (W + 23, V_FA, R_WS, R_WS + 3))
        k("s_mov_b64 exec, -1")
        k.label(Ls)
    hooks = {}
    for name, fn, dflt in (("h_uld", uld, -2), ("h_ut1", ut1, 1), ("h_ut2", ut2, 5), ("h_kvc", clear_kv, 5), ("h_pub", pub, 11), ("h_clr", clear_oy, 15)):
        hooks.setdefault(opt.get(name, dflt), []).append(fn)
    for fn in hooks.get(-1, []):
        fn()
    k("s_setprio %d" % opt.get("bprio2", 0))
    k.stamp()
    k("s_waitcnt lgkmcnt(0)")
    k("s_lshl_b32 s60, s%d, 4" % S_DI); k("s_lshr_b32 s66, s66, s60"); k("s_lshl_b32 s66, s66, 16")
    k("s_mov_b32 s69, 0x3fb8aa3b")
    k("v_mov_b32 v%d, s66" % T)
    k("v_mul_f32 v%d, s69, v%d" % (T, T))
    k("v_exp_f32 v%d, v%d" % (T, T))
    k("v_cvt_pk_bf16_f32 v%d, v%d, v%d" % (T, T, T))
    k("v_and_b32 v%d, 0xffff0000, v%d" % (T, T))
    k.wait_vm(s_par)
    for i in range(6):
        k("v_lshlrev_b32 v%d, 16, v%d" % (PR + i, PR + i))
    for i in range(4):
        k("v_mul_f32 v%d, v%d, v%d" % (PR + i, PR + i, T))
    TB = T + 4
    k("v_mul_f32 v%d, s69, v%d" % (TB, PR))
    k("v_mul_f32 v%d, 0.15915494, v%d" % (TB + 1, PR + 1))
    k("v_mul_f32 v%d, v%d, v%d" % (TB + 2, PR + 4, PR + 2))
    k("v_mul_f32 v%d, v%d, v%d" % (TB + 3, PR + 4, PR + 3))
    k("v_fma_f32 v%d, -v%d, v%d, v%d" % (TB + 2, PR + 5, PR + 3, TB + 2))
    k("v_fma_f32 v%d, v%d, v%d, v%d" % (TB + 3, PR + 5, PR + 2, TB + 3))
    k("s_lshl_b32 s60, s%d, 10" % S_NH); k("s_add_u32 s60, s60, s%d" % S_PB); k("s_add_u32 s60, s60, %d" % KBO)
    k("v_add_u32 v%d, s60, v7" % (T + 1))
    k.lg("ds_write_b128 v%d, %s" % (T + 1, vr(TB, 4)))
    k("v_and_b32 v%d, 0x30, v%d" % (T + 2, V_LANE))
    k("v_lshlrev_b32 v%d, 2, v%d" % (T + 2, T + 2))
    k("v_add_u32 v%d, s60, v%d" % (T + 2, T + 2))
    TAB = 64
    tseq = []
    for ks in range(4):
        for j in range(4):
            tseq.append(k.lg("ds_read_b128 %s, v%d offset:%d" % (vr(TAB + 16 * ks + 4 * j, 4), T + 2, 256 * ks + 16 * j)))
    FR = 128
    VA = 40
    for ks in range(4):
        if opt.get("kst"):
            k.stamp()
        F = FR + 16 * (ks % 2)
        for j in range(4):
            k.wait_lg(tseq[4 * ks + j])
            e = TAB + 16 * ks + 4 * j
            X, PHs, SN, CS = W, W + 4, W + 8, W + 12
            for t in range(4):
                k("v_mul_f32 v%d, v%d, v%d" % (PHs + t, e + 1, V_LF + t))
            for t in range(4):
                k("v_mul_f32 v%d, v%d, v%d" % (X + t, e, V_LF + t))
            for t in range(4):
                k("v_fract_f32 v%d, v%d" % (PHs + t, PHs + t))
            for t in range(4):
                k("v_exp_f32 v%d, v%d" % (X + t, X + t))
            for t in range(4):
                k("v_sin_f32 v%d, v%d" % (SN + t, PHs + t))
            for t in range(4):
                k("v_cos_f32 v%d, v%d" % (CS + t, PHs + t))
            for t in (3, 0, 1, 2):
                k("v_mul_f32 v%d, v%d, v%d" % (SN + t, SN + t, X + t))
            for t in (3, 0, 1, 2):
                k("v_mul_f32 v%d, v%d, v%d" % (CS + t, CS + t, X + t))
            k("v_mul_f32 v%d, v%d, v%d" % (W + 16, CS + 3, e + 2))
            k("v_mul_f32 v%d, -v%d, v%d" % (W + 17, CS + 3, e + 3))
            for t in range(3):
                k("v_cvt_pk_bf16_f32 v%d, v%d, v%d" % (F + 4 * t + j, CS + t, SN + t))
            k("v_fma_f32 v%d, -v%d, v%d, v%d" % (W + 16, SN + 3, e + 3, W + 16))
            k("v_fma_f32 v%d, -v%d, v%d, v%d" % (W + 17, SN + 3, e + 2, W + 17))
            k("v_cvt_pk_bf16_f32 v%d, v%d, v%d" % (F + 12 + j, W + 16, W + 17))
            if j < 3:
                for fn in hooks.get(4 * ks + j, []):
                    fn()
        for t in range(3):
            k("v_mfma_f32_16x16x32_bf16 %s, %s, %s, %s" % (vr(VA + 4 * t, 4), vr(F + 4 * t, 4), vr(F + 12, 4), vr(VA + 4 * t, 4) if ks else "0"))
        for fn in hooks.get(4 * ks + 3, []):
            fn()
    k.stamp()
    if opt.get("exp"):
        k.dump_stamps(32)
        return
    LN1 = k.lbl("nh1"); LJ = k.lbl("nhj")
    k("s_add_u32 s60, s%d, %d" % (S_PB, KBO + 1024))
    k("v_add_u32 v%d, s60, v7" % (T + 1))
    k("s_cmp_eq_u32 s%d, 1" % S_NH)
    k("s_cbranch_scc1 %s" % LN1)
    k.wait_words(V_PAR, 0, 1, 1, PT)
    sq = [k.lg("ds_read_b128 %s, v%d offset:%d" % (vr(W + 4 * t, 4), T + 1, 1024 * t)) for t in range(3)]
    k("v_and_b32 v%d, 15, v%d" % (T + 2, V_LANE))
    k("v_lshrrev_b32 v%d, 4, v%d" % (T + 3, V_LANE))
    k("s_add_u32 s60, s%d, %d" % (S_PB, KBO))
    k("v_lshlrev_b32 v%d, 5, v%d" % (T + 2, T + 2))
    k("v_add_u32 v%d, s60, v%d" % (T + 2, T + 2))
    k("v_lshl_add_u32 v%d, v%d, 3, v%d" % (T + 4, T + 3, T + 2))
    k("v_lshl_add_u32 v%d, v%d, 9, v%d" % (T + 5, T + 3, T + 2))
    k("v_add_u32 v%d, %d, v%d" % (T + 5, 120 + 1024 - 4, T + 5))
    k("v_lshl_add_u32 v%d, v%d, 10, v%d" % (T + 6, T + 3, T + 2))
    k("v_add_u32 v%d, %d, v%d" % (T + 6, 120 - 8, T + 6))
    k("v_lshlrev_b32 v%d, 2, v%d" % (T + 7, V_LANE))
    k("v_add_u32 v%d, s60, v%d" % (T + 7, T + 7))
    k("v_mov_b32 v%d, 0" % (T + 8))
    for t in range(3):
        k.wait_lg(sq[t])
        for i in range(4):
            k("v_add_f32 v%d, v%d, v%d" % (VA + 4 * t + i, VA + 4 * t + i, W + 4 * t + i))
    Q = T + 16
    V0, V1, V2 = VA, VA + 4, VA + 8
    pk = [(V2, V2), (V2, V2 + 1), (V2 + 1, V2 + 1), (V2 + 2, V2 + 2), (V2 + 2, V2 + 3), (V2 + 3, V2 + 3),
          (V1, V1), (V1 + 1, V1 + 2), (V0, V0 + 1), (V0 + 2, V0 + 3), (V1 + 3, V1 + 3)]
    for i, (a, b) in enumerate(pk):
        k("v_cvt_pk_bf16_f32 v%d, v%d, v%d" % (Q + i, a, b))
    aa, ab, bb, cc, cd, dd = [Q + i for i in range(6)]
    k("s_mov_b32 s70, 0"); k("s_mov_b32 s71, -1")
    k("s_mov_b64 exec, s[70:71]")
    for run, (x, xy, y) in enumerate(((aa, ab, bb), (cc, cd, dd))):
        o = 128 * run
        for i, (p, q) in enumerate(((x, x), (x, x), (xy, y), (y, y))):
            k.lg("ds_write2_b32 v%d, v%d, v%d offset0:%d offset1:%d" % (T + 6, p, q, o + 2 * i, o + 2 * i + 1))
    k("s_mov_b32 exec_lo, -1"); k("s_mov_b32 exec_hi, 0")
    for i, (p, q) in enumerate(((aa, aa), (ab, bb), (cc, cc), (cd, dd))):
        k.lg("ds_write2_b32 v%d, v%d, v%d offset0:%d offset1:%d" % (T + 5, p, q, 2 * i, 2 * i + 1))
    k("s_mov_b64 exec, -1")
    k.lg("ds_write_b64 v%d, %s offset:%d" % (T + 4, vr(Q + 6, 2), 120 + 512))
    k.lg("ds_write_b64 v%d, %s offset:%d" % (T + 4, vr(Q + 8, 2), 120))
    k("s_mov_b64 exec, 0x8000")
    k.lg("ds_write_b32 v%d, v%d offset:%d" % (T + 2, Q + 10, 120 + 4088 - 480))
    k.lg("ds_write_b32 v%d, v%d offset:%d" % (T + 2, Q + 10, 120 + 4092 - 480))
    k("s_mov_b64 exec, 0x3fffffff")
    k.lg("ds_write_b32 v%d, v%d" % (T + 7, T + 8))
    k("s_mov_b64 exec, -1")
    k("s_branch %s" % LJ)
    k.label(LN1)
    k.settle(8)
    for t in range(3):
        k.lg("ds_write_b128 v%d, %s offset:%d" % (T + 1, vr(VA + 4 * t, 4), 1024 * t))
    k.signal(V_OWN, T + 8, 1)
    LW3 = k.lbl("w3"); LRD = k.lbl("rdy")
    k("s_cmp_eq_u32 s%d, 3" % bw)
    k("s_cbranch_scc1 %s" % LW3)
    LP = k.lbl("poll"); LPD = k.lbl("polld")
    k("s_mov_b32 s61, 0")
    k("s_mov_b32 exec_lo, -1"); k("s_mov_b32 exec_hi, 0")
    k.label(LP)
    k("buffer_load_dword v%d, v%d, s[%d:%d], 0 offen sc1" % (T + 8, V_FA, R_WS, R_WS + 3))
    k("s_waitcnt vmcnt(0)")
    k("v_cmp_eq_u32 vcc, v%d, v%d" % (T + 8, V_OLD))
    k("s_nop 1")
    k("s_cbranch_vccz %s" % LPD)
    if k.slp:
        k("s_sleep %d" % k.slp)
    k("s_add_u32 s61, s61, 1")
    k("s_cmp_lt_u32 s61, %d" % LIM_GLB)
    k("s_cbranch_scc1 %s" % LP)
    k.label(LPD)
    k("s_mov_b64 exec, -1")
    k("v_lshlrev_b32 v%d, 2, v%d" % (T + 11, V_LANE))
    k("v_add_u32 v%d, %d, v%d" % (T + 11, OLDS, T + 11))
    k.lg("ds_write_b32 v%d, v%d" % (T + 11, V_OLD))
    k("s_mov_b64 exec, 1")
    k("v_mov_b32 v%d, %d" % (T + 9, SYNC + 36)); k("v_mov_b32 v%d, 1" % (T + 10))
    k.lg("ds_write_b32 v%d, v%d" % (T + 9, T + 10))
    k("s_mov_b64 exec, -1")
    k("s_mov_b64 exec, s[70:71]")
    k("v_add_u32 v%d, 2, v%d" % (T + 8, V_OLD))
    k("buffer_store_dword v%d, v%d, s[%d:%d], 0 offen sc1" % (T + 8, V_FA, R_WS, R_WS + 3))
    k("s_mov_b64 exec, -1")
    k("s_branch %s" % LRD)
    k.label(LW3)
    k.wait_words(V_SY, 20, 1, 1, PT)
    k.label(LRD)
    k.stamp()
    k("s_lshl_b32 s60, s%d, 12" % S_D)
    k.srd(R_A, S_WS, 4096, off_sgpr=60, off_imm=WS_UT)
    UL = 64
    k.nvm = 0
    sq = []
    for rd in range(4):
        k.vm("buffer_load_dwordx4 %s, v7, s[%d:%d], 0 offen offset:%d sc1" % (vr(UL + 8 * rd, 4), R_A, R_A + 3, 1024 * rd))
        if rd < 3:
            sq.append(k.vm("buffer_load_dwordx2 %s, v7, s[%d:%d], 0 offen offset:%d sc1" % (vr(UL + 8 * rd + 4, 2), R_A, R_A + 3, 1024 * rd + 16)))
        else:
            k("s_mov_b32 s60, 16")
            sq.append(k.vm("buffer_load_dwordx2 %s, v7, s[%d:%d], s60 offen offset:%d sc1" % (vr(UL + 8 * rd + 4, 2), R_A, R_A + 3, 1024 * rd)))
    k("v_add_u32 v%d, s%d, v7" % (T + 2, S_PB))
    for j in range(4):
        k("v_mov_b32 v%d, 0" % (T + 4 + j))
    k("s_mov_b64 exec, 0xffffff")
    for c in range(4):
        k.lg("ds_write_b128 v%d, %s offset:%d" % (T + 2, vr(T + 4, 4), c * UCS + 4096))
    k("s_mov_b64 exec, -1")
    for rd in range(4):
        D = UL + 8 * rd
        O = 128 + 16 * (rd % 2)
        k.wait_vm(sq[rd])
        for j in range(5):
            k("v_alignbit_b32 v%d, v%d, v%d, 16" % (O + j, D + j + 1, D + j))
        for j in range(4):
            k("v_mov_b32 v%d, v%d" % (O + 8 + j, D + 1 + j))
            k("v_mov_b32 v%d, v%d" % (O + 12 + j, O + 1 + j))
        k.lg("ds_write_b128 v%d, %s offset:%d" % (T + 2, vr(D, 4), 3 * UCS + 1024 * rd))
        k.lg("ds_write_b128 v%d, %s offset:%d" % (T + 2, vr(O, 4), 2 * UCS + 1024 * rd))
        k.lg("ds_write_b128 v%d, %s offset:%d" % (T + 2, vr(O + 8, 4), 1 * UCS + 1024 * rd))
        k.lg("ds_write_b128 v%d, %s offset:%d" % (T + 2, vr(O + 12, 4), 0 * UCS + 1024 * rd))
    k.label(LJ)
    k.signal(V_OWN, T + 8, 2)
    for fn in hooks.get(16, []):
        fn()
    k("s_waitcnt vmcnt(0)")
    k("v_mov_b32 v%d, %d" % (T + 12, SYNC + 40)); k("v_mov_b32 v%d, 1" % (T + 13))
    k("s_mov_b64 exec, 1")
    k.lg("ds_add_rtn_u32 v%d, v%d, v%d" % (T + 14, T + 12, T + 13))
    k("s_mov_b64 exec, -1")
    k("v_and_b32 v%d, 3, v%d" % (T, V_LANE))
    k("v_bfe_u32 v%d, v%d, 2, 2" % (T + 1, V_LANE))
    k("v_and_b32 v%d, 0x30, v%d" % (T + 2, V_LANE))
    k("s_movk_i32 s60, %d" % UCS)
    k("v_mul_lo_u32 v%d, v%d, s60" % (T + 3, T))
    k("v_lshlrev_b32 v%d, 7, v%d" % (T + 1, T + 1))
    k("v_sub_u32 v%d, v%d, v%d" % (T + 3, T + 3, T + 1))
    k("v_add_u32 v%d, v%d, v%d" % (T + 3, T + 3, T + 2))
    k("s_lshl_b32 s61, s%d, 8" % S_NH); k("s_add_u32 s61, s61, s%d" % S_PB)
    k("s_add_u32 s60, s61, 384")
    k("v_add_u32 v%d, s60, v%d" % (T + 3, T + 3))
    k("v_and_b32 v%d, 15, v%d" % (T + 4, V_LANE))
    k("v_lshl_add_u32 v%d, v%d, 3, v%d" % (T + 4, T + 4, T + 2))
    k("s_add_u32 s60, s61, %d" % KBO)
    k("v_add_u32 v%d, s60, v%d" % (T + 4, T + 4))
    UD = 208
    for j in range(2):
        for i in range(4):
            k("v_lshlrev_b32 v%d, 16, v%d" % (T + 8, V_UF + 4 * j + i))
            k("v_and_b32 v%d, 0xffff0000, v%d" % (T + 9, V_UF + 4 * j + i))
            k("v_lshlrev_b32 v%d, 16, v%d" % (T + 10, V_DS + i))
            k("v_and_b32 v%d, 0xffff0000, v%d" % (T + 11, V_DS + i))
            k("v_mul_f32 v%d, v%d, v%d" % (T + 8, T + 8, T + 10))
            k("v_mul_f32 v%d, v%d, v%d" % (T + 9, T + 9, T + 11))
            k("v_cvt_pk_bf16_f32 v%d, v%d, v%d" % (T + 8, T + 8, T + 9))
            k("v_lshlrev_b32 v%d, 16, v%d" % (UD + 8 * j + 2 * i, T + 8))
            k("v_and_b32 v%d, 0xffff0000, v%d" % (UD + 8 * j + 2 * i + 1, T + 8))
    k("s_lshl_b32 s70, 1, s%d" % S_RB); k("s_lshl_b32 s71, 0x10000, s%d" % S_HP); k("s_or_b32 s71, s70, s71"); k("s_mov_b32 s70, 0")
    k("v_add_u32 v%d, 2, v%d" % (T + 13, V_OLD))
    k("s_waitcnt lgkmcnt(0)")
    k("v_readfirstlane_b32 s60, v%d" % (T + 14))
    Ls = k.lbl("nopub2")
    k("s_cmp_lg_u32 s60, 3")
    k("s_cbranch_scc1 %s" % Ls)
    k("s_mov_b64 exec, s[70:71]")
    k("buffer_store_dword v%d, v%d, s[%d:%d], 0 offen sc1" % (T + 13, V_FA, R_WS, R_WS + 3))
    k("s_mov_b64 exec, -1")
    k.label(Ls)
    k.wait_words(V_PAR, 0, 1, 2, PT)
    k.stamp()
    if opt.get("dump_k"):
        pass
    AC = 32
    AF = (64, 96); BF = (128, 160)
    def rdfr(ri):
        s = {}
        buf = ri % 2
        for i in range(8):
            s[("A", i)] = k.lg("ds_read_b128 %s, v%d offset:%d" % (vr(AF[buf] + 4 * i, 4), T + 3, 512 * (7 - i) + 64 * ri))
            k.lg("ds_read_b64 %s, v%d offset:%d" % (vr(BF[buf] + 4 * i, 2), T + 4, 512 * i + 64 * ri))
            s[("B", i)] = k.lg("ds_read_b64 %s, v%d offset:%d" % (vr(BF[buf] + 4 * i + 2, 2), T + 4, 512 * i + 64 * ri + 8))
        return s
    cur = rdfr(0)
    touched = set()
    for ri in range(4):
        buf = ri % 2
        pairs = sorted([(a, b) for a in range(8) for b in range(8) if a + b <= 7], key=lambda p: (max(p), p))
        order = []
        rem = pairs[:]
        while rem:
            for idx, p in enumerate(rem):
                if not order or (order[-1][0] + order[-1][1]) != (p[0] + p[1]) or idx == len(rem) - 1:
                    order.append(rem.pop(idx)); break
        nxt = None
        waited = -1
        for n, (a, b) in enumerate(order):
            if n == 12 and ri < 3:
                need = max(cur.values())
                if need > waited:
                    k.wait_lg(need); waited = need
                nxt = rdfr(ri + 1)
            need = max(cur[("A", b)], cur[("B", a)])
            if need > waited:
                k.wait_lg(need); waited = need
            q = a + b
            k("v_mfma_f32_16x16x32_bf16 %s, %s, %s, %s" % (vr(AC + 4 * q, 4), vr(AF[buf] + 4 * b, 4), vr(BF[buf] + 4 * a, 4), vr(AC + 4 * q, 4) if q in touched else "0"))
            touched.add(q)
        cur = nxt
    k.signal(V_OWN, T + 8, 3)
    k.stamp()
    k("s_mul_i32 s60, s%d, %d" % (S_NH, UCS)); k("s_add_u32 s60, s60, s%d" % S_PB)
    k("v_add_u32 v%d, s60, v7" % T)
    k("s_xor_b32 s61, s%d, 1" % S_NH); k("s_mul_i32 s61, s61, %d" % UCS); k("s_add_u32 s61, s61, s%d" % S_PB)
    k("v_add_u32 v%d, s61, v7" % (T + 1))
    k("v_lshlrev_b32 v%d, 3, v%d" % (T + 2, V_LANE))
    k("s_lshl_b32 s60, s%d, 12" % S_D); k("s_lshl_b32 s61, s%d, 11" % S_NH); k("s_add_u32 s60, s60, s61"); k("s_add_u32 s60, s60, %d" % WS_YT)
    k.wait_words(V_PAR, 0, 1, 3, PT)
    L1 = k.lbl("c1"); LJ2 = k.lbl("cj")
    k("s_cmp_eq_u32 s%d, 1" % S_NH)
    k("s_cbranch_scc1 %s" % L1)
    for nh in range(2):
        if nh == 1:
            k.label(L1)
        snd, keep = AC + 16 * (1 - nh), AC + 16 * nh
        for j in range(4):
            k.lg("ds_write_b128 v%d, %s offset:%d" % (T, vr(snd + 4 * j, 4), 1024 * j))
        k.signal(V_OWN, T + 8, 4)
        k.wait_words(V_PAR, 0, 1, 4, PT)
        sq = [k.lg("ds_read_b128 %s, v%d offset:%d" % (vr(64 + 4 * j, 4), T + 1, 1024 * j)) for j in range(4)]
        for j in range(4):
            k.wait_lg(sq[j])
            for i in range(4):
                k("v_add_f32 v%d, v%d, v%d" % (64 + 4 * j + i, 64 + 4 * j + i, keep + 4 * j + i))
        if nh == 0:
            k("s_branch %s" % LJ2)
    k.label(LJ2)
    for j in range(8):
        k("v_cvt_pk_bf16_f32 v%d, v%d, v%d" % (96 + j, 64 + 2 * j, 64 + 2 * j + 1))
    for j in range(8):
        k("v_min_u32 v%d, -2, v%d" % (96 + j, 96 + j))
    for j in range(4):
        k.vm("buffer_store_dwordx2 %s, v%d, s[%d:%d], s60 offen offset:%d sc1" % (vr(96 + 2 * j, 2), T + 2, R_WS, R_WS + 3, 512 * j))
    k.stamp()
    k("v_lshrrev_b32 v%d, 4, v%d" % (T, V_LANE))
    k("v_and_b32 v%d, 15, v%d" % (T + 1, V_LANE))
    k("v_lshlrev_b32 v%d, 12, v%d" % (T + 2, T))
    k("v_lshl_add_u32 v%d, v%d, 4, v%d" % (T + 2, T + 1, T + 2))
    k("s_lshl_b32 s60, s%d, 17" % S_HP); k("s_lshl_b32 s61, s%d, 15" % bw); k("s_add_u32 s60, s60, s61")
    k("s_lshl_b32 s61, s%d, 8" % S_RB); k("s_add_u32 s60, s60, s61"); k("s_add_u32 s60, s60, %d" % WS_YT)
    k("s_add_u32 s61, s60, 16384")
    STG = BREG + 2 * UCS
    k("s_movk_i32 s66, 288")
    k("v_mul_lo_u32 v%d, v%d, s66" % (T + 3, T))
    k("v_lshl_add_u32 v%d, v%d, 4, v%d" % (T + 3, T + 1, T + 3))
    k("s_mul_i32 s66, s%d, %d" % (bw, 8 * 288 + 128)); k("s_add_u32 s66, s66, %d" % STG)
    k("v_add_u32 v%d, s66, v%d" % (T + 3, T + 3))
    k("s_movk_i32 s66, %d" % (8 * 288 + 128))
    k("v_mul_lo_u32 v%d, v%d, s66" % (T + 4, T))
    k("v_bfe_u32 v%d, v%d, 2, 2" % (T + 5, V_LANE))
    k("s_movk_i32 s66, 288")
    k("v_mul_lo_u32 v%d, v%d, s66" % (T + 5, T + 5))
    k("v_add_u32 v%d, v%d, v%d" % (T + 4, T + 4, T + 5))
    k("v_and_b32 v%d, 3, v%d" % (T + 5, V_LANE))
    k("v_lshl_add_u32 v%d, v%d, 3, v%d" % (T + 4, T + 5, T + 4))
    k("s_lshl_b32 s66, s%d, 6" % bw); k("s_add_u32 s66, s66, %d" % STG)
    k("v_add_u32 v%d, s66, v%d" % (T + 4, T + 4))
    k("v_lshlrev_b32 v%d, 11, v%d" % (T + 5, T + 1))
    k("v_lshl_add_u32 v%d, v%d, 4, v%d" % (T + 5, T, T + 5))
    k("s_lshl_b32 s66, s%d, 18" % S_RB); k("s_lshl_b32 s67, s%d, 16" % bw); k("s_add_u32 s66, s66, s67")
    k("s_lshl_b32 s67, s%d, 6" % S_HP); k("s_add_u32 s66, s66, s67"); k("s_add_u32 s66, s66, 1024")
    k("s_add_u32 s67, s66, 32768")
    k.srd(R_D, S_OUT, 2048 * 2048)
    loads = [(64 + 4 * j, 4, ["buffer_load_dwordx4 %s, v%d, s[%d:%d], s%d offen sc1" % (vr(64 + 4 * j, 4), T + 2, R_WS, R_WS + 3, 60 + j)]) for j in range(2)]
    poll_flags(k, V_FA, V_OLD, T + 8, 0x0000ffff)
    k.gather(loads, 72)
    k.stamp()
    k.wait_words(V_SY, 0, 2, 3, PT)
    for j in range(2):
        k.lg("ds_write_b128 v%d, %s offset:%d" % (T + 3, vr(64 + 4 * j, 4), 4 * 288 * j))
    k.signal(V_OWN, T + 8, 5)
    k.wait_words(V_SY, 0, 4, 5, PT)
    sq = []
    for j in range(2):
        for t in range(2):
            sq.append(k.lg("ds_read_b64_tr_b16 %s, v%d offset:%d" % (vr(80 + 4 * j + 2 * t, 2), T + 4, 32 * j + 4 * 288 * t)))
    for j in range(2):
        k.wait_lg(sq[2 * j + 1])
        for i in range(4):
            y = 80 + 4 * j + i
            k("v_lshlrev_b32 v%d, 16, v%d" % (T + 8, y))
            k("v_and_b32 v%d, 0xffff0000, v%d" % (T + 9, y))
            k("v_add_f32 v%d, v%d, v%d" % (T + 8, T + 8, UD + 8 * j + 2 * i))
            k("v_add_f32 v%d, v%d, v%d" % (T + 9, T + 9, UD + 8 * j + 2 * i + 1))
            k("v_cvt_pk_bf16_f32 v%d, v%d, v%d" % (96 + 4 * j + i, T + 8, T + 9))
        k.vm("buffer_store_dwordx4 %s, v%d, s[%d:%d], s%d offen%s" % (vr(96 + 4 * j, 4), T + 5, R_D, R_D + 3, 66 + j, OUTF[opt.get("outf", 0)]))
    if k.dbg or not opt.get("nofin"):
        k("s_waitcnt vmcnt(0)")
    k.stamp()
    k.dump_stamps(32)
```

```python
from asmlib import Asm, vr, sr

NAME = "concat_heads__linear_kernel_hedgehog__ssm_conv_s4__prompt_kernel"

WK, WV, WQ = 0, 32768, 65536
BOUNCE = 98304
BREG = 114688
DSTRIDE = 22272
UCS = 4512
KBO = 18048
WPHI = 159232
SYNC = 160256
OLDS = 160512
LDS_TOTAL = 160768
WS_FLAGS = 0
WS_UT = 0x10000
WS_YT = 0x210000
WS_OF = 0x410000
WS_KVP = 0x610000
KVP_STRIDE = 2304
WS_DBG = 0x800000
WS_SIZE = 0x1000000
S_X, S_W, S_WPHI, S_WO, S_U, S_ARE, S_AIM, S_BRE, S_BIM, S_CRE, S_CIM, S_LDT, S_DSK, S_OUT, S_DBG, S_WS = [4 + 2 * i for i in range(16)]
S_WAVE, S_RB, S_HP, S_RW = 36, 37, 38, 39
R_WS = 40
R_A = 44
R_B = 48
R_C = 52
R_D = 56
S_T0 = 60
S_STAMP = 84
OUTF = ["", " sc1", " nt", " sc0 sc1", " sc1 nt"]
LIM_LDS = 200000
LIM_GLB = 20000


class K(Asm):
    def __init__(self, dbg=False):
        super().__init__()
        self.nvm = 0
        self.nlg = 0
        self.uid = 0
        self.dbg = dbg
        self.nstamp = 0
        self.slp = 0
    def lbl(self, base):
        self.uid += 1
        return "L_%s_%d" % (base, self.uid)
    def vm(self, text):
        self(text); self.nvm += 1
        return self.nvm - 1
    def lg(self, text):
        self(text); self.nlg += 1
        return self.nlg - 1
    def wait_vm(self, seq):
        n = self.nvm - 1 - seq
        assert n >= 0
        if n <= 63:
            self("s_waitcnt vmcnt(%d)" % n)
        else:
            raise AssertionError("vmcnt overflow %d" % n)
    def wait_lg(self, seq):
        n = self.nlg - 1 - seq
        assert n >= 0
        self("s_waitcnt lgkmcnt(%d)" % min(n, 15))
    def srd(self, r, ptr, nbytes, off_sgpr=None, off_imm=0):
        if off_sgpr is None and off_imm == 0:
            self("s_mov_b32 s%d, s%d" % (r, ptr)); self("s_mov_b32 s%d, s%d" % (r + 1, ptr + 1))
        else:
            first = True
            for o in ([("s%d" % off_sgpr)] if off_sgpr is not None else []) + ([str(off_imm)] if off_imm else []):
                a, b = (ptr, ptr + 1) if first else (r, r + 1)
                self("s_add_u32 s%d, s%d, %s" % (r, a, o)); self("s_addc_u32 s%d, s%d, 0" % (r + 1, b))
                first = False
        self("s_mov_b32 s%d, %s" % (r + 2, nbytes if isinstance(nbytes, str) else hex(nbytes)))
        self("s_mov_b32 s%d, 0x00020000" % (r + 3))
    def stamp(self):
        if not self.dbg:
            return
        i = self.nstamp; self.nstamp += 1
        assert i < 16
        self("s_memrealtime s[80:81]"); self("s_waitcnt lgkmcnt(0)"); self("s_mov_b32 s%d, s80" % (S_STAMP + i))
    def dump_stamps(self, vt):
        if not self.dbg:
            return
        self("s_lshl_b32 s80, s2, 3"); self("s_add_u32 s80, s80, s%d" % S_WAVE); self("s_lshl_b32 s80, s80, 6")
        self("s_add_u32 s80, s80, %d" % WS_DBG)
        self("v_mov_b32 v%d, s80" % vt)
        self("s_mov_b64 exec, 1")
        for q in range(4):
            for i in range(4):
                self("v_mov_b32 v%d, s%d" % (vt + 4 + i, S_STAMP + 4 * q + i))
            self("buffer_store_dwordx4 %s, v%d, s[%d:%d], 0 offen offset:%d" % (vr(vt + 4, 4), vt, R_WS, R_WS + 3, 16 * q))
            self("s_waitcnt vmcnt(0)")
        self("s_mov_b64 exec, -1")
    def signal(self, vown, vtmp, val):
        self("v_mov_b32 v%d, %d" % (vtmp, val))
        self("s_mov_b64 exec, 1")
        self.lg("ds_write_b32 v%d, v%d" % (vown, vtmp))
        self("s_mov_b64 exec, -1")
    def wait_words(self, vaddr, off, nw, val, vt, first_issued=None):
        L = self.lbl("w"); D = self.lbl("wd")
        self("s_mov_b32 s%d, 0" % (S_T0 + 19))
        if first_issued is None:
            self.label(L)
            self._rdw(vaddr, off, nw, vt)
        self("s_waitcnt lgkmcnt(0)")
        if first_issued is not None:
            pass
        self._chk(nw, vt, val)
        if first_issued is None:
            self("s_cbranch_scc1 %s" % D)
            self("s_add_u32 s%d, s%d, 1" % (S_T0 + 19, S_T0 + 19))
            self("s_cmp_lt_u32 s%d, %d" % (S_T0 + 19, LIM_LDS))
            self("s_cbranch_scc1 %s" % L)
        else:
            self("s_cbranch_scc1 %s" % D)
            self.label(L)
            self._rdw(vaddr, off, nw, vt)
            self("s_waitcnt lgkmcnt(0)")
            self._chk(nw, vt, val)
            self("s_cbranch_scc1 %s" % D)
            self("s_add_u32 s%d, s%d, 1" % (S_T0 + 19, S_T0 + 19))
            self("s_cmp_lt_u32 s%d, %d" % (S_T0 + 19, LIM_LDS))
            self("s_cbranch_scc1 %s" % L)
        self.label(D)
    def wait_words2(self, vaddr, off, nw, val, vt, seq=None):
        if seq is None:
            return self.wait_words(vaddr, off, nw, val, vt)
        L = self.lbl("w"); D = self.lbl("wd")
        self.wait_lg(seq)
        self._chk(nw, vt, val)
        self("s_cbranch_scc1 %s" % D)
        self("s_mov_b32 s%d, 0" % (S_T0 + 19))
        self.label(L)
        n = self.nlg
        self._rdw(vaddr, off, nw, vt)
        self.nlg = n
        self("s_waitcnt lgkmcnt(0)")
        self._chk(nw, vt, val)
        self("s_cbranch_scc1 %s" % D)
        self("s_add_u32 s%d, s%d, 1" % (S_T0 + 19, S_T0 + 19))
        self("s_cmp_lt_u32 s%d, %d" % (S_T0 + 19, LIM_LDS))
        self("s_cbranch_scc1 %s" % L)
        self.label(D)
    def _rdw(self, vaddr, off, nw, vt):
        op = {1: "ds_read_b32", 2: "ds_read_b64", 4: "ds_read_b128"}[nw]
        return self.lg("%s %s, v%d offset:%d" % (op, vr(vt, nw), vaddr, off))
    def _chk(self, nw, vt, val):
        if nw == 4:
            self("v_min3_u32 v%d, v%d, v%d, v%d" % (vt, vt, vt + 1, vt + 2))
            self("v_min_u32 v%d, v%d, v%d" % (vt, vt, vt + 3))
        elif nw == 2:
            self("v_min_u32 v%d, v%d, v%d" % (vt, vt, vt + 1))
        self("v_readfirstlane_b32 s%d, v%d" % (S_T0 + 18, vt))
        self("s_cmp_ge_u32 s%d, %d" % (S_T0 + 18, val))

    def gather(self, loads, vt, between=None):
        n = len(loads)
        SP, SI, ST = S_T0 + 17, S_T0 + 16, S_T0 + 15
        L = self.lbl("g"); D = self.lbl("gd")
        self("s_mov_b32 s%d, %d" % (SP, (1 << n) - 1))
        self("s_mov_b32 s%d, 0" % SI)
        self.label(L)
        for p, (dst, nr, txt) in enumerate(loads):
            sk = self.lbl("gs")
            self("s_bitcmp1_b32 s%d, %d" % (SP, p))
            self("s_cbranch_scc0 %s" % sk)
            for t in txt:
                self(t)
            self.label(sk)
        self("s_waitcnt vmcnt(0)")
        for p, (dst, nr, txt) in enumerate(loads):
            if nr == 4:
                self("v_max3_u32 v%d, v%d, v%d, v%d" % (vt + p, dst, dst + 1, dst + 2))
                self("v_max_u32 v%d, v%d, v%d" % (vt + p, vt + p, dst + 3))
            elif nr == 2:
                self("v_max_u32 v%d, v%d, v%d" % (vt + p, dst, dst + 1))
        T = vt + n
        idx = list(range(n))
        if n == 1:
            self("v_mov_b32 v%d, v%d" % (T, vt))
        elif n == 2:
            self("v_max_u32 v%d, v%d, v%d" % (T, vt, vt + 1))
        else:
            self("v_max3_u32 v%d, v%d, v%d, v%d" % (T, vt, vt + 1, vt + 2))
            i = 3
            while i < n:
                if i + 1 < n:
                    self("v_max3_u32 v%d, v%d, v%d, v%d" % (T, T, vt + i, vt + i + 1)); i += 2
                else:
                    self("v_max_u32 v%d, v%d, v%d" % (T, T, vt + i)); i += 1
        self("v_cmp_eq_u32 vcc, -1, v%d" % T)
        self("s_nop 1")
        self("s_cbranch_vccz %s" % D)
        self("s_mov_b32 s%d, 0" % SP)
        for p in range(n):
            self("v_cmp_eq_u32 vcc, -1, v%d" % (vt + p))
            self("s_nop 1")
            self("s_cmp_lg_u64 vcc, 0")
            self("s_cselect_b32 s%d, %d, 0" % (ST, 1 << p))
            self("s_or_b32 s%d, s%d, s%d" % (SP, SP, ST))
        if self.slp:
            self("s_sleep %d" % self.slp)
        self("s_add_u32 s%d, s%d, 1" % (SI, SI))
        self("s_cmp_lt_u32 s%d, %d" % (SI, LIM_GLB))
        self("s_cbranch_scc1 %s" % L)
        self.label(D)

    def pg_issue(self, loads, plain=0):
        seqs = []
        for dst, nr, txt in loads:
            for t in txt:
                if t.startswith("buffer"):
                    s = self.vm(t.replace(" sc1", ["", " sc0", " nt"][plain - 1]) if plain else t)
                else:
                    self(t)
            seqs.append(s)
        return seqs
    def _pgchk(self, dst, nr, vt):
        self("v_max3_u32 v%d, v%d, v%d, v%d" % (vt, dst, dst + 1, dst + 2))
        i = 3
        while i + 1 < nr:
            self("v_max3_u32 v%d, v%d, v%d, v%d" % (vt, vt, dst + i, dst + i + 1)); i += 2
        self("v_max_u32 v%d, v%d, v%d" % (vt, vt, dst + i))
        self("v_cmp_eq_u32 vcc, -1, v%d" % vt)
    def pg_finish(self, loads, seqs, vt, consume, pre=None):
        SP, SI = S_T0 + 17, S_T0 + 16
        D = self.lbl("pgd"); L = self.lbl("pgl")
        self("s_mov_b32 s%d, 0" % SP)
        for p, (dst, nr, txt) in enumerate(loads):
            sk = self.lbl("pgs")
            self.wait_vm(seqs[p])
            if pre:
                pre(p)
            self._pgchk(dst, nr, vt)
            self("s_bitset1_b32 s%d, %d" % (SP, p))
            self("s_nop 0")
            self("s_cbranch_vccnz %s" % sk)
            self("s_bitset0_b32 s%d, %d" % (SP, p))
            consume(p)
            self.label(sk)
        self("s_cmp_eq_u32 s%d, 0" % SP)
        self("s_cbranch_scc1 %s" % D)
        self("s_mov_b32 s%d, 0" % SI)
        self.label(L)
        if self.slp:
            self("s_sleep %d" % self.slp)
        for p, (dst, nr, txt) in enumerate(loads):
            sk = self.lbl("pgr")
            self("s_bitcmp1_b32 s%d, %d" % (SP, p))
            self("s_cbranch_scc0 %s" % sk)
            for t in txt:
                self(t)
            self.label(sk)
        self("s_waitcnt vmcnt(0)")
        for p, (dst, nr, txt) in enumerate(loads):
            sk = self.lbl("pgc")
            self("s_bitcmp1_b32 s%d, %d" % (SP, p))
            self("s_cbranch_scc0 %s" % sk)
            if pre:
                pre(p)
            self._pgchk(dst, nr, vt)
            self("s_nop 1")
            self("s_cbranch_vccnz %s" % sk)
            self("s_bitset0_b32 s%d, %d" % (SP, p))
            consume(p)
            self.label(sk)
        self("s_cmp_eq_u32 s%d, 0" % SP)
        self("s_cbranch_scc1 %s" % D)
        self("s_add_u32 s%d, s%d, 1" % (SI, SI))
        self("s_cmp_lt_u32 s%d, %d" % (SI, LIM_GLB))
        self("s_cbranch_scc1 %s" % L)
        self.label(D)
        self.settle(8)


    def _pq_ld(self, p, txt, SR, PM, cnt):
        self("s_bitcmp1_b32 s%d, %d" % (SR, p))
        self("s_cselect_b64 exec, -1, s[%d:%d]" % (PM, PM + 1))
        for t in txt:
            if t.startswith("buffer") and cnt:
                s = self.vm(t)
            else:
                self(t); s = None
        return s
    def pq_issue(self, loads, SR, PM):
        seqs = [self._pq_ld(p, txt, SR, PM, True) for p, (dst, nr, txt) in enumerate(loads)]
        self("s_mov_b64 exec, -1")
        return seqs
    def pq_finish(self, loads, seqs, vt, consume, SR, PM, NB):
        SP, SI, SN, ST = S_T0 + 17, S_T0 + 16, S_T0 + 18, S_T0 + 19
        n = len(loads)
        D = self.lbl("pqd"); L = self.lbl("pql")
        def chk(p, dst, nr, sk):
            self._pgchk(dst, nr, vt)
            self("s_nop 1")
            self("s_bitcmp0_b32 vcc_hi, 31")
            self("s_cselect_b32 s%d, %d, 0" % (ST, 1 << p))
            self("s_or_b32 s%d, s%d, s%d" % (SN, SN, ST))
            self("s_bitcmp1_b32 s%d, %d" % (SR, p))
            self("s_cbranch_scc0 %s" % sk)
            self("s_cbranch_vccnz %s" % sk)
            self("s_bitset0_b32 s%d, %d" % (SP, p))
            consume(p)
            self.label(sk)
        self("s_mov_b32 s%d, %d" % (SP, (1 << n) - 1))
        self("s_mov_b32 s%d, 0" % SN)
        self("s_mov_b32 s%d, 0" % SI)
        for p, (dst, nr, txt) in enumerate(loads):
            self.wait_vm(seqs[p])
            chk(p, dst, nr, self.lbl("pqs"))
        self.label(L)
        self("s_cmp_eq_u32 s%d, 0" % SP)
        self("s_cbranch_scc1 %s" % D)
        self("s_add_u32 s%d, s%d, 1" % (SI, SI))
        self("s_cmp_ge_u32 s%d, %d" % (SI, LIM_GLB))
        self("s_cbranch_scc1 %s" % D)
        self("s_bcnt1_i32_b32 s%d, s%d" % (ST, SP))
        self("s_cmp_le_u32 s%d, %d" % (ST, NB))
        self("s_cselect_b32 s%d, -1, s%d" % (SR, SN))
        if self.slp:
            sk = self.lbl("pqz")
            self("s_and_b32 s%d, s%d, s%d" % (ST, SN, SP))
            self("s_cbranch_scc1 %s" % sk)
            self("s_sleep %d" % self.slp)
            self.label(sk)
        for p, (dst, nr, txt) in enumerate(loads):
            sk = self.lbl("pqr")
            self("s_bitcmp1_b32 s%d, %d" % (SP, p))
            self("s_cbranch_scc0 %s" % sk)
            self._pq_ld(p, txt, SR, PM, False)
            self.label(sk)
        self("s_mov_b64 exec, -1")
        self("s_waitcnt vmcnt(0)")
        for p, (dst, nr, txt) in enumerate(loads):
            sk = self.lbl("pqc")
            self("s_bitcmp1_b32 s%d, %d" % (SP, p))
            self("s_cbranch_scc0 %s" % sk)
            chk(p, dst, nr, sk)
        self("s_branch %s" % L)
        self.label(D)
        self.settle(8)


def flag_addr(k, va, T):
    k("v_and_b32 v%d, 15, v1" % T)
    k("v_lshlrev_b32 v%d, 2, v%d" % (T, T))
    k("s_lshl_b32 s60, s%d, 8" % S_HP)
    k("s_lshl_b32 s61, s%d, 8" % S_RB); k("s_add_u32 s61, s61, 4096")
    k("v_mov_b32 v%d, s60" % (T + 1)); k("v_mov_b32 v%d, s61" % (T + 2))
    k("s_mov_b32 vcc_lo, 0xffff"); k("s_mov_b32 vcc_hi, 0xffff")
    k("v_cndmask_b32 v%d, v%d, v%d, vcc" % (va, T + 2, T + 1))
    k("v_add_u32 v%d, v%d, v%d" % (va, va, T))
    k("v_lshrrev_b32 v%d, 5, v1" % T)
    k("v_lshl_add_u32 v%d, v%d, 13, v%d" % (va, T, va))


def poll_flags(k, va, vold, vt, hi_mask, issued=False):
    LP = k.lbl("pf"); LD = k.lbl("pfd"); LC = k.lbl("pfc")
    k("s_mov_b32 s%d, 0" % (S_T0 + 19))
    k("s_mov_b32 exec_lo, 0"); k("s_mov_b32 exec_hi, 0x%x" % hi_mask)
    if issued is not False:
        k("s_waitcnt vmcnt(%d)" % issued)
        k("s_branch %s" % LC)
    k.label(LP)
    k("buffer_load_dword v%d, v%d, s[%d:%d], 0 offen sc1" % (vt, va, R_WS, R_WS + 3))
    k("s_waitcnt vmcnt(0)")
    k.label(LC)
    k("v_cmp_eq_u32 vcc, v%d, v%d" % (vt, vold))
    k("s_nop 1")
    k("s_cbranch_vccz %s" % LD)
    if k.slp:
        k("s_sleep %d" % k.slp)
    k("s_add_u32 s%d, s%d, 1" % (S_T0 + 19, S_T0 + 19))
    k("s_cmp_lt_u32 s%d, %d" % (S_T0 + 19, LIM_GLB))
    k("s_cbranch_scc1 %s" % LP)
    k.label(LD)
    k("s_mov_b64 exec, -1")


def wg_map(k, mp):
    if mp == 3:
        k("s_and_b32 s60, s2, 7"); k("s_lshl_b32 s60, s60, 1"); k("s_bfe_u32 s61, s2, 0x10003"); k("s_add_u32 s%d, s60, s61" % S_RB)
        k("s_lshr_b32 s%d, s2, 4" % S_HP)
        return
    if mp == 4:
        k("s_and_b32 s60, s2, 1"); k("s_lshl_b32 s60, s60, 3"); k("s_bfe_u32 s61, s2, 0x30003"); k("s_add_u32 s%d, s60, s61" % S_RB)
        k("s_bfe_u32 s60, s2, 0x20001"); k("s_lshl_b32 s60, s60, 2"); k("s_lshr_b32 s61, s2, 6"); k("s_add_u32 s%d, s60, s61" % S_HP)
        return
    k("s_and_b32 s60, s2, 3"); k("s_lshl_b32 s60, s60, 2"); k("s_bfe_u32 s61, s2, 0x20003"); k("s_add_u32 s%d, s60, s61" % S_RB)
    k("s_bfe_u32 s60, s2, 0x10002")
    if mp == 0:
        k("s_lshl_b32 s60, s60, 3"); k("s_lshr_b32 s61, s2, 5"); k("s_add_u32 s%d, s60, s61" % S_HP)
    elif mp == 1:
        k("s_lshl_b32 s60, s60, 1"); k("s_lshr_b32 s61, s2, 6"); k("s_lshl_b32 s61, s61, 2"); k("s_add_u32 s60, s60, s61")
        k("s_bfe_u32 s61, s2, 0x10005"); k("s_add_u32 s%d, s60, s61" % S_HP)
    elif mp == 2:
        k("s_lshl_b32 s60, s60, 2"); k("s_lshr_b32 s61, s2, 7"); k("s_lshl_b32 s61, s61, 3"); k("s_add_u32 s60, s60, s61")
        k("s_bfe_u32 s61, s2, 0x20005"); k("s_add_u32 s%d, s60, s61" % S_HP)
```

```python
from common import *

V_LANE = 1
V_XO, V_WO_, V_TR, V_TRQ, V_SY, V_OWN = 2, 3, 4, 5, 6, 7
PT = 8
V_SG = 12
V_GO = 13
V_T = 16
V_WF = 32
V_AK, V_AV, V_AQ, V_P = 64, 80, 80, 64
PH0, PH1 = 96, 100
V_RF = 104
V_X = 128
S_L2E = 62


def softmax_ops(P, E, out, T):
    o = []
    k = o.append
    mx0, mx1, mn0, mn1, a, b, c, d = T, T + 1, T + 2, T + 3, T + 4, T + 5, T + 6, T + 7
    for st in range(4):
        for op, dst in (("max", (mx0, mx1)), ("min", (mn0, mn1))):
            for t in range(2):
                p = P + 8 * t
                if st == 0:
                    k("v_%s3_f32 v%d, v%d, v%d, v%d" % (op, dst[t], p, p + 1, p + 2))
                elif st < 3:
                    k("v_%s3_f32 v%d, v%d, v%d, v%d" % (op, dst[t], dst[t], p + 1 + 2 * st, p + 2 + 2 * st))
                else:
                    k("v_%s_f32 v%d, v%d, v%d" % (op, dst[t], dst[t], p + 7))
    k("v_permlane32_swap_b32 v%d, v%d" % (mx0, mx1))
    k("v_permlane32_swap_b32 v%d, v%d" % (mn0, mn1))
    k("v_max_f32 v%d, v%d, v%d" % (a, mx0, mx1))
    k("v_min_f32 v%d, v%d, v%d" % (c, mn0, mn1))
    k("v_mul_f32 v%d, s%d, v%d" % (b, S_L2E, a))
    k("v_mul_f32 v%d, s%d, v%d" % (d, S_L2E, c))
    k("v_mul_f32 v%d, s%d, v%d" % (a, S_L2E, a))
    k("v_mul_f32 v%d, s%d, v%d" % (c, S_L2E, c))
    k("v_permlane32_swap_b32 v%d, v%d" % (a, b))
    k("v_permlane32_swap_b32 v%d, v%d" % (c, d))
    mxl = (a, b); mnl = (c, d)
    S = [[T + 8, T + 9], [T + 10, T + 11]]
    seq = [(sg, t, j) for j in range(8) for sg in range(2) for t in range(2)]
    def fma(sg, t, j):
        i = 8 * t + j
        if sg == 0:
            k("v_fma_f32 v%d, v%d, s%d, -v%d" % (E + i, P + i, S_L2E, mxl[t]))
        else:
            k("v_fma_f32 v%d, -v%d, s%d, v%d" % (E + 16 + i, P + i, S_L2E, mnl[t]))
    def ex(sg, t, j):
        e = E + 16 * sg + 8 * t + j
        k("v_exp_f32 v%d, v%d" % (e, e))
    def add(sg, t, j):
        e = E + 16 * sg + 8 * t
        if j == 1:
            k("v_add_f32 v%d, v%d, v%d" % (S[sg][t], e, e + 1))
        elif j > 1:
            k("v_add_f32 v%d, v%d, v%d" % (S[sg][t], S[sg][t], e + j))
    for n in range(32 + 4):
        if n < 32:
            fma(*seq[n])
        if 2 <= n < 34:
            ex(*seq[n - 2])
        if n >= 4:
            add(*seq[n - 4])
    for sg in range(2):
        k("v_permlane32_swap_b32 v%d, v%d" % (S[sg][0], S[sg][1]))
    R = [[T, T + 1], [T + 2, T + 3]]
    for sg in range(2):
        k("v_add_f32 v%d, v%d, v%d" % (R[sg][0], S[sg][0], S[sg][1]))
    for sg in range(2):
        k("v_rcp_f32 v%d, v%d" % (R[sg][0], R[sg][0]))
    for sg in range(2):
        k("v_mov_b32 v%d, v%d" % (R[sg][1], R[sg][0]))
    for sg in range(2):
        k("v_permlane32_swap_b32 v%d, v%d" % (R[sg][0], R[sg][1]))
    for t in range(2):
        for sg in range(2):
            e = E + 16 * sg + 8 * t
            for i in range(8):
                k("v_mul_f32 v%d, v%d, v%d" % (e + i, e + i, R[sg][t]))
            for j in range(4):
                k("v_cvt_pk_bf16_f32 v%d, v%d, v%d" % (out + (2 * t + sg) * 4 + j, e + 2 * j, e + 2 * j + 1))
            k("#stage %d" % (2 * t + sg))
    return o


Q8 = "q0 q1 q2 q3 q4 q5 q6 q7"
SCHEDS = {
    0: dict(order="k0 k1 k2 k3 x0 x1 k4 k5 k6 k7 x2 x3 v0 v1 x4 x5 x6 p x7 v2 v3 v4 v5 v6 v7 " + Q8, nup=20,
            groups="k0 k1 k2 k3 k4 k5 v0 k6 k7 v1 P v2 v3 v4 v5 v6 v7",
            need="k0:1 k4:2 v0:3 k6:2 v1:3 v2:4 v5:5",
            ev={"pro": "s1:k3 w1",
                "k0": "L L,L L,L L,L L", "k1": "s2:k7 L L,L L,L,L", "k2": "L,L,p L,L", "k3": "w2 s3:v1 L,L,L,L", "k4": "L,L,p L,L",
                "k5": "w3 L,L,L,L", "v0": "L,L,L,L", "k6": "L,L,L,L", "k7": "R L,,L,", "v1": ",C,,",
                "P": ",s4:v4 p 8 w4 16", "v2": "6,6,6,6", "v3": "6,6 s5:v7,6 p,6", "v4": "w5 6,6,6,6", "v5": "6,6,6,6", "v6": "6,6,6,6", "v7": "6,6,6,6"}),
    1: dict(order="k0 k1 k2 k3 x0 x1 k4 k5 k6 k7 x2 x3 v0 v1 x4 x5 x6 p x7 v2 v3 v4 v5 v6 v7 " + Q8, nup=30,
            groups="k0 k1 k2 k3 k4 k5 v0 k6 k7 v1 P v2 v3 v4 v5 v6 v7",
            need="k0:1 k4:2 v0:3 k6:2 v1:3 v2:4 v5:5",
            ev={"pro": "s1:k3 w1",
                "k0": "L L,L L,L L,L L", "k1": "s2:k7 L L,L L,L,L", "k2": "L,L,p L,L", "k3": "w2 s3:v1 L,L,L,L", "k4": "L,L,p L,L",
                "k5": "w3 L,L,L,L", "v0": "L,L,L,L", "k6": "L,L,L,L", "k7": "R L,,L,", "v1": ",C,,",
                "P": ",s4:v4 p 8 w4 16", "v2": "6,6,6,6", "v3": "6,6 s5:v7,6 p,6", "v4": "w5 6,6,6,6", "v5": "6,6,6,6", "v6": "6,6,6,6", "v7": "6,6,6,6"}),
    2: dict(order="k0 k1 k2 k3 x0 x1 k4 k5 k6 k7 x2 x3 x4 x5 x6 x7 p v0 v1 v2 v3 v4 v5 v6 v7 " + Q8, nup=28,
            groups="k0 k1 k2 k3 k4 k5 k6 k7 P v0 v1 v2 v3 v4 v5 v6 v7",
            need="k0:1 k4:2 v0:3 v4:4",
            ev={"pro": "s1:k3 w1", "d0": "L,L,L,L",
                "k0": "L L L,L L L,L L L,L L", "k1": "s2:k7 L,,L,", "k2": "L,,p L,", "k3": "w2 L,,L,", "k4": "L,,L,",
                "k5": "L,,L,", "k6": ",,,", "k7": "R,,,s3:v3 C",
                "P": "p,w3 10", "v0": "5,5,5 s4:v7,5", "v1": "5 L,5,5,5", "v2": "5 L,5,5 p,5", "v3": "w4 5,5 L,5,5", "v4": "5 L,5,5,5", "v5": "5,5,5,5", "v6": "5,5,5,5", "v7": "5,5,5,5"}),
    3: dict(order="k0 k1 k2 k3 x0 x1 k4 k5 k6 k7 x2 x3 x4 x5 x6 x7 p v0 v1 v2 v3 v4 v5 v6 v7 " + Q8, nup=20,
            groups="k0 k1 k2 k3 k4 k5 k6 k7 P v0 v1 v2 v3 v4 v5 v6 v7",
            need="k0:1 k4:2 v0:3 v4:4",
            ev={"pro": "s1:k3 w1", "d0": "L L L,L L L,L L L,L L L",
                "k0": "L L L,L L L,L L L,L L", "k1": "s2:k7 L,,L,", "k2": "L,,p L,", "k3": "w2 L,,L,", "k4": "L,,L,",
                "k5": "L,,L,", "k6": ",,,", "k7": "R,,,s3:v3 C",
                "P": "p,w3 10", "v0": "5,5,5 s4:v7,5", "v1": "5 L,5,5,5", "v2": "5 L,5,5 p,5", "v3": "w4 5,5 L,5,5", "v4": "5 L,5,5,5", "v5": "5,5,5,5", "v6": "5,5,5,5", "v7": "5,5,5,5"}),
    4: dict(order="k0 k1 k2 k3 x0 x1 k4 k5 k6 k7 x2 x3 x4 x5 x6 x7 p v0 v1 v2 v3 v4 v5 v6 v7 " + Q8, nup=28,
            groups="k0 k1 k2 k3 k4 k5 k6 k7 P v0 v1 v2 v3 v4 v5 v6 v7",
            need="k0:1 k4:2 v0:3 v4:4",
            ev={"pro": "s1:k3 w1", "d0": "L,L,L,L",
                "k0": "L L L,L L L,L L L,L L", "k1": "s2:k7 L,L,L,L", "k2": "L,,p L,", "k3": "w2,,,", "k4": ",,,",
                "k5": ",,,", "k6": ",,,", "k7": "R,,,s3:v3 C",
                "P": "p,w3 10", "v0": "5 L,5,5 s4:v7,5", "v1": "5 L,5,5 L,5", "v2": "5 L,5,5 p L,5", "v3": "w4 5,5 L,5,5", "v4": "5 L,5,5 L,5", "v5": "5,5,5,5", "v6": "5,5,5,5", "v7": "5,5,5,5"}),
    5: dict(order="k0 v0 k1 v1 k2 v2 k3 v3 x0 x1 k4 v4 k5 v5 k6 v6 k7 v7 x2 x3 x4 x5 x6 p x7 " + Q8, nup=24,
            groups="k0 v0 k1 v1 k2 v2 k3 v3 k4 v4 k5 v5 k6 v6 k7 P v7",
            need="k0:1 k4:2",
            ev={"pro": "s1:v3 w1",
                "k0": "L L,L,L L,L", "v0": "L L,L,L L,L", "k1": "s2:v7 L,L,L,L", "v1": "L,L,L,L", "k2": "L,L,L,", "v2": "L,p,L,",
                "k3": "w2 L,,L,", "v3": "L,,L,", "k4": "s3:x4 L,,L,", "v4": "L,,L,", "k7": "R,,p,C",
                "P": ",w3 10", "v7": "6,6,6,6"}),
    6: dict(order="k0 v0 k1 v1 k2 v2 k3 v3 x0 x1 k4 v4 k5 v5 k6 v6 k7 v7 x2 x3 x4 x5 x6 p x7 " + Q8, nup=24,
            groups="k0 v0 k1 v1 k2 v2 k3 v3 k4 v4 k5 v5 k6 k7 v6 P v7",
            need="k0:1 k4:2",
            ev={"pro": "s1:v3 w1",
                "k0": "L L,L,L L,L", "v0": "L L,L,L L,L", "k1": "s2:v7 L,L,L,L", "v1": "L,L,L,L", "k2": "L,L,L,", "v2": "L,p,L,",
                "k3": "w2 L,,L,", "v3": "L,,L,", "k4": "s3:x4 L,,L,", "v4": "L,,L,", "k7": "R,,p,", "v6": ",C,,",
                "P": ",w3 10", "v7": "6,6,6,6"}),
    7: dict(order="k0 v0 k1 v1 k2 v2 k3 v3 x0 x1 k4 v4 k5 v5 k6 v6 k7 v7 x2 x3 x4 x5 x6 x7 p " + Q8, nup=24,
            groups="k0 v0 k1 v1 k2 v2 k3 v3 k4 k5 v4 k6 k7 P v5 v6 v7",
            need="k0:1 k4:2",
            ev={"pro": "s1:v3 w1", "d0": "L L,L L,L L,L L",
                "k0": "L L,L,L L,L", "v0": "L L,L,L L,L", "k1": "s2:v7 L,L,L,L", "v1": "L,,L,", "k2": "L,,L,", "v2": "L,p,L,",
                "k3": "w2 L,,L,", "v3": "L,,L,", "k4": "s3:x4 L,,L,", "v4": "L,,L,", "k7": "R,,p,C",
                "P": ",w3 10", "v5": "6,6,6,6", "v6": "6,6,6,6", "v7": "6,6,6,6"}),
    8: dict(order="k0 v0 k1 v1 x0 k2 v2 k3 v3 x1 x2 k4 k5 k6 k7 x3 x4 x5 v4 v5 v6 v7 x6 x7 p " + Q8, nup=24,
            groups="k0 v0 k1 v1 k2 v2 k3 v3 k4 k5 k6 k7 P v4 v5 v6 v7",
            need="k0:1 k2:2 k4:3 v4:4",
            ev={"pro": "s1:v1 w1", "d0": "L L,L L,s2:v3 L L,L L",
                "k0": "L L,L,L L p,L", "v0": "L L,L,L L,L", "k1": "w2 s3:k7 L,L,L,L", "v1": "L,L,L,L", "k2": "L,,L,", "v2": "L,p,L,",
                "k3": "w3 L,,L,", "v3": "L,,L,", "k4": "s4:v7 L,,L,", "k5": "L,,L,", "k7": "R,,p,C",
                "P": ",w4 10", "v4": "6,6,6,6", "v5": "6,6,6,6", "v6": "6,6,6,6", "v7": "6,6,6,6"}),
    9: dict(order="k0 v0 x0 k1 v1 x1 k2 v2 k3 v3 x2 x3 k4 v4 k5 v5 x4 x5 k6 v6 k7 v7 x6 x7 p " + Q8, nup=16,
            groups="k0 v0 k1 v1 k2 v2 k3 v3 k4 v4 k5 v5 k6 v6 k7 P v7",
            need="k0:1 k2:2 k4:3 k6:4",
            ev={"pro": "s1:v1 w1",
                "k0": "L,L,L,L", "v0": "L,L,L,L s2:v3", "k1": "L,L,L,p L", "v1": "w2 L,L,L,L", "k2": "L,L,L,L", "v2": "L,L,L,L s3:v5",
                "k3": "L,L,L,p L", "v3": "w3 L,L,L,L", "k4": "L,L,L,L", "v4": "L,,L,s4:v7", "k5": "L,L,L,p L", "v5": "w4 L,L,L,L", "k6": "L,L,L,L", "k7": "R,,,C",
                "P": ",10", "v7": "6,6,6,6"}),
    10: dict(order="k0 v0 x0 k1 v1 k2 v2 k3 v3 x1 x2 k4 v4 k5 v5 k6 v6 k7 v7 x3 x4 x5 x6 x7 p " + Q8, nup=20,
            groups="k0 v0 k1 v1 k2 v2 k3 v3 k4 v4 k5 v5 k6 v6 k7 P v7",
            need="k0:1 k4:2",
            ev={"pro": "s1:v3 w1",
                "k0": "L L,L L,L L,L L", "v0": "L,L,L,L", "k1": "L L,L L,L L,L L", "v1": "L,L,L,L", "k2": "L,L,L,L", "v2": "s2:v7 L,L,L,L",
                "k3": "L,L,L,p L", "v3": "w2 L,L,L,L", "k4": "s3:x4 L,L,L,L", "v4": "L,,L,", "k7": "R,,p,C",
                "P": ",w3 10", "v7": "6,6,6,6"}),
}


def role_a(k, opt):
    T = V_T
    aw = S_RW
    V_XD = 56
    k("s_lshl_b32 s60, s%d, 6" % S_HP)
    k("s_sub_u32 s61, %d, s60" % (512 * 3072))
    k.srd(R_B, S_W, "s61", off_sgpr=60)
    k("v_lshrrev_b32 v%d, 2, v%d" % (T + 2, V_LANE))
    k("v_and_b32 v%d, 3, v%d" % (T + 3, V_LANE))
    k("s_movk_i32 s60, 3072")
    k("v_mul_lo_u32 v%d, v%d, s60" % (V_WO_, T + 2))
    k("v_lshl_add_u32 v%d, v%d, 4, v%d" % (V_WO_, T + 3, V_WO_))
    k("s_mul_i32 s66, s%d, %d" % (aw, 16 * 3072))
    k("s_add_u32 s76, s66, 1024"); k("s_add_u32 s77, s66, 2048")
    k("s_lshl_b32 s67, s%d, 10" % aw)
    k("s_lshl_b32 s63, s%d, 1" % S_RB); k("s_add_u32 s63, s63, s%d" % S_HP)
    last = {}
    WL = {"k": (WK, 76), "v": (WV, 77), "q": (WQ, 66)}
    def micro(item):
        kind, p = item
        out = []
        if kind in WL:
            lds, go = WL[kind]
            def f():
                k("s_add_u32 s64, s63, %d" % p); k("s_and_b32 s64, s64, 7")
                k("s_mul_i32 s65, s64, %d" % (64 * 3072)); k("s_add_u32 s65, s65, s%d" % go)
                k("s_add_u32 m0, s67, %d" % (lds + p * 4096))
                last[item] = k.vm("buffer_load_dwordx4 v%d, s[%d:%d], s65 offen lds" % (V_WO_, R_B, R_B + 3))
            out.append(f)
        elif kind == "x":
            for i in range(4):
                def f(i=i):
                    if i == 0:
                        k("s_add_u32 s68, s63, %d" % p); k("s_and_b32 s68, s68, %d" % (0 if opt.get("xsame") else 7)); k("s_lshl_b32 s68, s68, 7")
                    last[item] = k.vm("buffer_load_dwordx4 %s, v%d, s[%d:%d], s68 offen offset:%d" % (vr(V_X + 16 * p + 4 * i, 4), V_XD + i, R_A, R_A + 3, 1024 * i))
                out.append(f)
        elif kind == "p":
            def f():
                k("s_mov_b32 m0, %d" % WPHI)
                last[item] = k.vm("buffer_load_dwordx4 v%d, s[%d:%d], 0 offen lds" % (15, R_C, R_C + 3))
            out.append(f)
        return out
    SCH = SCHEDS[opt.get("sch", 0)]
    order = [(s[0], int(s[1:]) if s[0] != "p" else 0) for s in SCH["order"].split()]
    mq = [f for it in order for f in micro(it)]
    NW0 = 0
    while order[NW0][0] in WL:
        NW0 += 1
    NUP = opt.get("nup", SCH["nup"])
    nb = opt.get("abar", 0)
    for n, f in enumerate(mq[:NW0]):
        if n == nb and opt.get("bar"):
            k("s_barrier")
        f()
    k("s_lshl_b32 s60, s%d, 17" % S_RB); k("s_lshl_b32 s61, s%d, 15" % aw); k("s_add_u32 s60, s60, s61")
    k.srd(R_A, S_X, 32768, off_sgpr=60)
    k("v_lshrrev_b32 v%d, 5, v%d" % (T + 7, V_LANE))
    k("v_and_b32 v%d, 28, v%d" % (V_XD, V_LANE))
    k("v_lshlrev_b32 v%d, 10, v%d" % (V_XD, V_XD))
    k("v_lshl_add_u32 v%d, v%d, 6, v%d" % (V_XD, T + 7, V_XD))
    k("v_lshl_add_u32 v%d, v%d, 4, v%d" % (V_XD, T + 3, V_XD))
    for i in range(1, 4):
        k("v_xor_b32 v%d, %d, v%d" % (V_XD + i, 0 if opt.get("nosw") else 16 * i, V_XD))
    k("s_lshl_b32 s60, s%d, 10" % S_HP)
    k.srd(R_C, S_WPHI, 1024, off_sgpr=60)
    k("v_lshlrev_b32 v15, 4, v%d" % V_LANE)
    for n, f in enumerate(mq[NW0:NUP]):
        if n + NW0 == nb and opt.get("bar"):
            k("s_barrier")
        f()
    rest = mq[NUP:]
    k("v_lshrrev_b32 v%d, 4, v%d" % (T + 4, V_LANE))
    k("v_bfe_u32 v%d, v%d, 2, 2" % (T + 9, V_LANE))
    k("v_lshl_add_u32 v%d, v%d, 5, v%d" % (T + 10, T + 7, T + 9))
    k("v_and_b32 v%d, 1, v%d" % (T + 11, T + 4))
    k("v_lshlrev_b32 v%d, 6, v%d" % (V_TR, T + 10))
    k("v_lshl_add_u32 v%d, v%d, 5, v%d" % (V_TR, T + 11, V_TR))
    k("v_lshl_add_u32 v%d, v%d, 3, v%d" % (V_TR, T + 3, V_TR))
    k("v_add_u32 v%d, 0x10000, v%d" % (V_TRQ, V_TR))
    k("v_mov_b32 v%d, %d" % (V_SY, SYNC))
    k("s_lshl_b32 s60, s%d, 2" % aw)
    k("s_add_u32 s60, s60, %d" % SYNC)
    k("v_mov_b32 v%d, s60" % V_OWN)
    k("s_mov_b32 s%d, 0x3fb8aa3b" % S_L2E)
    k("s_mov_b32 s70, 0xaaaaaaaa"); k("s_mov_b32 s71, 0xaaaaaaaa")
    k("s_mov_b32 s72, 0xcccccccc"); k("s_mov_b32 s73, 0xcccccccc")
    VPA, VSK, VSV = 62, 60, 61
    k("v_lshl_add_u32 v%d, v%d, 2, v%d" % (VPA, T + 7, T + 9))
    k("v_lshlrev_b32 v%d, 5, v%d" % (VPA, VPA))
    k("v_lshl_add_u32 v%d, v%d, 9, v%d" % (VPA, T + 11, VPA))
    k("v_lshl_add_u32 v%d, v%d, 3, v%d" % (VPA, T + 3, VPA))
    k("v_add_u32 v%d, %d, v%d" % (VPA, WPHI, VPA))
    k("v_cmp_eq_u32 s[74:75], 0, v%d" % (T + 11))
    k("v_and_b32 v%d, 31, v%d" % (VSK, V_LANE))
    k("v_lshlrev_b32 v%d, 5, v%d" % (VSK, VSK))
    k("v_lshl_add_u32 v%d, v%d, 4, v%d" % (VSK, T + 7, VSK))
    k("s_lshl_b32 s60, s%d, 12" % aw); k("s_add_u32 s60, s60, %d" % BOUNCE)
    k("v_add_u32 v%d, s60, v%d" % (VSV, VSK))
    k("v_add_u32 v%d, s67, v%d" % (VSK, VSK))
    if opt.get("aprio", 0):
        k("s_setprio %d" % opt.get("aprio", 0))
    k.stamp()
    def xreg(c, j):
        return V_X + 16 * c + 4 * j
    def dp(c, g):
        R = [V_X + 16 * c + 4 * i for i in range(4)]
        Tt = [32 + 4 * i for i in range(4)]
        ops = []
        for (src, dst, m, x) in ((R, Tt, "s[70:71]", 1), (Tt, R, "s[72:73]", 2)):
            for a in (1, 2, 3, 0):
                for w in range(4):
                    ops.append("v_cndmask_b32 v%d, v%d, v%d, %s" % (dst[a] + w, src[a] + w, src[a ^ x] + w, m))
        for p, qp in ((1, "[1,0,3,2]"), (2, "[2,3,0,1]"), (3, "[3,2,1,0]")):
            for w in range(4):
                ops.append("v_mov_b32_dpp v%d, v%d quad_perm:%s row_mask:0xf bank_mask:0xf" % (R[p] + w, R[p] + w, qp))
        if g == 0:
            k.wait_vm(last[("x", c)])
            if opt.get("exp") == 1:
                k.stamp()
        for o in ops[11 * g:11 * g + 11]:
            if not opt.get("nodp"):
                k(o)
    groups = SCH["groups"].split()
    mf = [(g[0], int(g[1:]), ks) for g in groups if g != "P" for ks in range(4)]
    wr = {}
    nd = dict(s.split(":") for s in SCH["need"].split())
    lvl = []
    for g in groups:
        if g != "P":
            lvl += [int(nd[g]) if g in nd else lvl[-1]] * 4
    st = {"have": 0, "nread": 0, "cur": -1}
    LA = opt.get("la", 4)
    def pump():
        while st["nread"] < len(mf) and st["nread"] <= st["cur"] + LA and lvl[st["nread"]] <= st["have"]:
            tr(st["nread"]); st["nread"] += 1
    def tr(i):
        kind, c, ks = mf[i]
        for t in range(2):
            off = WL[kind][0] + c * 4096 + ks * 512 + 256 * t
            wr[i] = k.lg("ds_read_b64_tr_b16 %s, v%d offset:%d" % (vr(V_RF + 4 * (i % 6) + 2 * t, 2), V_TR, off))
    KB_ = 32
    PHI = V_P
    sm = softmax_ops(V_P, 32, PHI, T)
    def smx(n):
        nonlocal sm
        while n > 0 and sm:
            s = sm[0]; sm = sm[1:]
            if s[0] == "#":
                g = int(s.split()[1])
                k.lg("ds_write_b128 v14, %s offset:%d" % (vr(PHI + 4 * g, 4), g * 4096))
            else:
                k(s); n -= 1
    pre = {}
    raw = {}
    def event(e):
        nonlocal rest
        if e == "L":
            if rest:
                rest[0](); rest = rest[1:]
        elif e == "R":
            k.wait_vm(last[("p", 0)])
            k.lg("ds_read_b64_tr_b16 %s, v%d" % (vr(48, 2), VPA))
            raw["s"] = k.lg("ds_read_b64_tr_b16 %s, v%d offset:256" % (vr(50, 2), VPA))
        elif e == "C":
            k.wait_lg(raw["s"])
            for j in range(4):
                k("v_cndmask_b32 v%d, 0, v%d, s[74:75]" % (PH0 + j, 48 + j))
                k("v_cndmask_b32 v%d, v%d, 0, s[74:75]" % (PH1 + j, 48 + j))
            k("v_mov_b32 v14, v%d" % VSK); k("v_mov_b32 v15, v%d" % VSV)
            for j in range(8):
                k("v_cvt_pk_bf16_f32 v%d, v%d, v%d" % (KB_ + j, V_AK + 2 * j, V_AK + 2 * j + 1))
        elif e[0] == "s":
            v, it = e[1:].split(":")
            k.wait_vm(last[(it[0], int(it[1:]))])
            k.signal(V_OWN, V_SG, int(v))
        elif e[0] == "p":
            pre["seq"] = k._rdw(V_SY, 0, 4, PT)
        elif e[0] == "w":
            k.wait_words2(V_SY, 0, 4, int(e[1:]), PT, pre.pop("seq", None))
            st["have"] = int(e[1:])
            pump()
        else:
            smx(int(e))
    EV = SCH["ev"]
    if opt.get("iso"):
        k("s_waitcnt vmcnt(0)")
        k.signal(V_OWN, V_SG, 1)
        k.wait_words(V_SY, 0, 4, 1, PT)
        k.stamp()
        k("s_memtime s[100:101]")
        k("s_waitcnt lgkmcnt(0)")
    for e in EV.get("pro", "").split():
        event(e)
    for i in range(4):
        dp(0, i)
        for e in EV.get("d0", ",,,").split(",")[i].split():
            event(e)
    waited = -1
    i = 0
    first = {"k": True, "v": True}
    for gi, g in enumerate(groups):
        evg = EV.get(g, ",,,").split(",")
        if g == "P":
            for n, (ph, kb) in enumerate(((PH0, KB_), (PH1, KB_ + 4))):
                k("v_mfma_f32_32x32x16_bf16 %s, %s, %s, %s" % (vr(V_P, 16), vr(ph, 4), vr(kb, 4), vr(V_P, 16) if n else "0"))
                for e in evg[n].split():
                    event(e)
            if opt.get("iso"):
                k("s_memtime s[82:83]")
                k("s_waitcnt lgkmcnt(0)")
                k("s_sub_u32 s%d, s82, s100" % (S_STAMP + 12))
                k("s_add_u32 s%d, s%d, s%d" % (S_STAMP + 12, S_STAMP + 12, S_STAMP))
            k.stamp()
            continue
        nxt = groups[gi + 1] if gi + 1 < len(groups) else "-"
        for ks in range(4):
            kind, c, _ = mf[i]
            if wr[i] > waited:
                waited = wr[i]
                k.wait_lg(waited)
            acc = {"k": V_AK, "v": V_AV}[kind]
            k("v_mfma_f32_32x32x16_bf16 %s, %s, %s, %s" % (vr(acc, 16), vr(V_RF + 4 * (i % 6), 4), vr(xreg(c, ks), 4), "0" if first[kind] else vr(acc, 16)))
            first[kind] = False
            evs = evg[ks].split()
            st["cur"] = i
            lastw = 0 if evs and evs[0][0] == "w" else -1
            for e in evs[:lastw + 1]:
                event(e)
            pump()
            if nxt[0] == "k":
                dp(int(nxt[1:]), ks)
            for e in evs[lastw + 1:]:
                event(e)
            i += 1
    assert not rest
    nleft = len(sm)
    smx(12)
    VB = 104
    for j in range(8):
        k("v_cvt_pk_bf16_f32 v%d, v%d, v%d" % (VB + j, V_AV + 2 * j, V_AV + 2 * j + 1))
    for t in range(2):
        k.lg("ds_write_b128 v15, %s offset:%d" % (vr(VB + 4 * t, 4), t * 1024))
    smx(1000)
    print("softmax ops left after GEMM:", nleft)
    lastq = last[("q", 7)]
    k.signal(V_OWN, V_SG, 9)
    k("v_lshrrev_b32 v%d, 2, v%d" % (T, V_LANE))
    k("v_and_b32 v%d, 3, v%d" % (T + 1, V_LANE))
    k("v_lshlrev_b32 v%d, 5, v%d" % (T, T))
    k("v_lshl_add_u32 v%d, v%d, 3, v%d" % (T, T + 1, T))
    k("s_lshl_b32 s60, s%d, 12" % aw)
    k("s_lshr_b32 s61, s%d, 1" % aw); k("s_lshl_b32 s61, s61, 10"); k("s_add_u32 s61, s61, %d" % BOUNCE)
    k("v_add_u32 v%d, s60, v%d" % (T + 2, T))
    k("v_add_u32 v%d, s61, v%d" % (T + 3, T))
    ONES = T + 4
    for j in range(4):
        k("v_mov_b32 v%d, 0x3f803f80" % (ONES + j))
    s_cl = k.lg("ds_read_b32 v%d, v%d offset:32" % (T + 12, V_SY))
    k.wait_words(V_SY, 0, 4, 9, PT)
    k.stamp()
    if opt.get("exp"):
        k("s_waitcnt vmcnt(0)")
        k.stamp()
        k.dump_stamps(32)
        return
    seqs = []
    for e in range(4):
        for ab in range(2):
            for t in range(2):
                seqs.append(k.lg("ds_read_b64_tr_b16 %s, v%d offset:%d" % (vr(32 + 8 * e + 4 * ab + 2 * t, 2), T + 2 + ab, (4096 if ab else 1024) * e + 512 * t)))
    k("s_lshl_b32 s60, s%d, 4" % S_HP); k("s_add_u32 s60, s60, s%d" % S_RB); k("s_mul_i32 s60, s60, %d" % KVP_STRIDE)
    k("s_add_u32 s60, s60, %d" % WS_KVP)
    k("s_lshl_b32 s61, s%d, 9" % aw)
    k("v_and_b32 v%d, 15, v%d" % (T, V_LANE))
    k("v_lshrrev_b32 v%d, 5, v%d" % (T + 8, V_LANE))
    k("v_lshlrev_b32 v%d, 4, v%d" % (T, T))
    k("v_lshl_add_u32 v%d, v%d, 8, v%d" % (T, T + 8, T))
    k("v_add_u32 v%d, s61, v%d" % (T, T))
    k("v_and_b32 v%d, 31, v%d" % (V_GO, V_LANE))
    k("v_lshlrev_b32 v%d, 4, v%d" % (V_GO, V_GO))
    k("v_mul_u32_u24 v%d, %d, v%d" % (T + 8, KVP_STRIDE, T + 8))
    k("v_add3_u32 v%d, v%d, v%d, s61" % (V_GO, V_GO, T + 8))
    k("s_lshl_b32 s61, s%d, 6" % aw); k("s_add_u32 s61, s61, 2048")
    k("v_and_b32 v%d, 0x30, v%d" % (T + 1, V_LANE))
    k("v_add_u32 v%d, s61, v%d" % (T + 1, T + 1))
    k("v_mov_b32 v15, v%d" % (T + 1))
    KV, ZZ, KS = 104, 108, 112
    for e in range(4):
        k.wait_lg(seqs[4 * e + 3])
        k("v_mfma_f32_16x16x32_bf16 %s, %s, %s, %s" % (vr(KV, 4), vr(32 + 8 * e, 4), vr(36 + 8 * e, 4), vr(KV, 4) if e else "0"))
        k("v_mfma_f32_16x16x32_bf16 %s, %s, %s, %s" % (vr(ZZ, 4), vr(32 + 8 * e, 4), vr(ONES, 4), vr(ZZ, 4) if e else "0"))
    k.wait_words2(V_SY, 32, 1, 4, T + 12, s_cl)
    k("s_mov_b32 s68, 0x0000ffff"); k("s_mov_b32 s69, 0x0000ffff")
    k("s_mov_b32 s74, 0x00010001"); k("s_mov_b32 s75, 0x00010001")
    for j in range(4):
        k("v_cvt_pk_bf16_f32 v%d, v%d, v%d" % (KS + j, KV + 2 * (j % 2), KV + 2 * (j % 2) + 1))
    for j in range(2):
        k("v_permlane16_swap_b32 v%d, v%d" % (KS + j, KS + 2 + j))
    for j in range(4):
        k("v_min_u32 v%d, -2, v%d" % (KS + j, KS + j))
    for j in range(4):
        k("v_min_u32 v%d, -2, v%d" % (ZZ + j, ZZ + j))
    k("s_mov_b64 exec, s[68:69]")
    k.vm("buffer_store_dwordx4 %s, v%d, s[%d:%d], s60 offen sc1" % (vr(KS, 4), T, R_WS, R_WS + 3))
    k("s_mov_b64 exec, s[74:75]")
    k.vm("buffer_store_dwordx4 %s, v%d, s[%d:%d], s60 offen sc1" % (vr(ZZ, 4), T + 1, R_WS, R_WS + 3))
    k("s_mov_b64 exec, -1")
    k.wait_vm(lastq)
    k.signal(V_OWN, V_SG, 10)
    k.stamp()
    k("s_lshr_b32 s60, s%d, 1" % S_HP); k("s_lshl_b32 s60, s60, 7")
    k("s_sub_u32 s61, %d, s60" % (512 * 1024))
    k.srd(R_C, S_WO, "s61", off_sgpr=60)
    k("v_lshrrev_b32 v%d, 3, v%d" % (T + 2, V_LANE))
    k("v_and_b32 v%d, 7, v%d" % (T + 3, V_LANE))
    k("v_bfe_u32 v%d, v%d, 4, 1" % (T + 4, V_LANE))
    k("v_lshlrev_b32 v%d, 2, v%d" % (T + 4, T + 4))
    k("v_xor_b32 v%d, v%d, v%d" % (T + 3, T + 3, T + 4))
    k("v_lshlrev_b32 v%d, 10, v%d" % (V_XO, T + 2))
    k("v_lshl_add_u32 v%d, v%d, 4, v%d" % (V_XO, T + 3, V_XO))
    k("s_lshl_b32 s66, s%d, 13" % aw)
    def wo1(n):
        part, i = n // 8, n % 8
        k("s_add_u32 s68, s66, %d" % ((part * 256 + 32 * i) * 1024))
        k("s_add_u32 m0, s67, %d" % ((WV, WK)[part] + i * 4096))
        return k.vm("buffer_load_dwordx4 v%d, s[%d:%d], s68 offen lds" % (V_XO, R_C, R_C + 3))
    k.wait_words(V_SY, 0, 4, 10, PT)
    if opt.get("qst"):
        k.stamp()
    if opt.get("qprio"):
        k("s_setprio %d" % opt["qprio"])
    qs = {}
    def trq(i):
        if i < 32:
            for t in range(2):
                off = (i // 4) * 4096 + (i % 4) * 512 + 256 * t
                qs[i] = k.lg("ds_read_b64_tr_b16 %s, v%d offset:%d" % (vr(V_WF + 4 * (i % 8) + 2 * t, 2), V_TRQ, off))
    LQ = 6
    for i in range(LQ):
        trq(i)
    SEL = 104
    k("v_and_b32 v%d, 15, v%d" % (T, V_LANE))
    k("v_bfe_u32 v%d, v%d, 4, 1" % (T + 1, V_LANE))
    k("v_lshlrev_b32 v%d, 3, v%d" % (T + 1, T + 1))
    k("v_sub_u32 v%d, v%d, v%d" % (T + 1, T, T + 1))
    k("v_and_b32 v%d, 1, v%d" % (T + 2, T + 1))
    k("v_lshlrev_b32 v%d, 4, v%d" % (T + 2, T + 2))
    k("v_mov_b32 v%d, 0x3f80" % (T + 3))
    k("v_lshlrev_b32 v%d, v%d, v%d" % (T + 3, T + 2, T + 3))
    k("v_ashrrev_i32 v%d, 1, v%d" % (T + 1, T + 1))
    for w in range(4):
        k("v_cmp_eq_u32 s[68:69], %d, v%d" % (w, T + 1))
        k("v_cndmask_b32 v%d, 0, v%d, s[68:69]" % (SEL + w, T + 3))
    k("v_mul_u32_u24 v%d, %d, v%d" % (T, KVP_STRIDE, T))
    k("v_add_u32 v15, v15, v%d" % T)
    wpos = opt.get("wpos", 0)
    for i in range(32):
        k.wait_lg(qs[i])
        k("v_mfma_f32_32x32x16_bf16 %s, %s, %s, %s" % (vr(V_AQ, 16), vr(V_WF + 4 * (i % 8), 4), vr(xreg(i // 4, i % 4), 4), vr(V_AQ, 16) if i else "0"))
        trq(i + LQ)
        if wpos == 0 and i % 2 == 0:
            wo1(i // 2)
        if wpos == 1 and i < 16:
            wo1(i)
        if i == 28:
            s_rdy = k.lg("ds_read_b32 v%d, v%d offset:36" % (PT, V_SY))
    if opt.get("qst"):
        k.stamp()
    k("s_mul_i32 s60, s%d, %d" % (S_HP, 16 * KVP_STRIDE)); k("s_add_u32 s60, s60, %d" % WS_KVP)
    G0 = 128
    GA = 108
    loads = []
    for p in range(8):
        loads.append((G0 + 4 * p, 4, ["s_add_u32 s68, s60, %d" % (2 * p * KVP_STRIDE),
                                      "buffer_load_dwordx4 %s, v%d, s[%d:%d], s68 offen sc1" % (vr(G0 + 4 * p, 4), V_GO, R_WS, R_WS + 3)]))
    GZ = G0 + 32
    loads.append((GZ, 4, ["buffer_load_dwordx4 %s, v15, s[%d:%d], s60 offen sc1" % (vr(GZ, 4), R_WS, R_WS + 3)]))
    def kvcons(p):
        if p < 8:
            k("v_mfma_f32_16x16x32_bf16 %s, %s, %s, %s" % (vr(GA, 4), vr(SEL, 4), vr(G0 + 4 * p, 4), vr(GA, 4)))
    for j in range(4):
        k("v_mov_b32 v%d, 0" % (GA + j))
    for j in range(8):
        k("v_cvt_pk_bf16_f32 v%d, v%d, v%d" % (KB_ + j, V_AQ + 2 * j, V_AQ + 2 * j + 1))
    k("v_mfma_f32_32x32x16_bf16 %s, %s, %s, 0" % (vr(V_P, 16), vr(PH0, 4), vr(KB_, 4)))
    k("v_mfma_f32_32x32x16_bf16 %s, %s, %s, %s" % (vr(V_P, 16), vr(PH1, 4), vr(KB_ + 4, 4), vr(V_P, 16)))
    sm = [s for s in softmax_ops(V_P, 32, PHI, T) if s[0] != "#"]
    gpos = opt.get("gpos", 0)
    smx(gpos)
    k.wait_words2(V_SY, 36, 1, 1, PT, s_rdy)
    gs = k.pg_issue(loads, opt.get("kpl", 0))
    if opt.get("qst"):
        k.stamp()
    if wpos == 2:
        for i in range(16):
            smx(10)
            wo1(i)
    smx(1000)
    k.stamp()
    k("v_and_b32 v%d, 15, v%d" % (T, V_LANE))
    k("v_lshrrev_b32 v%d, 4, v%d" % (T + 2, V_LANE))
    k("v_lshlrev_b32 v%d, 5, v%d" % (T, T))
    k("v_lshl_add_u32 v%d, v%d, 3, v%d" % (T, T + 2, T))
    k("s_lshl_b32 s61, s%d, 12" % aw); k("s_add_u32 s61, s61, %d" % BOUNCE)
    k("v_add_u32 v%d, s61, v%d" % (T, T))
    k("v_and_b32 v%d, 31, v%d" % (T + 1, V_LANE))
    k("v_lshrrev_b32 v%d, 5, v%d" % (T + 2, V_LANE))
    k("v_lshlrev_b32 v%d, 5, v%d" % (T + 1, T + 1))
    k("v_lshl_add_u32 v%d, v%d, 4, v%d" % (T + 1, T + 2, T + 1))
    k("v_add_u32 v%d, %d, v%d" % (T + 1, BOUNCE, T + 1))
    k.pg_finish(loads, gs, T + 8, kvcons)
    k.stamp()
    for step in (8, 4, 2, 1):
        for j in range(4):
            k("v_add_f32_dpp v%d, v%d, v%d row_ror:%d row_mask:0xf bank_mask:0xf" % (GZ + j, GZ + j, GZ + j, step))
        if step == 4:
            k("v_cvt_pk_bf16_f32 v%d, v%d, v%d" % (T + 4, GA, GA + 1)); k("v_cvt_pk_bf16_f32 v%d, v%d, v%d" % (T + 5, GA + 2, GA + 3))
            k.lg("ds_write_b64 v%d, %s" % (T, vr(T + 4, 2)))
    k("v_cvt_pk_bf16_f32 v%d, v%d, v%d" % (T + 6, GZ, GZ + 1)); k("v_cvt_pk_bf16_f32 v%d, v%d, v%d" % (T + 7, GZ + 2, GZ + 3))
    k.lg("ds_write_b64 v%d, %s offset:512" % (T, vr(T + 6, 2)))
    k.signal(V_OWN, V_SG, 11)
    k("s_lshl_b32 s60, s%d, 2" % S_RB); k("s_add_u32 s60, s60, s%d" % aw); k("s_lshl_b32 s60, s60, 4"); k("s_add_u32 s60, s60, s%d" % S_HP)
    k("s_lshl_b32 s60, s60, 11"); k("s_add_u32 s60, s60, %d" % WS_OF)
    k("v_lshlrev_b32 v15, 4, v%d" % V_LANE)
    k("s_mov_b32 s61, 0x358637bd")
    k.wait_words(V_SY, 0, 4, 11, PT)
    seqs = [k.lg("ds_read_b128 %s, v%d offset:%d" % (vr(32 + 4 * g, 4), T + 1, 4096 * g)) for g in range(4)]
    s_rb = k.lg("ds_read_b32 v%d, v%d offset:40" % (PT, V_SY))
    D0 = (48, 80)
    for t in range(2):
        k.wait_lg(seqs[2 * t + 1])
        k("v_mfma_f32_32x32x16_bf16 %s, %s, %s, 0" % (vr(D0[t], 16), vr(32 + 8 * t, 4), vr(PHI + 8 * t, 4)))
        k("v_mfma_f32_32x32x16_bf16 %s, %s, %s, %s" % (vr(D0[t], 16), vr(36 + 8 * t, 4), vr(PHI + 8 * t + 4, 4), vr(D0[t], 16)))
    k("v_lshrrev_b32 v%d, 5, v%d" % (T, V_LANE))
    k("v_bfe_u32 v%d, v%d, 2, 2" % (T + 1, V_LANE))
    k("v_lshl_add_u32 v%d, v%d, 3, v%d" % (T, T, T + 1))
    k("v_lshlrev_b32 v%d, 7, v%d" % (T, T))
    k("v_bfe_u32 v%d, v%d, 3, 1" % (T + 1, V_LANE))
    k("v_lshl_add_u32 v%d, v%d, 6, v%d" % (T, T + 1, T))
    k("v_bfe_u32 v%d, v%d, 4, 1" % (T + 1, V_LANE))
    k("v_lshl_add_u32 v%d, v%d, 5, v%d" % (T, T + 1, T))
    k("v_and_b32 v%d, 3, v%d" % (T + 1, V_LANE))
    k("v_lshl_add_u32 v%d, v%d, 3, v%d" % (T, T + 1, T))
    OP = 96
    k("s_lshl_b32 s64, s%d, 2" % S_RB); k("s_and_b32 s68, s%d, 1" % S_HP); k("s_lshl_b32 s68, s68, 1"); k("s_add_u32 s64, s64, s68")
    k("s_and_b32 s68, s%d, 1" % aw); k("s_add_u32 s65, s64, s68")
    k("s_lshr_b32 s68, s%d, 1" % aw)
    k("s_lshl_b32 s64, s65, 1"); k("s_add_u32 s64, s64, s68"); k("s_lshl_b32 s64, s64, 14"); k("s_add_u32 s64, s64, %d" % WS_OF)
    k("v_lshlrev_b32 v%d, 11, v%d" % (T + 10, V_LANE))
    k("s_mov_b32 s72, 0"); k("s_mov_b32 s73, 0x80000000")
    k.wait_words2(V_SY, 40, 1, 1, PT, s_rb)
    if opt.get("pq"):
        k("s_mov_b64 exec, 0xff")
        s_pr = k.vm("buffer_load_dword v%d, v%d, s[%d:%d], s64 offen offset:2044 sc1" % (T + 11, T + 10, R_WS, R_WS + 3))
        k("s_mov_b64 exec, -1")
    for t in range(2):
        k("v_add_f32 v%d, s61, v%d" % (T + 4 + t, D0[t] + 8))
        k("v_rcp_f32 v%d, v%d" % (T + 4 + t, T + 4 + t))
        for i in range(8):
            k("v_mul_f32 v%d, v%d, v%d" % (D0[t] + i, D0[t] + i, T + 4 + t))
        for j in range(4):
            k("v_cvt_pk_bf16_f32 v%d, v%d, v%d" % (OP + 4 * t + j, D0[t] + 2 * j, D0[t] + 2 * j + 1))
        for j in range(4):
            k("v_min_u32 v%d, -2, v%d" % (OP + 4 * t + j, OP + 4 * t + j))
        k.vm("buffer_store_dwordx4 %s, v15, s[%d:%d], s60 offen offset:%d%s" % (vr(OP + 4 * t, 4), R_WS, R_WS + 3, 1024 * t, "" if opt.get("rpl") == 2 else " sc1"))
    k.stamp()
    k("s_lshr_b32 s61, s%d, 1" % aw)
    k("s_xor_b32 s60, s61, 1"); k("s_lshl_b32 s60, s60, 15")
    k("v_add_u32 v%d, s60, v%d" % (T, T))
    k("v_xor_b32 v%d, 64, v%d" % (T + 1, T))
    WF = 128
    for ks in range(16):
        for ct in range(2):
            for t in range(2):
                k.lg("ds_read_b64_tr_b16 %s, v%d offset:%d" % (vr(WF + 8 * ks + 4 * ct + 2 * t, 2), T + ct, 2048 * ks + 512 * t))
    k("s_mov_b32 s60, s64"); k("s_mov_b32 s70, s65")
    G1 = 32
    AC = (96, 112)
    loads = []
    for p in range(8):
        loads.append((G1 + 8 * p, 8, ["s_add_u32 s68, s60, %d" % ((p // 2) * 4096)] +
                      ["buffer_load_dwordx4 %s, v15, s[%d:%d], s68 offen offset:%d sc1" % (vr(G1 + 8 * p + 4 * t, 4), R_WS, R_WS + 3, (p % 2) * 2048 + 1024 * t) for t in range(2)]))
    if opt.get("rpl"):
        loads = [(a, b, [t.replace(" sc1", " sc0") for t in c]) for a, b, c in loads]
    def ocons(p):
        for ks in (2 * p, 2 * p + 1):
            for ct in range(2):
                k("v_mfma_f32_32x32x16_bf16 %s, %s, %s, %s" % (vr(AC[ct], 16), vr(WF + 8 * ks + 4 * ct, 4), vr(G1 + 4 * ks, 4), vr(AC[ct], 16)))
    if opt.get("odly"):
        k("s_sleep %d" % opt.get("odly"))
    if opt.get("pq"):
        k.wait_vm(s_pr)
        k("v_cmp_ne_u32 vcc, -1, v%d" % (T + 11))
        k("s_nop 1")
        k("s_and_b32 s74, vcc_lo, 0xff")
        k("s_bcnt1_i32_b32 s75, s74")
        k("s_cmp_ge_u32 s75, %d" % (8 - opt["pq"]))
        k("s_cselect_b32 s74, -1, s74")
        gs = k.pq_issue(loads, 74, 72)
    else:
        gs = k.pg_issue(loads, opt.get("opl", 0))
    for j in range(32):
        k("v_mov_b32 v%d, 0" % (96 + j))
    k("s_lshl_b32 s71, s%d, 12" % aw); k("s_add_u32 s71, s71, %d" % WQ)
    k("v_add_u32 v%d, s71, v15" % T)
    k("s_xor_b32 s71, s71, 8192")
    k("v_add_u32 v%d, s71, v15" % (T + 1))
    k("v_xor_b32 v%d, 8, v%d" % (T + 2, V_OWN))
    k("s_lshl_b32 s70, s70, 16")
    k("s_lshr_b32 s69, s%d, 1" % S_HP); k("s_lshl_b32 s69, s69, 7"); k("s_add_u32 s70, s70, s69")
    k("s_lshl_b32 s69, s61, 6"); k("s_add_u32 s70, s70, s69")
    k("v_and_b32 v%d, 31, v%d" % (T + 3, V_LANE))
    k("v_lshrrev_b32 v%d, 5, v%d" % (T + 4, V_LANE))
    k("v_lshlrev_b32 v%d, 11, v%d" % (T + 3, T + 3))
    k("v_lshl_add_u32 v%d, v%d, 4, v%d" % (T + 3, T + 4, T + 3))
    k.srd(R_D, S_OUT, 2048 * 2048)
    k("s_waitcnt lgkmcnt(0)")
    if opt.get("pq"):
        k.pq_finish(loads, gs, T + 8, ocons, 74, 72, opt["pq"])
    else:
        k.pg_finish(loads, gs, T + 8, ocons)
    k.stamp()
    L1 = k.lbl("kh1"); LJ = k.lbl("khj")
    k("s_cmp_eq_u32 s61, 1")
    k.settle(12)
    k("s_cbranch_scc1 %s" % L1)
    FIN = 32
    for kh in range(2):
        if kh == 1:
            k.label(L1, clear=True)
        snd, keep = AC[1 - kh], AC[kh]
        for j in range(4):
            k.lg("ds_write_b128 v%d, %s offset:%d" % (T, vr(snd + 4 * j, 4), 1024 * j))
        k.signal(V_OWN, V_SG, 12)
        k.wait_words(T + 2, 0, 1, 12, PT)
        seqs = [k.lg("ds_read_b128 %s, v%d offset:%d" % (vr(48 + 4 * j, 4), T + 1, 1024 * j)) for j in range(4)]
        for j in range(4):
            k.wait_lg(seqs[j])
            for i in range(4):
                k("v_add_f32 v%d, v%d, v%d" % (48 + 4 * j + i, 48 + 4 * j + i, keep + 4 * j + i))
        if kh == 0:
            k("s_branch %s" % LJ)
    k.label(LJ)
    for j in range(8):
        k("v_cvt_pk_bf16_f32 v%d, v%d, v%d" % (FIN + j, 48 + 2 * j, 48 + 2 * j + 1))
    for b in (0, 4):
        k("v_permlane32_swap_b32 v%d, v%d" % (FIN + b, FIN + b + 2))
        k("v_permlane32_swap_b32 v%d, v%d" % (FIN + b + 1, FIN + b + 3))
    for b in (0, 1):
        k.vm("buffer_store_dwordx4 %s, v%d, s[%d:%d], s70 offen offset:%d%s" % (vr(FIN + 4 * b, 4), T + 3, R_D, R_D + 3, 32 * b, OUTF[opt.get("outf", 0)]))
    if k.dbg or not opt.get("nofin"):
        k("s_waitcnt vmcnt(0)")
    k.stamp()
    k.dump_stamps(32)
```

```python
from common import *
import math, struct

def f2u(f):
    return struct.unpack("<I", struct.pack("<f", f))[0]

V_LANE = 1
V_OLD, V_FA = 2, 3
V_SY, V_OWN, V_PAR = 4, 5, 6
V_UF = 8
V_DS = 16
V_LF = 20
T = 192
PT = 24
S_D, S_NH, S_DI, S_PB = 62, 63, 64, 65


def role_b(k, opt):
    bw = S_RW
    if opt.get("no_b"):
        k("s_endpgm")
    if opt.get("bprio", 3):
        k("s_setprio %d" % opt.get("bprio", 3))
    k("s_lshl_b32 s60, s%d, 17" % S_RB); k("s_lshl_b32 s61, s%d, 15" % bw); k("s_add_u32 s60, s60, s61")
    k("s_lshl_b32 s61, s%d, 6" % S_HP); k("s_add_u32 s60, s60, s61")
    k.srd(R_A, S_U, 32768 - 960, off_sgpr=60)
    k("v_lshrrev_b32 v%d, 2, v%d" % (T, V_LANE))
    k("v_and_b32 v%d, 3, v%d" % (T + 1, V_LANE))
    k("v_lshlrev_b32 v%d, 10, v%d" % (T + 2, T))
    k("v_lshl_add_u32 v%d, v%d, 4, v%d" % (T + 2, T + 1, T + 2))
    k("s_lshl_b32 s68, s%d, 11" % bw); k("s_add_u32 s68, s68, %d" % BREG)
    SU = {}
    k("v_mov_b32 v%d, v%d" % (T + 56, T + 2))
    def uld():
        k("s_mov_b32 m0, s68")
        k.vm("buffer_load_dwordx4 v%d, s[%d:%d], 0 offen lds" % (T + 56, R_A, R_A + 3))
        k("s_add_u32 m0, s68, 1024")
        k("s_mov_b32 s60, 16384")
        SU["s"] = k.vm("buffer_load_dwordx4 v%d, s[%d:%d], s60 offen lds" % (T + 56, R_A, R_A + 3))
    if opt.get("bar") != 4:
        uld()
    if opt.get("bcut") == 1:
        k("s_barrier") if opt.get("bar") == 1 and 1 < 3 else 0
        k("s_waitcnt vmcnt(0)"); k("s_endpgm")
    k("s_and_b32 s%d, s%d, 1" % (S_NH, bw))
    k("s_lshr_b32 s%d, s%d, 1" % (S_DI, bw))
    k("s_lshl_b32 s%d, s%d, 5" % (S_D, S_HP)); k("s_lshl_b32 s60, s%d, 1" % S_RB); k("s_add_u32 s%d, s%d, s60" % (S_D, S_D))
    k("s_lshl_b32 s60, s%d, 1" % S_D)
    k("s_load_dword s66, s[%d:%d], s60" % (S_LDT, S_LDT + 1))
    k("s_mov_b32 s67, s%d" % S_D)
    k("s_add_u32 s%d, s%d, s%d" % (S_D, S_D, S_DI))
    k("s_mul_i32 s%d, s%d, %d" % (S_PB, S_DI, DSTRIDE)); k("s_add_u32 s%d, s%d, %d" % (S_PB, S_PB, BREG))
    k("s_lshl_b32 s60, s%d, 8" % S_D); k("s_lshl_b32 s61, s%d, 7" % S_NH); k("s_add_u32 s60, s60, s61")
    k("v_lshlrev_b32 v%d, 1, v%d" % (T + 3, V_LANE))
    PR = 28
    for i, sp in enumerate((S_ARE, S_AIM, S_BRE, S_BIM, S_CRE, S_CIM)):
        r = (R_B, R_C)[i % 2]
        k.srd(r, sp, 131072)
        s_par = k.vm("buffer_load_ushort v%d, v%d, s[%d:%d], s60 offen" % (PR + i, T + 3, r, r + 3))
    if opt.get("bcut") == 2:
        k("s_barrier") if opt.get("bar") == 1 and 2 < 3 else 0
        k("s_waitcnt vmcnt(0)"); k("s_endpgm")
    if opt.get("bar") == 1:
        k("s_barrier")
    flag_addr(k, V_FA, T + 5)
    k("s_mov_b32 exec_hi, 0")
    k.vm("buffer_load_dword v%d, v%d, s[%d:%d], 0 offen sc1" % (V_OLD, V_FA, R_WS, R_WS + 3))
    k("s_mov_b32 exec_hi, -1")
    k.srd(R_B, S_DSK, 1024)
    k("v_and_b32 v%d, 0x30, v%d" % (T + 4, V_LANE))
    k("s_lshl_b32 s60, s%d, 6" % S_HP)
    k.vm("buffer_load_dwordx4 %s, v%d, s[%d:%d], s60 offen" % (vr(V_DS, 4), T + 4, R_B, R_B + 3))
    if opt.get("bcut") == 3:
        k("s_barrier") if opt.get("bar") == 1 and 3 < 3 else 0
        k("s_waitcnt vmcnt(0)"); k("s_endpgm")
    if opt.get("bar") == 2:
        k("s_barrier")
    k("v_lshlrev_b32 v7, 4, v%d" % V_LANE)
    SEN = 52
    for j in range(4):
        k("v_mov_b32 v%d, -1" % (SEN + j))
    SE = vr(SEN, 4)
    def clear_kv():
        k("s_lshl_b32 s60, s%d, 4" % S_HP); k("s_add_u32 s60, s60, s%d" % S_RB); k("s_mul_i32 s60, s60, %d" % KVP_STRIDE)
        k("s_add_u32 s60, s60, %d" % WS_KVP)
        k("s_mul_i32 s61, s%d, %d" % (bw, KVP_STRIDE // 4)); k("s_add_u32 s61, s61, s60")
        k("s_mov_b32 exec_hi, 15")
        k.vm("buffer_store_dwordx4 %s, v7, s[%d:%d], s61 offen sc1" % (SE, R_WS, R_WS + 3))
        k("s_mov_b32 exec_hi, -1")
    SE2 = T + 32
    def clear_o():
        k("s_lshl_b32 s60, s%d, 2" % S_RB); k("s_add_u32 s60, s60, s%d" % bw); k("s_lshl_b32 s60, s60, 4"); k("s_add_u32 s60, s60, s%d" % S_HP)
        k("s_lshl_b32 s60, s60, 11"); k("s_add_u32 s60, s60, %d" % WS_OF); k("s_add_u32 s61, s60, 32768")
        for j in range(4):
            k("v_mov_b32 v%d, -1" % (SE2 + j))
        for j in range(4):
            k("buffer_store_dwordx4 %s, v7, s[%d:%d], s%d offen offset:%d sc1" % (vr(SE2, 4), R_WS, R_WS + 3, 60 + j // 2, 1024 * (j % 2)))
    def rbp(chk, loop=False, nv=0):
        Ls = k.lbl("rbs"); Li = k.lbl("rbi"); Lt = k.lbl("rbt")
        k("s_cmp_eq_u32 s76, 0")
        k("s_cbranch_scc1 %s" % Ls)
        k("s_mov_b32 exec_lo, 0xffff0000"); k("s_mov_b32 exec_hi, 0")
        if chk:
            k("s_waitcnt vmcnt(%d)" % nv)
            k.label(Lt)
            k("v_cmp_eq_u32 vcc, v%d, v%d" % (T + 12, V_OLD))
            k("s_nop 1")
            k("s_cbranch_vccnz %s" % Li)
            k("s_mov_b32 s76, 0")
            k("s_mov_b64 exec, s[74:75]")
            k("v_mov_b32 v%d, %d" % (T + 13, SYNC + 40)); k("v_mov_b32 v%d, 1" % (T + 14))
            k("v_add_u32 v%d, 2, v%d" % (T + 15, V_OLD))
            k("ds_write_b32 v%d, v%d" % (T + 13, T + 14))
            k("buffer_store_dword v%d, v%d, s[%d:%d], 0 offen sc1" % (T + 15, V_FA, R_WS, R_WS + 3))
            k("s_branch %s" % Ls)
            k.label(Li)
        k("buffer_load_dword v%d, v%d, s[%d:%d], 0 offen sc1" % (T + 12, V_FA, R_WS, R_WS + 3))
        if loop:
            k("s_waitcnt vmcnt(0)")
            k("s_add_u32 s76, s76, 1")
            k("s_cmp_lt_u32 s76, %d" % LIM_GLB)
            k("s_cbranch_scc1 %s" % Lt)
        k.label(Ls)
        k("s_mov_b64 exec, -1")
    k("v_mov_b32 v%d, %d" % (V_SY, SYNC + 16))
    k("s_lshl_b32 s60, s%d, 2" % bw); k("s_add_u32 s60, s60, %d" % (SYNC + 16))
    k("v_mov_b32 v%d, s60" % V_OWN)
    k("v_xor_b32 v%d, 4, v%d" % (V_PAR, V_OWN))
    k.stamp()
    k("v_and_b32 v%d, 3, v%d" % (T, V_LANE))
    k("v_bfe_u32 v%d, v%d, 2, 2" % (T + 1, V_LANE))
    k("v_and_b32 v%d, 0x30, v%d" % (T + 2, V_LANE))
    k("s_movk_i32 s60, %d" % UCS)
    k("v_mul_lo_u32 v%d, v%d, s60" % (T + 3, T))
    k("v_lshlrev_b32 v%d, 7, v%d" % (T + 1, T + 1))
    k("v_sub_u32 v%d, v%d, v%d" % (T + 3, T + 3, T + 1))
    k("v_add_u32 v%d, v%d, v%d" % (T + 3, T + 3, T + 2))
    k("s_lshl_b32 s61, s%d, 8" % S_NH); k("s_add_u32 s61, s61, s%d" % S_PB)
    k("s_add_u32 s60, s61, 384")
    k("v_add_u32 v%d, s60, v%d" % (T + 3, T + 3))
    k("v_and_b32 v%d, 15, v%d" % (T + 4, V_LANE))
    k("v_lshl_add_u32 v%d, v%d, 3, v%d" % (T + 4, T + 4, T + 2))
    k("s_add_u32 s60, s61, %d" % KBO)
    k("v_add_u32 v%d, s60, v%d" % (T + 4, T + 4))
    k("v_and_b32 v%d, 1, v%d" % (T + 6, V_LANE))
    k("v_and_b32 v%d, 62, v%d" % (T + 5, V_LANE))
    k("v_lshlrev_b32 v%d, 3, v%d" % (T + 5, T + 5))
    k("v_lshl_add_u32 v%d, v%d, 9, v%d" % (T + 5, T + 6, T + 5))
    k("v_xor_b32 v%d, 0x300, v%d" % (T + 5, T + 5))
    k("s_xor_b32 s71, s%d, 1" % S_NH); k("s_lshl_b32 s71, s71, 11")
    k("s_add_u32 s60, s71, s%d" % S_PB)
    k("v_add_u32 v%d, s60, v%d" % (T + 6, T + 5))
    CA, CB, CY, CU = T + 27, T + 28, T + 29, T + 47
    for dst, src in ((CA, T + 3), (CB, T + 4), (CY, T + 5), (CU, T + 6)):
        k("v_mov_b32 v%d, v%d" % (dst, src))
    k("v_and_b32 v%d, 15, v%d" % (T, V_LANE))
    k("v_bfe_u32 v%d, v%d, 2, 2" % (T + 1, V_LANE))
    k("v_and_b32 v%d, 3, v%d" % (T + 2, V_LANE))
    k("v_cvt_f32_u32 v%d, v%d" % (V_LF, T))
    k("v_lshlrev_b32 v%d, 4, v%d" % (T + 3, T))
    k("v_cvt_f32_u32 v%d, v%d" % (V_LF + 3, T + 3))
    k("v_lshlrev_b32 v%d, 2, v%d" % (T + 3, T + 1))
    k("v_lshl_add_u32 v%d, v%d, 1, v%d" % (T + 3, T + 2, T + 3))
    k("v_add_u32 v%d, 256, v%d" % (T + 3, T + 3))
    k("v_mov_b32 v%d, 1808" % (T + 4))
    k("v_cmp_eq_u32 vcc, 3, v%d" % (T + 2))
    k("v_cndmask_b32 v%d, v%d, v%d, vcc" % (T + 3, T + 3, T + 4))
    k("v_cvt_f32_u32 v%d, v%d" % (V_LF + 1, T + 3))
    k("v_lshlrev_b32 v%d, 8, v%d" % (T + 3, T + 1))
    k("v_lshl_add_u32 v%d, v%d, 2, v%d" % (T + 3, T + 2, T + 3))
    k("v_add_u32 v%d, 512, v%d" % (T + 3, T + 3))
    k("v_lshlrev_b32 v%d, 9, v%d" % (T + 4, T + 1))
    k("v_bfe_u32 v%d, v%d, 1, 1" % (T + 5, V_LANE))
    k("v_lshl_add_u32 v%d, v%d, 8, v%d" % (T + 4, T + 5, T + 4))
    k("v_and_b32 v%d, 1, v%d" % (T + 5, V_LANE))
    k("v_lshl_add_u32 v%d, v%d, 3, v%d" % (T + 4, T + 5, T + 4))
    k("v_cmp_lt_u32 vcc, 1, v%d" % (T + 1))
    k("v_cndmask_b32 v%d, v%d, v%d, vcc" % (T + 3, T + 3, T + 4))
    k("v_cvt_f32_u32 v%d, v%d" % (V_LF + 2, T + 3))
    UA = T + 40
    UDt = T + 48
    TT = BREG + 8192
    k("v_lshrrev_b32 v%d, 4, v%d" % (T, V_LANE))
    k("v_lshl_add_u32 v%d, v%d, 3, v%d" % (UA, T, T + 1))
    k("v_sub_u32 v%d, 27, v%d" % (UA, UA))
    k("v_lshlrev_b32 v%d, 6, v%d" % (UA, UA))
    k("v_lshl_add_u32 v%d, v%d, 3, v%d" % (UA, T + 2, UA))
    k("v_add_u32 v%d, s68, v%d" % (UA, UA))
    k("v_and_b32 v%d, 15, v%d" % (T + 4, V_LANE))
    k("v_lshlrev_b32 v%d, 6, v%d" % (UA + 1, T + 4))
    k("v_lshl_add_u32 v%d, v%d, 4, v%d" % (UA + 1, T, UA + 1))
    k("v_add_u32 v%d, s68, v%d" % (UA + 1, UA + 1))
    k("s_movk_i32 s60, 272")
    k("v_mul_lo_u32 v%d, v%d, s60" % (UA + 2, T + 4))
    k("v_lshl_add_u32 v%d, v%d, 4, v%d" % (UA + 2, T, UA + 2))
    k("s_lshl_b32 s61, s%d, 6" % bw); k("s_sub_u32 s61, %d, s61" % (TT + 192))
    k("v_add_u32 v%d, s61, v%d" % (UA + 2, UA + 2))
    k("v_mul_lo_u32 v%d, v%d, s60" % (UA + 3, T))
    k("v_lshl_add_u32 v%d, v%d, 4, v%d" % (UA + 3, T + 4, UA + 3))
    k("s_mul_i32 s61, s%d, %d" % (bw, 8 * 272)); k("s_add_u32 s61, s61, %d" % TT)
    k("v_add_u32 v%d, s61, v%d" % (UA + 3, UA + 3))
    k("v_lshlrev_b32 v%d, 12, v%d" % (UA + 4, T))
    k("v_lshl_add_u32 v%d, v%d, 4, v%d" % (UA + 4, T + 4, UA + 4))
    k("s_lshl_b32 s72, s%d, 17" % S_HP); k("s_add_u32 s72, s72, %d" % (WS_UT + 4096 - 256))
    k("s_lshl_b32 s61, s%d, 8" % S_RB); k("s_sub_u32 s72, s72, s61")
    k("s_lshl_b32 s61, s%d, 15" % bw); k("s_add_u32 s72, s72, s61")
    k("s_add_u32 s73, s72, 16384")
    k("v_mov_b32 v%d, %d" % (UA + 5, SYNC + 44))
    def ut1():
        k.wait_vm(SU["s"])
        sq = []
        for j in range(2):
            for t in range(2):
                sq.append(k.lg("ds_read_b64_tr_b16 %s, v%d offset:%d" % (vr(UDt + 4 * j + 2 * t, 2), UA, 32 * j + 256 * (1 - t))))
        for j in range(2):
            k.lg("ds_read_b128 %s, v%d offset:%d" % (vr(V_UF + 4 * j, 4), UA + 1, 1024 * j))
        for j in range(2):
            k.wait_lg(sq[2 * j + 1])
            k.lg("ds_write_b128 v%d, %s offset:%d" % (UA + 2, vr(UDt + 4 * j, 4), 16 * 272 * j))
        k("v_mov_b32 v%d, 1" % (UA + 6))
        k("s_mov_b64 exec, 1")
        k.lg("ds_add_u32 v%d, v%d" % (UA + 5, UA + 6))
        k("s_mov_b64 exec, -1")
    def ut2():
        k.wait_words(UA + 5, 0, 1, 4, PT)
        sq = [k.lg("ds_read_b128 %s, v%d offset:%d" % (vr(UDt + 4 * j, 4), UA + 3, 4 * 272 * j)) for j in range(2)]
        for j in range(2):
            k.wait_lg(sq[j])
            k.vm("buffer_store_dwordx4 %s, v%d, s[%d:%d], s%d offen sc1" % (vr(UDt + 4 * j, 4), UA + 4, R_WS, R_WS + 3, 72 + j))
    W = 160
    def pub(second=False):
        P = T + 36
        k("s_waitcnt vmcnt(0)")
        k("v_mov_b32 v%d, %d" % (P, SYNC + (48 if second else 32))); k("v_mov_b32 v%d, 1" % (P + 1))
        k("s_mov_b64 exec, 1")
        sq = k.lg("ds_add_rtn_u32 v%d, v%d, v%d" % (P + 2, P, P + 1))
        k("s_mov_b64 exec, -1")
        if second:
            k("s_lshl_b32 s74, 0x10000, s%d" % S_HP)
        else:
            k("s_lshl_b32 s74, 1, s%d" % S_RB)
        k("s_mov_b32 s75, 0")
        k("v_add_u32 v%d, 1, v%d" % (P + 3, V_OLD))
        return sq
    def pubb(sq=None, cnt=3):
        P = T + 36
        if sq is None:
            k("s_waitcnt lgkmcnt(0)")
        else:
            k.wait_lg(sq)
        k("v_readfirstlane_b32 s60, v%d" % (P + 2))
        Ls = k.lbl("nopub")
        k("s_cmp_lg_u32 s60, %d" % cnt)
        k("s_cbranch_scc1 %s" % Ls)
        k("s_mov_b64 exec, s[74:75]")
        k("buffer_store_dword v%d, v%d, s[%d:%d], 0 offen sc1" % (P + 3, V_FA, R_WS, R_WS + 3))
        k("s_mov_b64 exec, -1")
        k.label(Ls)
    def pub1():
        pub(); pubb()
        for j in range(8):
            k("v_not_b32 v%d, v%d" % (UDt + j, UDt + j))
    UL = 64
    def utg():
        k("s_lshl_b32 s60, s%d, 12" % S_D)
        k.srd(R_A, S_WS, 4096, off_sgpr=60, off_imm=WS_UT)
        k("s_mov_b32 s60, 16")
        for rd in range(4):
            k("buffer_load_dwordx4 %s, v7, s[%d:%d], 0 offen offset:%d sc1" % (vr(UL + 8 * rd, 4), R_A, R_A + 3, 1024 * rd))
            k("buffer_load_dwordx2 %s, v7, s[%d:%d], s60 offen offset:%d sc1" % (vr(UL + 8 * rd + 4, 2), R_A, R_A + 3, 1024 * rd))
    def ep(chk, iss):
        Ls = k.lbl("eps"); Li = k.lbl("epi")
        k("s_cmp_lg_u32 s77, 1")
        k("s_cbranch_scc1 %s" % Ls)
        k("s_mov_b64 exec, 0xffff")
        if chk:
            k("s_waitcnt vmcnt(0)")
            k("v_cmp_eq_u32 vcc, v%d, v%d" % (T + 30, V_OLD))
            k("s_nop 1")
            k("s_cbranch_vccnz %s" % Li)
            k("s_mov_b32 s77, 2")
            k("v_mov_b32 v%d, %d" % (T + 30, SYNC + 36)); k("v_mov_b32 v%d, 1" % (T + 31))
            k("ds_write_b32 v%d, v%d" % (T + 30, T + 31))
            k("s_mov_b64 exec, -1")
            utg()
            k("s_branch %s" % Ls)
            k.label(Li)
        if iss:
            k("buffer_load_dword v%d, v%d, s[%d:%d], 0 offen sc1" % (T + 30, V_FA, R_WS, R_WS + 3))
        k("s_mov_b64 exec, -1")
        k.label(Ls)
    k("s_mov_b32 s77, s%d" % S_NH)
    def clo():
        Ls = k.lbl("clo")
        k("s_cmp_eq_u32 s%d, 1" % S_NH)
        k("s_cbranch_scc1 %s" % Ls)
        clear_o()
        k.label(Ls)
    hooks = {}
    for name, fn, dflt in (("h_ut1", ut1, -1), ("h_ut2", ut2, 0), ("h_kvc", clear_kv, 0), ("h_pub", pub1, 6),
                           ("h_e1", lambda: ep(0, 1), 11), ("h_e2", lambda: ep(1, 1), 99), ("h_e3", lambda: ep(1, 0), 15), ("h_clo", clo, 13)):
        def wrap(fn=fn):
            if opt.get("hprio"):
                k("s_setprio %d" % opt["hprio"])
            fn()
            if opt.get("hprio"):
                k("s_setprio %d" % opt.get("bprio2", 0))
        hooks.setdefault(opt.get(name, dflt), []).append(wrap)
    if opt.get("bar") == 4:
        k("s_barrier")
        uld()
    for fn in hooks.get(-1, []):
        fn()
    if opt.get("bcut") == 4:
        k("s_barrier") if opt.get("bar") == 1 and 4 < 3 else 0
        k("s_waitcnt vmcnt(0)"); k("s_endpgm")
    k("s_setprio %d" % opt.get("bprio2", 0))
    k.stamp()
    k("s_waitcnt lgkmcnt(0)")
    k("s_lshl_b32 s60, s%d, 4" % S_DI); k("s_lshr_b32 s66, s66, s60"); k("s_lshl_b32 s66, s66, 16")
    k("s_mov_b32 s69, 0x3fb8aa3b")
    k("v_mov_b32 v%d, s66" % T)
    k("v_mul_f32 v%d, s69, v%d" % (T, T))
    k("v_exp_f32 v%d, v%d" % (T, T))
    k("v_cvt_pk_bf16_f32 v%d, v%d, v%d" % (T, T, T))
    k("v_and_b32 v%d, 0xffff0000, v%d" % (T, T))
    k.wait_vm(s_par)
    for i in range(6):
        k("v_lshlrev_b32 v%d, 16, v%d" % (PR + i, PR + i))
    for i in range(4):
        k("v_mul_f32 v%d, v%d, v%d" % (PR + i, PR + i, T))
    TB = T + 4
    k("v_mul_f32 v%d, s69, v%d" % (TB, PR))
    k("v_mul_f32 v%d, 0.15915494, v%d" % (TB + 1, PR + 1))
    k("v_mul_f32 v%d, v%d, v%d" % (TB + 2, PR + 4, PR + 2))
    k("v_mul_f32 v%d, v%d, v%d" % (TB + 3, PR + 4, PR + 3))
    k("v_fma_f32 v%d, -v%d, v%d, v%d" % (TB + 2, PR + 5, PR + 3, TB + 2))
    k("v_fma_f32 v%d, v%d, v%d, v%d" % (TB + 3, PR + 5, PR + 2, TB + 3))
    k("s_lshl_b32 s60, s%d, 10" % S_NH); k("s_add_u32 s60, s60, s%d" % S_PB); k("s_add_u32 s60, s60, %d" % KBO)
    k("v_add_u32 v%d, s60, v7" % (T + 1))
    k.lg("ds_write_b128 v%d, %s" % (T + 1, vr(TB, 4)))
    k("v_and_b32 v%d, 0x30, v%d" % (T + 2, V_LANE))
    k("v_lshlrev_b32 v%d, 2, v%d" % (T + 2, T + 2))
    k("v_add_u32 v%d, s60, v%d" % (T + 2, T + 2))
    TAB = 64
    tseq = []
    for ks in range(4):
        for j in range(4):
            tseq.append(k.lg("ds_read_b128 %s, v%d offset:%d" % (vr(TAB + 16 * ks + 4 * j, 4), T + 2, 256 * ks + 16 * j)))
    FR = 128
    VA = 40
    for ks in range(4):
        if opt.get("kst"):
            k.stamp()
        F = FR + 16 * (ks % 2)
        for j in range(4):
            k.wait_lg(tseq[4 * ks + j])
            e = TAB + 16 * ks + 4 * j
            X, PHs, SN, CS = W, W + 4, W + 8, W + 12
            for t in range(4):
                k("v_mul_f32 v%d, v%d, v%d" % (PHs + t, e + 1, V_LF + t))
            for t in range(4):
                k("v_mul_f32 v%d, v%d, v%d" % (X + t, e, V_LF + t))
            for t in range(4):
                k("v_fract_f32 v%d, v%d" % (PHs + t, PHs + t))
            for t in range(4):
                k("v_exp_f32 v%d, v%d" % (X + t, X + t))
            for t in range(4):
                k("v_sin_f32 v%d, v%d" % (SN + t, PHs + t))
            for t in range(4):
                k("v_cos_f32 v%d, v%d" % (CS + t, PHs + t))
            for t in (3, 0, 1, 2):
                k("v_mul_f32 v%d, v%d, v%d" % (SN + t, SN + t, X + t))
            for t in (3, 0, 1, 2):
                k("v_mul_f32 v%d, v%d, v%d" % (CS + t, CS + t, X + t))
            k("v_mul_f32 v%d, v%d, v%d" % (W + 16, CS + 3, e + 2))
            k("v_mul_f32 v%d, -v%d, v%d" % (W + 17, CS + 3, e + 3))
            for t in range(3):
                k("v_cvt_pk_bf16_f32 v%d, v%d, v%d" % (F + 4 * t + j, CS + t, SN + t))
            k("v_fma_f32 v%d, -v%d, v%d, v%d" % (W + 16, SN + 3, e + 3, W + 16))
            k("v_fma_f32 v%d, -v%d, v%d, v%d" % (W + 17, SN + 3, e + 2, W + 17))
            k("v_cvt_pk_bf16_f32 v%d, v%d, v%d" % (F + 12 + j, W + 16, W + 17))
            if j < 3:
                for fn in hooks.get(4 * ks + j, []):
                    fn()
        for t in range(3):
            k("v_mfma_f32_16x16x32_bf16 %s, %s, %s, %s" % (vr(VA + 4 * t, 4), vr(F + 4 * t, 4), vr(F + 12, 4), vr(VA + 4 * t, 4) if ks else "0"))
        for fn in hooks.get(4 * ks + 3, []):
            fn()
    k.stamp()
    if opt.get("exp"):
        k.dump_stamps(32)
        return
    LN1 = k.lbl("nh1"); LJ = k.lbl("nhj")
    k("s_add_u32 s60, s%d, %d" % (S_PB, KBO + 1024))
    k("v_add_u32 v%d, s60, v7" % (T + 1))
    k("s_cmp_eq_u32 s%d, 1" % S_NH)
    k("s_cbranch_scc1 %s" % LN1)
    k.wait_words(V_PAR, 0, 1, 1, PT)
    sq = [k.lg("ds_read_b128 %s, v%d offset:%d" % (vr(W + 4 * t, 4), T + 1, 1024 * t)) for t in range(3)]
    k("v_and_b32 v%d, 15, v%d" % (T + 2, V_LANE))
    k("v_lshrrev_b32 v%d, 4, v%d" % (T + 3, V_LANE))
    k("s_add_u32 s60, s%d, %d" % (S_PB, KBO))
    k("v_lshlrev_b32 v%d, 5, v%d" % (T + 2, T + 2))
    k("v_add_u32 v%d, s60, v%d" % (T + 2, T + 2))
    k("v_lshl_add_u32 v%d, v%d, 3, v%d" % (T + 4, T + 3, T + 2))
    k("v_lshl_add_u32 v%d, v%d, 9, v%d" % (T + 5, T + 3, T + 2))
    k("v_add_u32 v%d, %d, v%d" % (T + 5, 120 + 1024 - 4, T + 5))
    k("v_lshl_add_u32 v%d, v%d, 10, v%d" % (T + 6, T + 3, T + 2))
    k("v_add_u32 v%d, %d, v%d" % (T + 6, 120 - 8, T + 6))
    k("v_lshlrev_b32 v%d, 2, v%d" % (T + 7, V_LANE))
    k("v_add_u32 v%d, s60, v%d" % (T + 7, T + 7))
    k("v_mov_b32 v%d, 0" % (T + 8))
    for t in range(3):
        k.wait_lg(sq[t])
        for i in range(4):
            k("v_add_f32 v%d, v%d, v%d" % (VA + 4 * t + i, VA + 4 * t + i, W + 4 * t + i))
    Q = T + 16
    V0, V1, V2 = VA, VA + 4, VA + 8
    pk = [(V2, V2), (V2, V2 + 1), (V2 + 1, V2 + 1), (V2 + 2, V2 + 2), (V2 + 2, V2 + 3), (V2 + 3, V2 + 3),
          (V1, V1), (V1 + 1, V1 + 2), (V0, V0 + 1), (V0 + 2, V0 + 3), (V1 + 3, V1 + 3)]
    for i, (a, b) in enumerate(pk):
        k("v_cvt_pk_bf16_f32 v%d, v%d, v%d" % (Q + i, a, b))
    aa, ab, bb, cc, cd, dd = [Q + i for i in range(6)]
    k("s_mov_b32 s70, 0"); k("s_mov_b32 s71, -1")
    k("s_mov_b64 exec, s[70:71]")
    for run, (x, xy, y) in enumerate(((aa, ab, bb), (cc, cd, dd))):
        o = 128 * run
        for i, (p, q) in enumerate(((x, x), (x, x), (xy, y), (y, y))):
            k.lg("ds_write2_b32 v%d, v%d, v%d offset0:%d offset1:%d" % (T + 6, p, q, o + 2 * i, o + 2 * i + 1))
    k("s_mov_b32 exec_lo, -1"); k("s_mov_b32 exec_hi, 0")
    for i, (p, q) in enumerate(((aa, aa), (ab, bb), (cc, cc), (cd, dd))):
        k.lg("ds_write2_b32 v%d, v%d, v%d offset0:%d offset1:%d" % (T + 5, p, q, 2 * i, 2 * i + 1))
    k("s_mov_b64 exec, -1")
    k.lg("ds_write_b64 v%d, %s offset:%d" % (T + 4, vr(Q + 6, 2), 120 + 512))
    k.lg("ds_write_b64 v%d, %s offset:%d" % (T + 4, vr(Q + 8, 2), 120))
    k("s_mov_b64 exec, 0x8000")
    k.lg("ds_write_b32 v%d, v%d offset:%d" % (T + 2, Q + 10, 120 + 4088 - 480))
    k.lg("ds_write_b32 v%d, v%d offset:%d" % (T + 2, Q + 10, 120 + 4092 - 480))
    k("s_mov_b64 exec, 0x3fffffff")
    k.lg("ds_write_b32 v%d, v%d" % (T + 7, T + 8))
    k("s_mov_b64 exec, -1")
    k.signal(V_OWN, T + 8, 2)
    pub(True); pubb(None, 1)
    k("s_cmp_eq_u32 s%d, 0" % bw); k("s_cselect_b32 s76, 1, 0")
    rbp(False)
    k("s_branch %s" % LJ)
    k.label(LN1)
    k.settle(8)
    for t in range(3):
        k.lg("ds_write_b128 v%d, %s offset:%d" % (T + 1, vr(VA + 4 * t, 4), 1024 * t))
    k.signal(V_OWN, T + 8, 1)
    LW3 = k.lbl("w3"); LRD = k.lbl("rdy"); LUG = k.lbl("ug")
    k("s_cmp_eq_u32 s77, 2")
    k("s_cbranch_scc1 %s" % LUG)
    k("s_cmp_eq_u32 s%d, 3" % bw)
    k("s_cbranch_scc1 %s" % LW3)
    LP = k.lbl("poll"); LPD = k.lbl("polld")
    k("s_mov_b32 s61, 0")
    k("s_mov_b64 exec, 0xffff")
    k.label(LP)
    k("buffer_load_dword v%d, v%d, s[%d:%d], 0 offen sc1" % (T + 8, V_FA, R_WS, R_WS + 3))
    k("s_waitcnt vmcnt(0)")
    k("v_cmp_eq_u32 vcc, v%d, v%d" % (T + 8, V_OLD))
    k("s_nop 1")
    k("s_cbranch_vccz %s" % LPD)
    if opt.get("slp1", k.slp):
        k("s_sleep %d" % opt.get("slp1", k.slp))
    k("s_add_u32 s61, s61, 1")
    k("s_cmp_lt_u32 s61, %d" % LIM_GLB)
    k("s_cbranch_scc1 %s" % LP)
    k.label(LPD)
    k("s_mov_b64 exec, 1")
    k("v_mov_b32 v%d, %d" % (T + 9, SYNC + 36)); k("v_mov_b32 v%d, 1" % (T + 10))
    k.lg("ds_write_b32 v%d, v%d" % (T + 9, T + 10))
    k("s_mov_b64 exec, -1")
    k("s_branch %s" % LRD)
    k.label(LW3)
    k.wait_words(V_SY, 20, 1, 1, PT)
    k.label(LRD)
    utg()
    k.label(LUG)
    k.stamp()
    k.nvm = 8
    sq = [1, 3, 5, 7]
    k("v_add_u32 v%d, s%d, v7" % (T + 2, S_PB))
    for j in range(4):
        k("v_mov_b32 v%d, 0" % (T + 4 + j))
    k("s_mov_b64 exec, 0xffffff")
    for c in range(4):
        k.lg("ds_write_b128 v%d, %s offset:%d" % (T + 2, vr(T + 4, 4), c * UCS + 4096))
    k("s_mov_b64 exec, -1")
    for rd in range(4):
        D = UL + 8 * rd
        O = 128 + 16 * (rd % 2)
        k.wait_vm(sq[rd])
        for j in range(5):
            k("v_alignbit_b32 v%d, v%d, v%d, 16" % (O + j, D + j + 1, D + j))
        for j in range(4):
            k("v_mov_b32 v%d, v%d" % (O + 8 + j, D + 1 + j))
            k("v_mov_b32 v%d, v%d" % (O + 12 + j, O + 1 + j))
        k.lg("ds_write_b128 v%d, %s offset:%d" % (T + 2, vr(D, 4), 3 * UCS + 1024 * rd))
        k.lg("ds_write_b128 v%d, %s offset:%d" % (T + 2, vr(O, 4), 2 * UCS + 1024 * rd))
        k.lg("ds_write_b128 v%d, %s offset:%d" % (T + 2, vr(O + 8, 4), 1 * UCS + 1024 * rd))
        k.lg("ds_write_b128 v%d, %s offset:%d" % (T + 2, vr(O + 12, 4), 0 * UCS + 1024 * rd))
    k("v_add_u32 v%d, 2, v%d" % (T + 11, V_OLD))
    k("s_mov_b64 exec, s[74:75]")
    k("buffer_store_dword v%d, v%d, s[%d:%d], 0 offen sc1" % (T + 11, V_FA, R_WS, R_WS + 3))
    k("s_mov_b64 exec, -1")
    k.signal(V_OWN, T + 8, 2)
    k("s_mov_b32 s76, 0")
    k.label(LJ)
    k.wait_words(V_PAR, 0, 1, 2, PT)
    k.stamp()
    UO = T + 56
    if opt.get("dump_k"):
        pass
    AC = 32
    AF = (64, 96); BF = (128, 160)
    def rdfr(ri):
        s = {}
        buf = ri % 2
        for i in range(8):
            s[("A", i)] = k.lg("ds_read_b128 %s, v%d offset:%d" % (vr(AF[buf] + 4 * i, 4), CA, 512 * (7 - i) + 64 * ri))
            k.lg("ds_read_b64 %s, v%d offset:%d" % (vr(BF[buf] + 4 * i, 2), CB, 512 * i + 64 * ri))
            s[("B", i)] = k.lg("ds_read_b64 %s, v%d offset:%d" % (vr(BF[buf] + 4 * i + 2, 2), CB, 512 * i + 64 * ri + 8))
        return s
    cur = rdfr(0)
    touched = set()
    c_pub = opt.get("c_pub", 44); c_rb = opt.get("c_rb", 80)
    for ri in range(4):
        buf = ri % 2
        pairs = sorted([(a, b) for a in range(8) for b in range(8) if a + b <= 7], key=lambda p: (max(p), p))
        order = []
        rem = pairs[:]
        while rem:
            for idx, p in enumerate(rem):
                if not order or (order[-1][0] + order[-1][1]) != (p[0] + p[1]) or idx == len(rem) - 1:
                    order.append(rem.pop(idx)); break
        nxt = None
        waited = -1
        for n, (a, b) in enumerate(order):
            if n == 12 and ri < 3:
                need = max(cur.values())
                if need > waited:
                    k.wait_lg(need); waited = need
                nxt = rdfr(ri + 1)
            if n == 4 and ri == 0:
                for j in range(2):
                    k.lg("ds_read_b128 %s, v%d offset:%d" % (vr(UO + 4 * j, 4), CU, 3 * UCS + 1024 * (1 - j)))
            if n == opt.get("rbn", 30):
                rbp(True)
            need = max(cur[("A", b)], cur[("B", a)])
            if need > waited:
                k.wait_lg(need); waited = need
            q = a + b
            k("v_mfma_f32_16x16x32_bf16 %s, %s, %s, %s" % (vr(AC + 4 * q, 4), vr(AF[buf] + 4 * b, 4), vr(BF[buf] + 4 * a, 4), vr(AC + 4 * q, 4) if q in touched else "0"))
            touched.add(q)
        cur = nxt
    k.signal(V_OWN, T + 8, 3)
    k.stamp()
    k("s_mul_i32 s60, s%d, %d" % (S_NH, UCS)); k("s_add_u32 s60, s60, s%d" % S_PB)
    k("v_add_u32 v%d, s60, v7" % T)
    k("s_xor_b32 s61, s%d, 1" % S_NH); k("s_mul_i32 s61, s61, %d" % UCS); k("s_add_u32 s61, s61, s%d" % S_PB)
    k("v_add_u32 v%d, s61, v7" % (T + 1))
    k("s_xor_b32 s66, s%d, 1" % S_NH); k("s_lshl_b32 s66, s66, 11")
    k("s_lshl_b32 s60, s%d, 12" % S_D); k("s_add_u32 s60, s60, s66"); k("s_add_u32 s60, s60, %d" % WS_UT)
    k.wait_words(V_PAR, 0, 1, 3, PT)
    L1 = k.lbl("c1"); LJ2 = k.lbl("cj")
    k("s_cmp_eq_u32 s%d, 1" % S_NH)
    k("s_cbranch_scc1 %s" % L1)
    for nh in range(2):
        if nh == 1:
            k.label(L1)
        snd, keep = AC + 16 * (1 - nh), AC + 16 * nh
        for j in range(4):
            k.lg("ds_write_b128 v%d, %s offset:%d" % (T, vr(snd + 4 * j, 4), 1024 * j))
        k.signal(V_OWN, T + 8, 4)
        k.wait_words(V_PAR, 0, 1, 4, PT)
        sq = [k.lg("ds_read_b128 %s, v%d offset:%d" % (vr(64 + 4 * j, 4), T + 1, 1024 * j)) for j in range(4)]
        for j in range(4):
            k.wait_lg(sq[j])
            for i in range(4):
                k("v_add_f32 v%d, v%d, v%d" % (64 + 4 * j + i, 64 + 4 * j + i, keep + 4 * j + i))
        if nh == 0:
            k("s_branch %s" % LJ2)
    k.label(LJ2)
    for j in range(8):
        k("v_cvt_pk_bf16_f32 v%d, v%d, v%d" % (96 + j, 64 + 2 * j, 64 + 2 * j + 1))
    for j in range(8):
        k("v_min_u32 v%d, -2, v%d" % (96 + j, 96 + j))
    k("s_mov_b32 vcc_lo, 0x55555555"); k("s_mov_b32 vcc_hi, 0x55555555")
    for j in range(2):
        for w in range(2):
            k("v_cndmask_b32_dpp v%d, v%d, v%d, vcc quad_perm:[1,0,3,2] row_mask:0xf bank_mask:0xf" % (104 + 4 * j + w, 96 + 4 * j + 2 + w, 96 + 4 * j + w))
    k("s_not_b64 vcc, vcc")
    for j in range(2):
        for w in range(2):
            k("v_cndmask_b32_dpp v%d, v%d, v%d, vcc quad_perm:[1,0,3,2] row_mask:0xf bank_mask:0xf" % (104 + 4 * j + 2 + w, 96 + 4 * j + w, 96 + 4 * j + 2 + w))
    for j in range(2):
        for w in range(4):
            k("v_add3_u32 v%d, v%d, v%d, 1" % (104 + 4 * j + w, 104 + 4 * j + w, UO + 4 * j + w))
        k.vm("buffer_store_dwordx4 %s, v%d, s[%d:%d], s60 offen offset:%d sc1" % (vr(104 + 4 * j, 4), CY, R_WS, R_WS + 3, 1024 * (1 - j)))
    k.stamp()
    rbp(True, True, 2)
    k("v_lshrrev_b32 v%d, 4, v%d" % (T, V_LANE))
    k("v_and_b32 v%d, 15, v%d" % (T + 1, V_LANE))
    STG = BREG + 2 * UCS
    k("s_movk_i32 s66, 288")
    k("v_mul_lo_u32 v%d, v%d, s66" % (T + 3, T))
    k("v_lshl_add_u32 v%d, v%d, 4, v%d" % (T + 3, T + 1, T + 3))
    k("s_mul_i32 s66, s%d, %d" % (bw, 8 * 288 + 128)); k("s_add_u32 s66, s66, %d" % STG)
    k("v_add_u32 v%d, s66, v%d" % (T + 3, T + 3))
    k("s_movk_i32 s66, %d" % (8 * 288 + 128))
    k("v_mul_lo_u32 v%d, v%d, s66" % (T + 4, T))
    k("v_bfe_u32 v%d, v%d, 2, 2" % (T + 5, V_LANE))
    k("s_movk_i32 s66, 288")
    k("v_mul_lo_u32 v%d, v%d, s66" % (T + 5, T + 5))
    k("v_add_u32 v%d, v%d, v%d" % (T + 4, T + 4, T + 5))
    k("v_and_b32 v%d, 3, v%d" % (T + 5, V_LANE))
    k("v_lshl_add_u32 v%d, v%d, 3, v%d" % (T + 4, T + 5, T + 4))
    k("s_lshl_b32 s66, s%d, 6" % bw); k("s_add_u32 s66, s66, %d" % STG)
    k("v_add_u32 v%d, s66, v%d" % (T + 4, T + 4))
    k("v_lshlrev_b32 v%d, 11, v%d" % (T + 5, T + 1))
    k("v_lshl_add_u32 v%d, v%d, 4, v%d" % (T + 5, T, T + 5))
    k("s_lshl_b32 s66, s%d, 18" % S_RB); k("s_lshl_b32 s67, s%d, 16" % bw); k("s_add_u32 s66, s66, s67")
    k("s_lshl_b32 s67, s%d, 6" % S_HP); k("s_add_u32 s66, s66, s67"); k("s_add_u32 s66, s66, 1024")
    k("s_add_u32 s67, s66, 32768")
    k.srd(R_D, S_OUT, 2048 * 2048)
    loads = [(64 + 4 * j, 4, ["buffer_load_dwordx4 %s, v%d, s[%d:%d], s%d offen sc1" % (vr(64 + 4 * j, 4), UA + 4, R_WS, R_WS + 3, 72 + j)]) for j in range(2)]
    def dec(p):
        for w in range(4):
            k("v_add_u32 v%d, v%d, v%d" % (64 + 4 * p + w, 64 + 4 * p + w, UDt + 4 * p + w))
    if opt.get("ydly"):
        k("s_sleep %d" % opt.get("ydly"))
    if opt.get("udp", 0) == 1:
        gs = k.pg_issue(loads)
    UD = 208
    for j in range(2):
        for i in range(4):
            k("v_lshlrev_b32 v%d, 16, v%d" % (T + 8, V_UF + 4 * j + i))
            k("v_and_b32 v%d, 0xffff0000, v%d" % (T + 9, V_UF + 4 * j + i))
            k("v_lshlrev_b32 v%d, 16, v%d" % (T + 10, V_DS + i))
            k("v_and_b32 v%d, 0xffff0000, v%d" % (T + 11, V_DS + i))
            k("v_mul_f32 v%d, v%d, v%d" % (T + 8, T + 8, T + 10))
            k("v_mul_f32 v%d, v%d, v%d" % (T + 9, T + 9, T + 11))
            k("v_cvt_pk_bf16_f32 v%d, v%d, v%d" % (T + 8, T + 8, T + 9))
            k("v_lshlrev_b32 v%d, 16, v%d" % (UD + 8 * j + 2 * i, T + 8))
            k("v_and_b32 v%d, 0xffff0000, v%d" % (UD + 8 * j + 2 * i + 1, T + 8))
    if opt.get("udp", 0) == 0:
        gs = k.pg_issue(loads)
    k.pg_finish(loads, gs, 72, lambda p: None, dec)
    k.stamp()
    k.wait_words(V_SY, 0, 2, 3, PT)
    for j in range(2):
        k.lg("ds_write_b128 v%d, %s offset:%d" % (T + 3, vr(64 + 4 * j, 4), 4 * 288 * j))
    k.signal(V_OWN, T + 8, 5)
    k.wait_words(V_SY, 0, 4, 5, PT)
    sq = []
    for j in range(2):
        for t in range(2):
            sq.append(k.lg("ds_read_b64_tr_b16 %s, v%d offset:%d" % (vr(80 + 4 * j + 2 * t, 2), T + 4, 32 * j + 4 * 288 * t)))
    for j in range(2):
        k.wait_lg(sq[2 * j + 1])
        for i in range(4):
            y = 80 + 4 * j + i
            k("v_lshlrev_b32 v%d, 16, v%d" % (T + 8, y))
            k("v_and_b32 v%d, 0xffff0000, v%d" % (T + 9, y))
            k("v_add_f32 v%d, v%d, v%d" % (T + 8, T + 8, UD + 8 * j + 2 * i))
            k("v_add_f32 v%d, v%d, v%d" % (T + 9, T + 9, UD + 8 * j + 2 * i + 1))
            k("v_cvt_pk_bf16_f32 v%d, v%d, v%d" % (96 + 4 * j + i, T + 8, T + 9))
        k.vm("buffer_store_dwordx4 %s, v%d, s[%d:%d], s%d offen%s" % (vr(96 + 4 * j, 4), T + 5, R_D, R_D + 3, 66 + j, OUTF[opt.get("outf", 0)]))
    if k.dbg or not opt.get("nofin"):
        k("s_waitcnt vmcnt(0)")
    k.stamp()
    k.dump_stamps(32)
```

```python
from common import *
import math, struct

def f2u(f):
    return struct.unpack("<I", struct.pack("<f", f))[0]

V_LANE = 1
V_OLD, V_FA = 2, 3
V_SY, V_OWN, V_PAR = 4, 5, 6
V_UF = 8
V_DS = 16
V_LF = 20
T = 192
PT = 24
S_D, S_NH, S_DI, S_PB = 62, 63, 64, 65


def kgen2(k, opt, hooks, PR, TB, VA):
    Wr = lambda j: 64 + 2 * j
    BS = {256: 98, 512: 100, 768: 102, 1024: 104, 1280: 106, 1536: 108, 1792: 110}
    ZR = 112
    TP = 120
    PK = T + 8
    FRG = {3: 128, 0: 144, 1: 160, 2: 176}
    Z0 = ZR
    k("v_mul_f32 v%d, -v%d, v%d" % (Z0 + 1, PR + 4, PR + 3))
    k("v_fma_f32 v%d, -v%d, v%d, v%d" % (Z0, PR + 5, PR + 3, TB + 2))
    k("v_fma_f32 v%d, -v%d, v%d, v%d" % (Z0 + 1, PR + 5, PR + 2, Z0 + 1))
    X, PH = T + 8, T + 12
    dst = (Wr(16), Wr(1), BS[256])
    k("s_mov_b32 s60, 0x41800000"); k("s_mov_b32 s61, 0x43800000")
    k("v_mul_f32 v%d, s60, v%d" % (PH, TB + 1)); k("v_mul_f32 v%d, s61, v%d" % (PH + 2, TB + 1))
    k("v_mul_f32 v%d, s60, v%d" % (X, TB)); k("v_mul_f32 v%d, s61, v%d" % (X + 2, TB))
    for i in range(3):
        k("v_fract_f32 v%d, v%d" % (PH + i, TB + 1 if i == 1 else PH + i))
    for i in range(3):
        k("v_exp_f32 v%d, v%d" % (X + i, TB if i == 1 else X + i))
        k("v_cos_f32 v%d, v%d" % (dst[i], PH + i))
        k("v_sin_f32 v%d, v%d" % (dst[i] + 1, PH + i))
    for i in range(3):
        k("v_mul_f32 v%d, v%d, v%d" % (dst[i], dst[i], X + i))
        k("v_mul_f32 v%d, v%d, v%d" % (dst[i] + 1, dst[i] + 1, X + i))
    def cmul(D, A, B, conj=False):
        assert D != A and D != B
        if opt.get("pk"):
            k("v_pk_mul_f32 %s, %s, %s op_sel:[0,0] op_sel_hi:[1,0]" % (vr(D, 2), vr(A, 2), vr(B, 2)))
            k("v_pk_fma_f32 %s, %s, %s, %s op_sel:[1,1,0] op_sel_hi:[0,1,1] %s:[0,1,0]" % (vr(D, 2), vr(A, 2), vr(B, 2), vr(D, 2), "neg_hi" if conj else "neg_lo"))
        else:
            k("v_mul_f32 v%d, v%d, v%d" % (D, A, B))
            k("v_mul_f32 v%d, v%d, v%d" % (D + 1, A + 1, B))
            k("v_fma_f32 v%d, %sv%d, v%d, v%d" % (D, "" if conj else "-", A + 1, B + 1, D))
            k("v_fma_f32 v%d, %sv%d, v%d, v%d" % (D + 1, "-" if conj else "", A, B + 1, D + 1))
    def cvt(p, R):
        k("v_cvt_pk_bf16_f32 v%d, v%d, v%d" % (p, R, R + 1))
    def wr2(q, h, p0, p1):
        k.lg("ds_write2_b32 v%d, v%d, v%d offset0:%d offset1:%d" % (34 + q, p0, p1, 136 * h, 136 * h + 68))
    rs = {}
    def rd(t):
        for ks in range(4):
            rs[(t, ks)] = k.lg("ds_read_b128 %s, v38 offset:%d" % (vr(FRG[t] + 4 * ks, 4), 64 * ks))
    def mm(t, kss):
        for ks in kss:
            k.wait_lg(rs[(t, ks)])
            k("v_mfma_f32_16x16x32_bf16 %s, %s, %s, %s" % (vr(VA + 4 * t, 4), vr(FRG[t] + 4 * ks, 4), vr(FRG[3] + 4 * ks, 4), vr(VA + 4 * t, 4) if ks else "0"))
    slot = [0]
    def hk():
        for fn in hooks.get(slot[0], []):
            fn()
        slot[0] += 1
    hk()
    for a in range(16):
        z = ZR + 2 * (a % 4)
        if a:
            cmul(z, ZR + 2 * ((a - 1) % 4), Wr(16), True)
        cvt(PK + a, z)
        if a % 2:
            wr2(a // 4, (a // 2) % 2, PK + a - 1, PK + a)
        if a % 4 == 3 and a < 15:
            hk()
    rd(3)
    src = {2: (1, 1), 3: (2, 1), 4: (2, 2)}
    for j in range(5, 9):
        src[j] = (4, j - 4)
    for j in range(9, 16):
        src[j] = (8, j - 8)
    for m in range(16):
        if m == 0:
            k("v_mov_b32 v%d, 0x3f80" % PK)
        else:
            if m > 1:
                cmul(Wr(m), Wr(src[m][0]), Wr(src[m][1]))
            cvt(PK + m, Wr(m))
        if m % 2:
            wr2(m // 4, (m // 2) % 2, PK + m - 1, PK + m)
        if m % 4 == 3:
            hk()
    rd(0)
    nt = [0]
    def prod(p, A, B):
        d = TP + 2 * (nt[0] % 4); nt[0] += 1
        cmul(d, A, B); cvt(p, d)
    bsrc = {512: (256, 256), 768: (512, 256), 1024: (512, 512), 1280: (1024, 256), 1536: (1024, 512), 1792: (1024, 768)}
    rows = [(512, 0), (512, 4), (512, 8), (512, 12), (768, 0), (768, 4), (768, 8), (768, 12),
            (1024, 0), (1024, 8), (1280, 0), (1280, 8), (1536, 0), (1536, 8), (1792, 0), (1792, 8)]
    for m, (b, o) in enumerate(rows):
        if o == 0:
            cmul(BS[b], BS[bsrc[b][0]], BS[bsrc[b][1]]); cvt(PK + m, BS[b])
        else:
            prod(PK + m, BS[b], Wr(o))
        if m % 2:
            wr2(m // 4, (m // 2) % 2, PK + m - 1, PK + m)
        if m in (5, 7, 9, 11):
            mm(0, [(m - 5) // 2])
        if m % 4 == 3:
            hk()
    rd(2)
    prod(PK + 9, BS[1792], Wr(16))
    cvt(PK, BS[256])
    for j in range(1, 9):
        prod(PK + j, BS[256], Wr(2 * j))
        if j % 2:
            wr2(j // 2, 0, PK + j - 1, PK + j)
        else:
            wr2(j // 2 - 1, 1, PK + j, PK + 9)
        if j >= 5:
            mm(2, [j - 5])
        if j in (2, 4, 6):
            hk()
    rd(1)
    hk()
    mm(1, range(4))
    hk()
    assert slot[0] == 17, slot


def role_b(k, opt):
    bw = S_RW
    if opt.get("no_b"):
        k("s_endpgm")
    if opt.get("bprio", 3):
        k("s_setprio %d" % opt.get("bprio", 3))
    k("s_lshl_b32 s60, s%d, 17" % S_RB); k("s_lshl_b32 s61, s%d, 15" % bw); k("s_add_u32 s60, s60, s61")
    k("s_lshl_b32 s61, s%d, 6" % S_HP); k("s_add_u32 s60, s60, s61")
    k.srd(R_A, S_U, 32768 - 960, off_sgpr=60)
    k("v_lshrrev_b32 v%d, 2, v%d" % (T, V_LANE))
    k("v_and_b32 v%d, 3, v%d" % (T + 1, V_LANE))
    k("v_lshlrev_b32 v%d, 10, v%d" % (T + 2, T))
    k("v_lshl_add_u32 v%d, v%d, 4, v%d" % (T + 2, T + 1, T + 2))
    k("s_lshl_b32 s68, s%d, 11" % bw); k("s_add_u32 s68, s68, %d" % BREG)
    SU = {}
    k("v_mov_b32 v%d, v%d" % (T + 56, T + 2))
    def uld():
        k("s_mov_b32 m0, s68")
        k.vm("buffer_load_dwordx4 v%d, s[%d:%d], 0 offen lds" % (T + 56, R_A, R_A + 3))
        k("s_add_u32 m0, s68, 1024")
        k("s_mov_b32 s60, 16384")
        SU["s"] = k.vm("buffer_load_dwordx4 v%d, s[%d:%d], s60 offen lds" % (T + 56, R_A, R_A + 3))
    if opt.get("bar") != 4:
        uld()
    if opt.get("bcut") == 1:
        k("s_barrier") if opt.get("bar") == 1 and 1 < 3 else 0
        k("s_waitcnt vmcnt(0)"); k("s_endpgm")
    k("s_and_b32 s%d, s%d, 1" % (S_NH, bw))
    k("s_lshr_b32 s%d, s%d, 1" % (S_DI, bw))
    k("s_lshl_b32 s%d, s%d, 5" % (S_D, S_HP)); k("s_lshl_b32 s60, s%d, 1" % S_RB); k("s_add_u32 s%d, s%d, s60" % (S_D, S_D))
    k("s_lshl_b32 s60, s%d, 1" % S_D)
    k("s_load_dword s66, s[%d:%d], s60" % (S_LDT, S_LDT + 1))
    k("s_mov_b32 s67, s%d" % S_D)
    k("s_add_u32 s%d, s%d, s%d" % (S_D, S_D, S_DI))
    k("s_mul_i32 s%d, s%d, %d" % (S_PB, S_DI, DSTRIDE)); k("s_add_u32 s%d, s%d, %d" % (S_PB, S_PB, BREG))
    k("s_lshl_b32 s60, s%d, 8" % S_D); k("s_lshl_b32 s61, s%d, 7" % S_NH); k("s_add_u32 s60, s60, s61")
    k("v_lshlrev_b32 v%d, 1, v%d" % (T + 3, V_LANE))
    PR = 28
    for i, sp in enumerate((S_ARE, S_AIM, S_BRE, S_BIM, S_CRE, S_CIM)):
        r = (R_B, R_C)[i % 2]
        k.srd(r, sp, 131072)
        s_par = k.vm("buffer_load_ushort v%d, v%d, s[%d:%d], s60 offen" % (PR + i, T + 3, r, r + 3))
    if opt.get("bcut") == 2:
        k("s_barrier") if opt.get("bar") == 1 and 2 < 3 else 0
        k("s_waitcnt vmcnt(0)"); k("s_endpgm")
    US = opt.get("us", 0)
    UA = T + 40
    if opt.get("bar") == 1 and US != 2:
        k("s_barrier")
    k("v_lshlrev_b32 v7, 4, v%d" % V_LANE)
    SEN = 52
    for j in range(4):
        k("v_mov_b32 v%d, -1" % (SEN + j))
    SE = vr(SEN, 4)
    def clear_kv():
        k("s_lshl_b32 s60, s%d, 4" % S_HP); k("s_add_u32 s60, s60, s%d" % S_RB); k("s_mul_i32 s60, s60, %d" % KVP_STRIDE)
        k("s_add_u32 s60, s60, %d" % WS_KVP)
        k("s_mul_i32 s61, s%d, %d" % (bw, KVP_STRIDE // 4)); k("s_add_u32 s61, s61, s60")
        k("s_mov_b32 exec_hi, 15")
        k.vm("buffer_store_dwordx4 %s, v7, s[%d:%d], s61 offen sc1" % (SE, R_WS, R_WS + 3))
        k("s_mov_b32 exec_hi, -1")
    k("v_and_b32 v%d, 0x30, v%d" % (UA + 4, V_LANE))
    k("v_and_b32 v%d, 0xf0, v7" % (T + 4))
    k("v_lshl_add_u32 v%d, v%d, 8, v%d" % (UA + 4, UA + 4, T + 4))
    k("s_lshl_b32 s72, s%d, 17" % S_HP); k("s_add_u32 s72, s72, %d" % (WS_UT + 4096 - 256))
    k("s_lshl_b32 s61, s%d, 8" % S_RB); k("s_sub_u32 s72, s72, s61")
    k("s_lshl_b32 s61, s%d, 15" % bw); k("s_add_u32 s72, s72, s61")
    k("s_add_u32 s73, s72, 16384")
    if US:
        for j in range(2):
            k.vm("buffer_store_dwordx4 %s, v%d, s[%d:%d], s%d offen sc1" % (SE, UA + 4, R_WS, R_WS + 3, 72 + j))
        clear_kv()
    flag_addr(k, V_FA, T + 5)
    k("s_mov_b32 exec_hi, 0")
    k.vm("buffer_load_dword v%d, v%d, s[%d:%d], 0 offen sc1" % (V_OLD, V_FA, R_WS, R_WS + 3))
    k("s_mov_b32 exec_hi, -1")
    if US == 2:
        k("s_barrier")
    k.srd(R_B, S_DSK, 1024)
    k("v_and_b32 v%d, 0x30, v%d" % (T + 4, V_LANE))
    k("s_lshl_b32 s60, s%d, 6" % S_HP)
    k.vm("buffer_load_dwordx4 %s, v%d, s[%d:%d], s60 offen" % (vr(V_DS, 4), T + 4, R_B, R_B + 3))
    SE2 = T + 32
    def clear_o():
        k("s_lshl_b32 s60, s%d, 2" % S_RB); k("s_add_u32 s60, s60, s%d" % bw); k("s_lshl_b32 s60, s60, 4"); k("s_add_u32 s60, s60, s%d" % S_HP)
        k("s_lshl_b32 s60, s60, 11"); k("s_add_u32 s60, s60, %d" % WS_OF); k("s_add_u32 s61, s60, 32768")
        for j in range(4):
            k("v_mov_b32 v%d, -1" % (SE2 + j))
        for j in range(4):
            k("buffer_store_dwordx4 %s, v7, s[%d:%d], s%d offen offset:%d sc1" % (vr(SE2, 4), R_WS, R_WS + 3, 60 + j // 2, 1024 * (j % 2)))
    def rbp(chk, loop=False, nv=0):
        Ls = k.lbl("rbs"); Li = k.lbl("rbi"); Lt = k.lbl("rbt")
        k("s_cmp_eq_u32 s76, 0")
        k("s_cbranch_scc1 %s" % Ls)
        k("s_mov_b32 exec_lo, 0xffff0000"); k("s_mov_b32 exec_hi, 0")
        if chk:
            k("s_waitcnt vmcnt(%d)" % nv)
            k.label(Lt)
            k("v_cmp_eq_u32 vcc, v%d, v%d" % (T + 12, V_OLD))
            k("s_nop 1")
            k("s_cbranch_vccnz %s" % Li)
            k("s_mov_b32 s76, 0")
            k("s_mov_b64 exec, s[74:75]")
            k("v_mov_b32 v%d, %d" % (T + 13, SYNC + 40)); k("v_mov_b32 v%d, 1" % (T + 14))
            k("v_add_u32 v%d, 2, v%d" % (T + 15, V_OLD))
            k("ds_write_b32 v%d, v%d" % (T + 13, T + 14))
            k("buffer_store_dword v%d, v%d, s[%d:%d], 0 offen sc1" % (T + 15, V_FA, R_WS, R_WS + 3))
            k("s_branch %s" % Ls)
            k.label(Li)
        k("buffer_load_dword v%d, v%d, s[%d:%d], 0 offen sc1" % (T + 12, V_FA, R_WS, R_WS + 3))
        if loop:
            k("s_waitcnt vmcnt(0)")
            k("s_add_u32 s76, s76, 1")
            k("s_cmp_lt_u32 s76, %d" % LIM_GLB)
            k("s_cbranch_scc1 %s" % Lt)
        k.label(Ls)
        k("s_mov_b64 exec, -1")
    k("v_mov_b32 v%d, %d" % (V_SY, SYNC + 16))
    k("s_lshl_b32 s60, s%d, 2" % bw); k("s_add_u32 s60, s60, %d" % (SYNC + 16))
    k("v_mov_b32 v%d, s60" % V_OWN)
    k("v_xor_b32 v%d, 4, v%d" % (V_PAR, V_OWN))
    k.stamp()
    k("v_and_b32 v%d, 3, v%d" % (T, V_LANE))
    k("v_bfe_u32 v%d, v%d, 2, 2" % (T + 1, V_LANE))
    k("v_and_b32 v%d, 0x30, v%d" % (T + 2, V_LANE))
    k("s_movk_i32 s60, %d" % UCS)
    k("v_mul_lo_u32 v%d, v%d, s60" % (T + 3, T))
    k("v_lshlrev_b32 v%d, 7, v%d" % (T + 1, T + 1))
    k("v_sub_u32 v%d, v%d, v%d" % (T + 3, T + 3, T + 1))
    k("v_add_u32 v%d, v%d, v%d" % (T + 3, T + 3, T + 2))
    k("s_lshl_b32 s61, s%d, 8" % S_NH); k("s_add_u32 s61, s61, s%d" % S_PB)
    k("s_add_u32 s60, s61, 384")
    k("v_add_u32 v%d, s60, v%d" % (T + 3, T + 3))
    k("v_and_b32 v%d, 15, v%d" % (T + 4, V_LANE))
    k("v_lshl_add_u32 v%d, v%d, 3, v%d" % (T + 4, T + 4, T + 2))
    k("s_add_u32 s60, s61, %d" % KBO)
    k("v_add_u32 v%d, s60, v%d" % (T + 4, T + 4))
    k("v_and_b32 v%d, 1, v%d" % (T + 6, V_LANE))
    k("v_and_b32 v%d, 62, v%d" % (T + 5, V_LANE))
    k("v_lshlrev_b32 v%d, 3, v%d" % (T + 5, T + 5))
    k("v_lshl_add_u32 v%d, v%d, 9, v%d" % (T + 5, T + 6, T + 5))
    k("v_xor_b32 v%d, 0x300, v%d" % (T + 5, T + 5))
    k("s_xor_b32 s71, s%d, 1" % S_NH); k("s_lshl_b32 s71, s71, 11")
    k("s_add_u32 s60, s71, s%d" % S_PB)
    k("v_add_u32 v%d, s60, v%d" % (T + 6, T + 5))
    CA, CB, CY, CU = T + 27, T + 28, T + 29, T + 47
    for dst, src in ((CA, T + 3), (CB, T + 4), (CY, T + 5), (CU, T + 6)):
        k("v_mov_b32 v%d, v%d" % (dst, src))
    k("v_and_b32 v%d, 15, v%d" % (T, V_LANE))
    k("v_bfe_u32 v%d, v%d, 2, 2" % (T + 1, V_LANE))
    k("v_and_b32 v%d, 3, v%d" % (T + 2, V_LANE))
    for _ in range(0 if opt.get('kg') else 1):
        k("v_cvt_f32_u32 v%d, v%d" % (V_LF, T))
        k("v_lshlrev_b32 v%d, 4, v%d" % (T + 3, T))
        k("v_cvt_f32_u32 v%d, v%d" % (V_LF + 3, T + 3))
        k("v_lshlrev_b32 v%d, 2, v%d" % (T + 3, T + 1))
        k("v_lshl_add_u32 v%d, v%d, 1, v%d" % (T + 3, T + 2, T + 3))
        k("v_add_u32 v%d, 256, v%d" % (T + 3, T + 3))
        k("v_mov_b32 v%d, 1808" % (T + 4))
        k("v_cmp_eq_u32 vcc, 3, v%d" % (T + 2))
        k("v_cndmask_b32 v%d, v%d, v%d, vcc" % (T + 3, T + 3, T + 4))
        k("v_cvt_f32_u32 v%d, v%d" % (V_LF + 1, T + 3))
        k("v_lshlrev_b32 v%d, 8, v%d" % (T + 3, T + 1))
        k("v_lshl_add_u32 v%d, v%d, 2, v%d" % (T + 3, T + 2, T + 3))
        k("v_add_u32 v%d, 512, v%d" % (T + 3, T + 3))
        k("v_lshlrev_b32 v%d, 9, v%d" % (T + 4, T + 1))
        k("v_bfe_u32 v%d, v%d, 1, 1" % (T + 5, V_LANE))
        k("v_lshl_add_u32 v%d, v%d, 8, v%d" % (T + 4, T + 5, T + 4))
        k("v_and_b32 v%d, 1, v%d" % (T + 5, V_LANE))
        k("v_lshl_add_u32 v%d, v%d, 3, v%d" % (T + 4, T + 5, T + 4))
        k("v_cmp_lt_u32 vcc, 1, v%d" % (T + 1))
        k("v_cndmask_b32 v%d, v%d, v%d, vcc" % (T + 3, T + 3, T + 4))
        k("v_cvt_f32_u32 v%d, v%d" % (V_LF + 2, T + 3))
    STG = BREG + DSTRIDE
    if opt.get("kg"):
        k("s_mul_i32 s60, s%d, 4352" % bw); k("s_add_u32 s60, s60, %d" % STG)
        k("v_lshl_add_u32 v34, v%d, 2, s60" % V_LANE)
        for q in range(1, 4):
            k("v_add_u32 v%d, %d, v34" % (34 + q, 1088 * q))
        k("v_mul_u32_u24 v38, 272, v%d" % T)
        k("v_and_b32 v39, 0x30, v%d" % V_LANE)
        k("v_add3_u32 v38, v38, v39, s60")
    UA = T + 40
    UDt = T + 48
    TT = BREG + 8192
    k("v_lshrrev_b32 v%d, 4, v%d" % (T, V_LANE))
    k("v_lshl_add_u32 v%d, v%d, 3, v%d" % (UA, T, T + 1))
    k("v_sub_u32 v%d, 27, v%d" % (UA, UA))
    k("v_lshlrev_b32 v%d, 6, v%d" % (UA, UA))
    k("v_lshl_add_u32 v%d, v%d, 3, v%d" % (UA, T + 2, UA))
    k("v_add_u32 v%d, s68, v%d" % (UA, UA))
    k("v_and_b32 v%d, 15, v%d" % (T + 4, V_LANE))
    k("v_lshlrev_b32 v%d, 6, v%d" % (UA + 1, T + 4))
    k("v_lshl_add_u32 v%d, v%d, 4, v%d" % (UA + 1, T, UA + 1))
    k("v_add_u32 v%d, s68, v%d" % (UA + 1, UA + 1))
    k("s_movk_i32 s60, 272")
    k("v_mul_lo_u32 v%d, v%d, s60" % (UA + 2, T + 4))
    k("v_lshl_add_u32 v%d, v%d, 4, v%d" % (UA + 2, T, UA + 2))
    k("s_lshl_b32 s61, s%d, 6" % bw); k("s_sub_u32 s61, %d, s61" % (TT + 192))
    k("v_add_u32 v%d, s61, v%d" % (UA + 2, UA + 2))
    k("v_mul_lo_u32 v%d, v%d, s60" % (UA + 3, T))
    k("v_lshl_add_u32 v%d, v%d, 4, v%d" % (UA + 3, T + 4, UA + 3))
    k("s_mul_i32 s61, s%d, %d" % (bw, 8 * 272)); k("s_add_u32 s61, s61, %d" % TT)
    k("v_add_u32 v%d, s61, v%d" % (UA + 3, UA + 3))
    k("v_mov_b32 v%d, %d" % (UA + 5, SYNC + 44))
    def ut1():
        k.wait_vm(SU["s"])
        sq = []
        for j in range(2):
            for t in range(2):
                sq.append(k.lg("ds_read_b64_tr_b16 %s, v%d offset:%d" % (vr(UDt + 4 * j + 2 * t, 2), UA, 32 * j + 256 * (1 - t))))
        for j in range(2):
            k.lg("ds_read_b128 %s, v%d offset:%d" % (vr(V_UF + 4 * j, 4), UA + 1, 1024 * j))
        for j in range(2):
            k.wait_lg(sq[2 * j + 1])
            k.lg("ds_write_b128 v%d, %s offset:%d" % (UA + 2, vr(UDt + 4 * j, 4), 16 * 272 * j))
        k("v_mov_b32 v%d, 1" % (UA + 6))
        k("s_mov_b64 exec, 1")
        k.lg("ds_add_u32 v%d, v%d" % (UA + 5, UA + 6))
        k("s_mov_b64 exec, -1")
    def ut2():
        k.wait_words(UA + 5, 0, 1, 4, PT)
        sq = [k.lg("ds_read_b128 %s, v%d offset:%d" % (vr(UDt + 4 * j, 4), UA + 3, 4 * 272 * j)) for j in range(2)]
        for j in range(2):
            k.wait_lg(sq[j])
            for w in range(4 if US else 0):
                k("v_min_u32 v%d, -2, v%d" % (UDt + 4 * j + w, UDt + 4 * j + w))
            k.vm("buffer_store_dwordx4 %s, v%d, s[%d:%d], s%d offen sc1" % (vr(UDt + 4 * j, 4), UA + 4, R_WS, R_WS + 3, 72 + j))
    W = 160
    def pub(second=False):
        P = T + 36
        k("s_waitcnt vmcnt(0)")
        k("v_mov_b32 v%d, %d" % (P, SYNC + (48 if second else 32))); k("v_mov_b32 v%d, 1" % (P + 1))
        k("s_mov_b64 exec, 1")
        sq = (k if second == 2 else k.lg)("ds_add_rtn_u32 v%d, v%d, v%d" % (P + 2, P, P + 1))
        k("s_mov_b64 exec, -1")
        if second:
            k("s_lshl_b32 s74, 0x10000, s%d" % S_HP)
        else:
            k("s_lshl_b32 s74, 1, s%d" % S_RB)
        k("s_mov_b32 s75, 0")
        k("v_add_u32 v%d, 1, v%d" % (P + 3, V_OLD))
        return sq
    def pubb(sq=None, cnt=3):
        P = T + 36
        if sq is None:
            k("s_waitcnt lgkmcnt(0)")
        else:
            k.wait_lg(sq)
        k("v_readfirstlane_b32 s60, v%d" % (P + 2))
        Ls = k.lbl("nopub")
        k("s_cmp_lg_u32 s60, %d" % cnt)
        k("s_cbranch_scc1 %s" % Ls)
        k("s_mov_b64 exec, s[74:75]")
        k("buffer_store_dword v%d, v%d, s[%d:%d], 0 offen sc1" % (P + 3, V_FA, R_WS, R_WS + 3))
        k("s_mov_b64 exec, -1")
        k.label(Ls)
    def unot():
        for j in range(8):
            k("v_not_b32 v%d, v%d" % (UDt + j, UDt + j))
    def pub1():
        pub(); pubb()
        if not US:
            unot()
    UL = 64
    def utg():
        k("s_lshl_b32 s60, s%d, 12" % S_D)
        k.srd(R_A, S_WS, 4096, off_sgpr=60, off_imm=WS_UT)
        k("s_mov_b32 s60, 16")
        for rd in range(4):
            k("buffer_load_dwordx4 %s, v7, s[%d:%d], 0 offen offset:%d sc1" % (vr(UL + 8 * rd, 4), R_A, R_A + 3, 1024 * rd))
            k("buffer_load_dwordx2 %s, v7, s[%d:%d], s60 offen offset:%d sc1" % (vr(UL + 8 * rd + 4, 2), R_A, R_A + 3, 1024 * rd))
    def ep(chk, iss):
        Ls = k.lbl("eps"); Li = k.lbl("epi")
        k("s_cmp_lg_u32 s77, 1")
        k("s_cbranch_scc1 %s" % Ls)
        k("s_mov_b64 exec, 0xffff")
        if chk:
            k("s_waitcnt vmcnt(0)")
            k("v_cmp_eq_u32 vcc, v%d, v%d" % (T + 30, V_OLD))
            k("s_nop 1")
            k("s_cbranch_vccnz %s" % Li)
            k("s_mov_b32 s77, 2")
            k("v_mov_b32 v%d, %d" % (T + 30, SYNC + 36)); k("v_mov_b32 v%d, 1" % (T + 31))
            k("ds_write_b32 v%d, v%d" % (T + 30, T + 31))
            k("s_mov_b64 exec, -1")
            utg()
            k("s_branch %s" % Ls)
            k.label(Li)
        if iss:
            k("buffer_load_dword v%d, v%d, s[%d:%d], 0 offen sc1" % (T + 30, V_FA, R_WS, R_WS + 3))
        k("s_mov_b64 exec, -1")
        k.label(Ls)
    k("s_mov_b32 s77, s%d" % S_NH)
    def clo():
        Ls = k.lbl("clo")
        k("s_cmp_eq_u32 s%d, 1" % S_NH)
        k("s_cbranch_scc1 %s" % Ls)
        clear_o()
        k.label(Ls)
    hooks = {}
    CCL = opt.get("c_cl", 0 if US else -1)
    hl = [("h_ut1", ut1, -1), ("h_ut2", ut2, 0), ("h_kvc", clear_kv, 0), ("h_pub", pub1, 15 if opt.get("kg") else 6),
          ("h_e1", lambda: ep(0, 1), 11), ("h_e2", lambda: ep(1, 1), 99), ("h_e3", lambda: ep(1, 0), 15), ("h_clo", clo, 16 if opt.get("kg") else 13)]
    if US:
        hl = [("h_ut1", ut1, -1), ("h_pub", pub1, -1), ("h_ut2", ut2, 0), ("h_not", unot, 5), ("h_clo", clo, 16)]
    if CCL >= 0 or opt.get("cgate"):
        hl = hl[:-1]
    def pfetch(ptr, rs):
        k("s_and_b32 s60, s%d, 3" % S_RB); k("s_lshl_b32 s60, s60, 1"); k("s_and_b32 s61, s%d, 1" % S_HP); k("s_add_u32 s60, s60, s61")
        k("s_lshl_b32 s60, s60, 2"); k("s_add_u32 s60, s60, s%d" % bw); k("s_mul_i32 s60, s60, %d" % (16 * rs))
        k("s_lshr_b32 s61, s%d, 1" % S_HP); k("s_lshl_b32 s61, s61, 7"); k("s_add_u32 s60, s60, s61")
        k("s_add_u32 s70, s%d, s60" % ptr); k("s_addc_u32 s71, s%d, 0" % (ptr + 1))
        for i in range(16):
            k("s_load_dword s69, s[70:71], %d" % (i * rs))
    hl = [("h_pfq", lambda: pfetch(S_W, 3072), 99), ("h_pfo", lambda: pfetch(S_WO, 1024), 99)] + hl
    for name, fn, dflt in hl:
        def wrap(fn=fn):
            if opt.get("hprio"):
                k("s_setprio %d" % opt["hprio"])
            fn()
            if opt.get("hprio"):
                k("s_setprio %d" % opt.get("bprio2", 0))
        hooks.setdefault(opt.get(name, dflt), []).append(wrap)
    if opt.get("bar") == 4:
        k("s_barrier")
        uld()
    for fn in hooks.get(-1, []):
        fn()
    if opt.get("bcut") == 4:
        k("s_barrier") if opt.get("bar") == 1 and 4 < 3 else 0
        k("s_waitcnt vmcnt(0)"); k("s_endpgm")
    k("s_setprio %d" % opt.get("bprio2", 0))
    k.stamp()
    k("s_waitcnt lgkmcnt(0)")
    k("s_lshl_b32 s60, s%d, 4" % S_DI); k("s_lshr_b32 s66, s66, s60"); k("s_lshl_b32 s66, s66, 16")
    k("s_mov_b32 s69, 0x3fb8aa3b")
    k("v_mov_b32 v%d, s66" % T)
    k("v_mul_f32 v%d, s69, v%d" % (T, T))
    k("v_exp_f32 v%d, v%d" % (T, T))
    k("v_cvt_pk_bf16_f32 v%d, v%d, v%d" % (T, T, T))
    k("v_and_b32 v%d, 0xffff0000, v%d" % (T, T))
    k.wait_vm(s_par)
    for i in range(6):
        k("v_lshlrev_b32 v%d, 16, v%d" % (PR + i, PR + i))
    for i in range(4):
        k("v_mul_f32 v%d, v%d, v%d" % (PR + i, PR + i, T))
    TB = T + 4
    k("v_mul_f32 v%d, s69, v%d" % (TB, PR))
    k("v_mul_f32 v%d, 0.15915494, v%d" % (TB + 1, PR + 1))
    k("v_mul_f32 v%d, v%d, v%d" % (TB + 2, PR + 4, PR + 2))
    VA = 40
    if opt.get('kg'):
        kgen2(k, opt, hooks, PR, TB, VA)
    for _ in range(0 if opt.get('kg') else 1):
        k("v_mul_f32 v%d, v%d, v%d" % (TB + 3, PR + 4, PR + 3))
        k("v_fma_f32 v%d, -v%d, v%d, v%d" % (TB + 2, PR + 5, PR + 3, TB + 2))
        k("v_fma_f32 v%d, v%d, v%d, v%d" % (TB + 3, PR + 5, PR + 2, TB + 3))
        k("s_lshl_b32 s60, s%d, 10" % S_NH); k("s_add_u32 s60, s60, s%d" % S_PB); k("s_add_u32 s60, s60, %d" % KBO)
        k("v_add_u32 v%d, s60, v7" % (T + 1))
        k.lg("ds_write_b128 v%d, %s" % (T + 1, vr(TB, 4)))
        k("v_and_b32 v%d, 0x30, v%d" % (T + 2, V_LANE))
        k("v_lshlrev_b32 v%d, 2, v%d" % (T + 2, T + 2))
        k("v_add_u32 v%d, s60, v%d" % (T + 2, T + 2))
        TAB = 64
        tseq = []
        for ks in range(4):
            for j in range(4):
                tseq.append(k.lg("ds_read_b128 %s, v%d offset:%d" % (vr(TAB + 16 * ks + 4 * j, 4), T + 2, 256 * ks + 16 * j)))
        FR = 128
        VA = 40
        for ks in range(4):
            if opt.get("kst"):
                k.stamp()
            F = FR + 16 * (ks % 2)
            for j in range(4):
                k.wait_lg(tseq[4 * ks + j])
                e = TAB + 16 * ks + 4 * j
                X, PHs, SN, CS = W, W + 4, W + 8, W + 12
                for t in range(4):
                    k("v_mul_f32 v%d, v%d, v%d" % (PHs + t, e + 1, V_LF + t))
                for t in range(4):
                    k("v_mul_f32 v%d, v%d, v%d" % (X + t, e, V_LF + t))
                for t in range(4):
                    k("v_fract_f32 v%d, v%d" % (PHs + t, PHs + t))
                for t in range(4):
                    k("v_exp_f32 v%d, v%d" % (X + t, X + t))
                for t in range(4):
                    k("v_sin_f32 v%d, v%d" % (SN + t, PHs + t))
                for t in range(4):
                    k("v_cos_f32 v%d, v%d" % (CS + t, PHs + t))
                for t in (3, 0, 1, 2):
                    k("v_mul_f32 v%d, v%d, v%d" % (SN + t, SN + t, X + t))
                for t in (3, 0, 1, 2):
                    k("v_mul_f32 v%d, v%d, v%d" % (CS + t, CS + t, X + t))
                k("v_mul_f32 v%d, v%d, v%d" % (W + 16, CS + 3, e + 2))
                k("v_mul_f32 v%d, -v%d, v%d" % (W + 17, CS + 3, e + 3))
                for t in range(3):
                    k("v_cvt_pk_bf16_f32 v%d, v%d, v%d" % (F + 4 * t + j, CS + t, SN + t))
                k("v_fma_f32 v%d, -v%d, v%d, v%d" % (W + 16, SN + 3, e + 3, W + 16))
                k("v_fma_f32 v%d, -v%d, v%d, v%d" % (W + 17, SN + 3, e + 2, W + 17))
                k("v_cvt_pk_bf16_f32 v%d, v%d, v%d" % (F + 12 + j, W + 16, W + 17))
                if j < 3:
                    for fn in hooks.get(4 * ks + j, []):
                        fn()
            for t in range(3):
                k("v_mfma_f32_16x16x32_bf16 %s, %s, %s, %s" % (vr(VA + 4 * t, 4), vr(F + 4 * t, 4), vr(F + 12, 4), vr(VA + 4 * t, 4) if ks else "0"))
            for fn in hooks.get(4 * ks + 3, []):
                fn()
    k.stamp()
    if opt.get("exp"):
        k.dump_stamps(32)
        return
    LN1 = k.lbl("nh1"); LJ = k.lbl("nhj")
    k("s_add_u32 s60, s%d, %d" % (S_PB, KBO + 1024))
    k("v_add_u32 v%d, s60, v7" % (T + 1))
    k("s_cmp_eq_u32 s%d, 1" % S_NH)
    k("s_cbranch_scc1 %s" % LN1)
    if opt.get("kg"):
        k.signal(V_OWN, T + 8, 1)
    k.wait_words(V_PAR, 0, 1, 1, PT)
    sq = [k.lg("ds_read_b128 %s, v%d offset:%d" % (vr(W + 4 * t, 4), T + 1, 1024 * t)) for t in range(3)]
    k("v_and_b32 v%d, 15, v%d" % (T + 2, V_LANE))
    k("v_lshrrev_b32 v%d, 4, v%d" % (T + 3, V_LANE))
    k("s_add_u32 s60, s%d, %d" % (S_PB, KBO))
    k("v_lshlrev_b32 v%d, 5, v%d" % (T + 2, T + 2))
    k("v_add_u32 v%d, s60, v%d" % (T + 2, T + 2))
    k("v_lshl_add_u32 v%d, v%d, 3, v%d" % (T + 4, T + 3, T + 2))
    k("v_lshl_add_u32 v%d, v%d, 9, v%d" % (T + 5, T + 3, T + 2))
    k("v_add_u32 v%d, %d, v%d" % (T + 5, 120 + 1024 - 4, T + 5))
    k("v_lshl_add_u32 v%d, v%d, 10, v%d" % (T + 6, T + 3, T + 2))
    k("v_add_u32 v%d, %d, v%d" % (T + 6, 120 - 8, T + 6))
    k("v_lshlrev_b32 v%d, 2, v%d" % (T + 7, V_LANE))
    k("v_add_u32 v%d, s60, v%d" % (T + 7, T + 7))
    k("v_mov_b32 v%d, 0" % (T + 8))
    for t in range(3):
        k.wait_lg(sq[t])
        for i in range(4):
            k("v_add_f32 v%d, v%d, v%d" % (VA + 4 * t + i, VA + 4 * t + i, W + 4 * t + i))
    Q = T + 16
    V0, V1, V2 = VA, VA + 4, VA + 8
    pk = [(V2, V2), (V2, V2 + 1), (V2 + 1, V2 + 1), (V2 + 2, V2 + 2), (V2 + 2, V2 + 3), (V2 + 3, V2 + 3),
          (V1, V1), (V1 + 1, V1 + 2), (V0, V0 + 1), (V0 + 2, V0 + 3), (V1 + 3, V1 + 3)]
    for i, (a, b) in enumerate(pk):
        k("v_cvt_pk_bf16_f32 v%d, v%d, v%d" % (Q + i, a, b))
    aa, ab, bb, cc, cd, dd = [Q + i for i in range(6)]
    k("s_mov_b32 s70, 0"); k("s_mov_b32 s71, -1")
    k("s_mov_b64 exec, s[70:71]")
    for run, (x, xy, y) in enumerate(((aa, ab, bb), (cc, cd, dd))):
        o = 128 * run
        for i, (p, q) in enumerate(((x, x), (x, x), (xy, y), (y, y))):
            k.lg("ds_write2_b32 v%d, v%d, v%d offset0:%d offset1:%d" % (T + 6, p, q, o + 2 * i, o + 2 * i + 1))
    k("s_mov_b32 exec_lo, -1"); k("s_mov_b32 exec_hi, 0")
    for i, (p, q) in enumerate(((aa, aa), (ab, bb), (cc, cc), (cd, dd))):
        k.lg("ds_write2_b32 v%d, v%d, v%d offset0:%d offset1:%d" % (T + 5, p, q, 2 * i, 2 * i + 1))
    k("s_mov_b64 exec, -1")
    k.lg("ds_write_b64 v%d, %s offset:%d" % (T + 4, vr(Q + 6, 2), 120 + 512))
    k.lg("ds_write_b64 v%d, %s offset:%d" % (T + 4, vr(Q + 8, 2), 120))
    k("s_mov_b64 exec, 0x8000")
    k.lg("ds_write_b32 v%d, v%d offset:%d" % (T + 2, Q + 10, 120 + 4088 - 480))
    k.lg("ds_write_b32 v%d, v%d offset:%d" % (T + 2, Q + 10, 120 + 4092 - 480))
    k("s_mov_b64 exec, 0x3fffffff")
    k.lg("ds_write_b32 v%d, v%d" % (T + 7, T + 8))
    k("s_mov_b64 exec, -1")
    k.signal(V_OWN, T + 8, 2)
    def pub2():
        pub(2); pubb(None, 1)
        k("s_cmp_eq_u32 s%d, 0" % bw); k("s_cselect_b32 s76, 1, 0")
        rbp(False)
    if CCL < 0:
        if opt.get("cgate"):
            k("v_mov_b32 v%d, %d" % (T + 9, SYNC))
            k.wait_words(T + 9, 0, 4, opt["cgate"], PT)
            clear_o()
    if CCL < 0 and "c_p2" not in opt:
        pub2()
    else:
        k("s_mov_b32 s76, 0")
    k("s_branch %s" % LJ)
    k.label(LN1)
    k.settle(8)
    for t in range(3):
        k.lg("ds_write_b128 v%d, %s offset:%d" % (T + 1, vr(VA + 4 * t, 4), 1024 * t))
    k.signal(V_OWN, T + 8, 1)
    LW3 = k.lbl("w3"); LRD = k.lbl("rdy"); LUG = k.lbl("ug")
    k("s_cmp_eq_u32 s77, 2")
    k("s_cbranch_scc1 %s" % LUG)
    k("s_cmp_eq_u32 s%d, 3" % bw)
    k("s_cbranch_scc1 %s" % LW3)
    LP = k.lbl("poll"); LPD = k.lbl("polld")
    if opt.get("pgate"):
        k("v_mov_b32 v%d, %d" % (T + 9, SYNC))
        k.wait_words(T + 9, 0, 4, opt["pgate"], PT)
    k("s_mov_b32 s61, 0")
    k("s_mov_b64 exec, 0xffff")
    k.label(LP)
    k("buffer_load_dword v%d, v%d, s[%d:%d], 0 offen sc1" % (T + 8, V_FA, R_WS, R_WS + 3))
    k("s_waitcnt vmcnt(0)")
    k("v_cmp_eq_u32 vcc, v%d, v%d" % (T + 8, V_OLD))
    k("s_nop 1")
    k("s_cbranch_vccz %s" % LPD)
    if opt.get("slp1", k.slp):
        k("s_sleep %d" % opt.get("slp1", k.slp))
    k("s_add_u32 s61, s61, 1")
    k("s_cmp_lt_u32 s61, %d" % LIM_GLB)
    k("s_cbranch_scc1 %s" % LP)
    k.label(LPD)
    k("s_mov_b64 exec, 1")
    k("v_mov_b32 v%d, %d" % (T + 9, SYNC + 36)); k("v_mov_b32 v%d, 1" % (T + 10))
    k.lg("ds_write_b32 v%d, v%d" % (T + 9, T + 10))
    if US:
        k("s_mov_b64 exec, s[74:75]")
        k("v_add_u32 v%d, 2, v%d" % (T + 11, V_OLD))
        k("buffer_store_dword v%d, v%d, s[%d:%d], 0 offen sc1" % (T + 11, V_FA, R_WS, R_WS + 3))
    k("s_mov_b64 exec, -1")
    k("s_branch %s" % LRD)
    k.label(LW3)
    k.wait_words(V_SY, 20, 1, 1, PT)
    k.label(LRD)
    utg()
    k.label(LUG)
    k.stamp()
    k.nvm = 8
    sq = [1, 3, 5, 7]
    k("v_add_u32 v%d, s%d, v7" % (T + 2, S_PB))
    for j in range(4):
        k("v_mov_b32 v%d, 0" % (T + 4 + j))
    if opt.get("kg"):
        k.wait_words(V_SY, 0, 4, 1, PT)
    k("s_mov_b64 exec, 0xffffff")
    for c in range(4):
        k.lg("ds_write_b128 v%d, %s offset:%d" % (T + 2, vr(T + 4, 4), c * UCS + 4096))
    k("s_mov_b64 exec, -1")
    def ucons(rd):
        D = UL + 8 * rd
        O = 128 + 16 * (rd % 2)
        for j in range(5):
            k("v_alignbit_b32 v%d, v%d, v%d, 16" % (O + j, D + j + 1, D + j))
        for j in range(4):
            k("v_mov_b32 v%d, v%d" % (O + 8 + j, D + 1 + j))
            k("v_mov_b32 v%d, v%d" % (O + 12 + j, O + 1 + j))
        k.lg("ds_write_b128 v%d, %s offset:%d" % (T + 2, vr(D, 4), 3 * UCS + 1024 * rd))
        k.lg("ds_write_b128 v%d, %s offset:%d" % (T + 2, vr(O, 4), 2 * UCS + 1024 * rd))
        k.lg("ds_write_b128 v%d, %s offset:%d" % (T + 2, vr(O + 8, 4), 1 * UCS + 1024 * rd))
        k.lg("ds_write_b128 v%d, %s offset:%d" % (T + 2, vr(O + 12, 4), 0 * UCS + 1024 * rd))
    if US:
        uloads = [(UL + 8 * rd, 6, ["buffer_load_dwordx4 %s, v7, s[%d:%d], 0 offen offset:%d sc1" % (vr(UL + 8 * rd, 4), R_A, R_A + 3, 1024 * rd),
                                    "buffer_load_dwordx2 %s, v7, s[%d:%d], s60 offen offset:%d sc1" % (vr(UL + 8 * rd + 4, 2), R_A, R_A + 3, 1024 * rd)]) for rd in range(4)]
        k.pg_finish(uloads, sq, T + 12, ucons)
    else:
        for rd in range(4):
            k.wait_vm(sq[rd])
            ucons(rd)
        k("v_add_u32 v%d, 2, v%d" % (T + 11, V_OLD))
        k("s_mov_b64 exec, s[74:75]")
        k("buffer_store_dword v%d, v%d, s[%d:%d], 0 offen sc1" % (T + 11, V_FA, R_WS, R_WS + 3))
        k("s_mov_b64 exec, -1")
    k.signal(V_OWN, T + 8, 2)
    k("s_mov_b32 s76, 0")
    k.label(LJ)
    k.wait_words(V_PAR, 0, 1, 2, PT)
    k.stamp()
    UO = T + 56
    if opt.get("dump_k"):
        pass
    AC = 32
    AF = (64, 96); BF = (128, 160)
    def rdfr(ri):
        s = {}
        buf = ri % 2
        for i in range(8):
            s[("A", i)] = k.lg("ds_read_b128 %s, v%d offset:%d" % (vr(AF[buf] + 4 * i, 4), CA, 512 * (7 - i) + 64 * ri))
            k.lg("ds_read_b64 %s, v%d offset:%d" % (vr(BF[buf] + 4 * i, 2), CB, 512 * i + 64 * ri))
            s[("B", i)] = k.lg("ds_read_b64 %s, v%d offset:%d" % (vr(BF[buf] + 4 * i + 2, 2), CB, 512 * i + 64 * ri + 8))
        return s
    cur = rdfr(0)
    touched = set()
    c_pub = opt.get("c_pub", 44); c_rb = opt.get("c_rb", 80)
    for ri in range(4):
        buf = ri % 2
        pairs = sorted([(a, b) for a in range(8) for b in range(8) if a + b <= 7], key=lambda p: (max(p), p))
        order = []
        rem = pairs[:]
        while rem:
            for idx, p in enumerate(rem):
                if not order or (order[-1][0] + order[-1][1]) != (p[0] + p[1]) or idx == len(rem) - 1:
                    order.append(rem.pop(idx)); break
        nxt = None
        waited = -1
        for n, (a, b) in enumerate(order):
            if n == 2 and ri == CCL:
                clo()
            if n == 12 and ri == opt.get("c_p2", 2) and (CCL >= 0 or "c_p2" in opt):
                Lq = k.lbl("p2")
                k("s_cmp_eq_u32 s%d, 1" % S_NH)
                k("s_cbranch_scc1 %s" % Lq)
                pub2()
                k.label(Lq)
            if n == 12 and ri < 3:
                need = max(cur.values())
                if need > waited:
                    k.wait_lg(need); waited = need
                nxt = rdfr(ri + 1)
            if n == 4 and ri == 0:
                for j in range(2):
                    k.lg("ds_read_b128 %s, v%d offset:%d" % (vr(UO + 4 * j, 4), CU, 3 * UCS + 1024 * (1 - j)))
            if n == opt.get("rbn", 30):
                rbp(True)
            need = max(cur[("A", b)], cur[("B", a)])
            if need > waited:
                k.wait_lg(need); waited = need
            q = a + b
            k("v_mfma_f32_16x16x32_bf16 %s, %s, %s, %s" % (vr(AC + 4 * q, 4), vr(AF[buf] + 4 * b, 4), vr(BF[buf] + 4 * a, 4), vr(AC + 4 * q, 4) if q in touched else "0"))
            touched.add(q)
        cur = nxt
    k.signal(V_OWN, T + 8, 3)
    k.stamp()
    k("s_mul_i32 s60, s%d, %d" % (S_NH, UCS)); k("s_add_u32 s60, s60, s%d" % S_PB)
    k("v_add_u32 v%d, s60, v7" % T)
    k("s_xor_b32 s61, s%d, 1" % S_NH); k("s_mul_i32 s61, s61, %d" % UCS); k("s_add_u32 s61, s61, s%d" % S_PB)
    k("v_add_u32 v%d, s61, v7" % (T + 1))
    k("s_xor_b32 s66, s%d, 1" % S_NH); k("s_lshl_b32 s66, s66, 11")
    k("s_lshl_b32 s60, s%d, 12" % S_D); k("s_add_u32 s60, s60, s66"); k("s_add_u32 s60, s60, %d" % WS_UT)
    k.wait_words(V_PAR, 0, 1, 3, PT)
    L1 = k.lbl("c1"); LJ2 = k.lbl("cj")
    k("s_cmp_eq_u32 s%d, 1" % S_NH)
    k("s_cbranch_scc1 %s" % L1)
    for nh in range(2):
        if nh == 1:
            k.label(L1)
        snd, keep = AC + 16 * (1 - nh), AC + 16 * nh
        for j in range(4):
            k.lg("ds_write_b128 v%d, %s offset:%d" % (T, vr(snd + 4 * j, 4), 1024 * j))
        k.signal(V_OWN, T + 8, 4)
        k.wait_words(V_PAR, 0, 1, 4, PT)
        sq = [k.lg("ds_read_b128 %s, v%d offset:%d" % (vr(64 + 4 * j, 4), T + 1, 1024 * j)) for j in range(4)]
        for j in range(4):
            k.wait_lg(sq[j])
            for i in range(4):
                k("v_add_f32 v%d, v%d, v%d" % (64 + 4 * j + i, 64 + 4 * j + i, keep + 4 * j + i))
        if nh == 0:
            k("s_branch %s" % LJ2)
    k.label(LJ2)
    for j in range(8):
        k("v_cvt_pk_bf16_f32 v%d, v%d, v%d" % (96 + j, 64 + 2 * j, 64 + 2 * j + 1))
    for j in range(8):
        k("v_min_u32 v%d, -2, v%d" % (96 + j, 96 + j))
    k("s_mov_b32 vcc_lo, 0x55555555"); k("s_mov_b32 vcc_hi, 0x55555555")
    for j in range(2):
        for w in range(2):
            k("v_cndmask_b32_dpp v%d, v%d, v%d, vcc quad_perm:[1,0,3,2] row_mask:0xf bank_mask:0xf" % (104 + 4 * j + w, 96 + 4 * j + 2 + w, 96 + 4 * j + w))
    k("s_not_b64 vcc, vcc")
    for j in range(2):
        for w in range(2):
            k("v_cndmask_b32_dpp v%d, v%d, v%d, vcc quad_perm:[1,0,3,2] row_mask:0xf bank_mask:0xf" % (104 + 4 * j + 2 + w, 96 + 4 * j + w, 96 + 4 * j + 2 + w))
    for j in range(2):
        for w in range(4):
            k("v_add3_u32 v%d, v%d, v%d, 1" % (104 + 4 * j + w, 104 + 4 * j + w, UO + 4 * j + w))
        k.vm("buffer_store_dwordx4 %s, v%d, s[%d:%d], s60 offen offset:%d sc1" % (vr(104 + 4 * j, 4), CY, R_WS, R_WS + 3, 1024 * (1 - j)))
    k.stamp()
    rbp(True, True, 2)
    k("v_lshrrev_b32 v%d, 4, v%d" % (T, V_LANE))
    k("v_and_b32 v%d, 15, v%d" % (T + 1, V_LANE))
    STG = BREG + 2 * UCS
    k("s_movk_i32 s66, 288")
    k("v_mul_lo_u32 v%d, v%d, s66" % (T + 3, T))
    k("v_lshl_add_u32 v%d, v%d, 4, v%d" % (T + 3, T + 1, T + 3))
    k("s_mul_i32 s66, s%d, %d" % (bw, 8 * 288 + 128)); k("s_add_u32 s66, s66, %d" % STG)
    k("v_add_u32 v%d, s66, v%d" % (T + 3, T + 3))
    k("s_movk_i32 s66, %d" % (8 * 288 + 128))
    k("v_mul_lo_u32 v%d, v%d, s66" % (T + 4, T))
    k("v_bfe_u32 v%d, v%d, 2, 2" % (T + 5, V_LANE))
    k("s_movk_i32 s66, 288")
    k("v_mul_lo_u32 v%d, v%d, s66" % (T + 5, T + 5))
    k("v_add_u32 v%d, v%d, v%d" % (T + 4, T + 4, T + 5))
    k("v_and_b32 v%d, 3, v%d" % (T + 5, V_LANE))
    k("v_lshl_add_u32 v%d, v%d, 3, v%d" % (T + 4, T + 5, T + 4))
    k("s_lshl_b32 s66, s%d, 6" % bw); k("s_add_u32 s66, s66, %d" % STG)
    k("v_add_u32 v%d, s66, v%d" % (T + 4, T + 4))
    k("v_lshlrev_b32 v%d, 11, v%d" % (T + 5, T + 1))
    k("v_lshl_add_u32 v%d, v%d, 4, v%d" % (T + 5, T, T + 5))
    k("s_lshl_b32 s66, s%d, 18" % S_RB); k("s_lshl_b32 s67, s%d, 16" % bw); k("s_add_u32 s66, s66, s67")
    k("s_lshl_b32 s67, s%d, 6" % S_HP); k("s_add_u32 s66, s66, s67"); k("s_add_u32 s66, s66, 1024")
    k("s_add_u32 s67, s66, 32768")
    k.srd(R_D, S_OUT, 2048 * 2048)
    loads = [(64 + 4 * j, 4, ["buffer_load_dwordx4 %s, v%d, s[%d:%d], s%d offen sc1" % (vr(64 + 4 * j, 4), UA + 4, R_WS, R_WS + 3, 72 + j)]) for j in range(2)]
    def dec(p):
        for w in range(4):
            k("v_add_u32 v%d, v%d, v%d" % (64 + 4 * p + w, 64 + 4 * p + w, UDt + 4 * p + w))
    if opt.get("ydly"):
        k("s_sleep %d" % opt.get("ydly"))
    if opt.get("udp", 0) == 1:
        gs = k.pg_issue(loads)
    UD = 208
    for j in range(2):
        for i in range(4):
            k("v_lshlrev_b32 v%d, 16, v%d" % (T + 8, V_UF + 4 * j + i))
            k("v_and_b32 v%d, 0xffff0000, v%d" % (T + 9, V_UF + 4 * j + i))
            k("v_lshlrev_b32 v%d, 16, v%d" % (T + 10, V_DS + i))
            k("v_and_b32 v%d, 0xffff0000, v%d" % (T + 11, V_DS + i))
            k("v_mul_f32 v%d, v%d, v%d" % (T + 8, T + 8, T + 10))
            k("v_mul_f32 v%d, v%d, v%d" % (T + 9, T + 9, T + 11))
            k("v_cvt_pk_bf16_f32 v%d, v%d, v%d" % (T + 8, T + 8, T + 9))
            k("v_lshlrev_b32 v%d, 16, v%d" % (UD + 8 * j + 2 * i, T + 8))
            k("v_and_b32 v%d, 0xffff0000, v%d" % (UD + 8 * j + 2 * i + 1, T + 8))
    if opt.get("udp", 0) == 0:
        gs = k.pg_issue(loads)
    k.pg_finish(loads, gs, 72, lambda p: None, dec)
    k.stamp()
    k.wait_words(V_SY, 0, 2, 3, PT)
    for j in range(2):
        k.lg("ds_write_b128 v%d, %s offset:%d" % (T + 3, vr(64 + 4 * j, 4), 4 * 288 * j))
    k.signal(V_OWN, T + 8, 5)
    k.wait_words(V_SY, 0, 4, 5, PT)
    sq = []
    for j in range(2):
        for t in range(2):
            sq.append(k.lg("ds_read_b64_tr_b16 %s, v%d offset:%d" % (vr(80 + 4 * j + 2 * t, 2), T + 4, 32 * j + 4 * 288 * t)))
    for j in range(2):
        k.wait_lg(sq[2 * j + 1])
        for i in range(4):
            y = 80 + 4 * j + i
            k("v_lshlrev_b32 v%d, 16, v%d" % (T + 8, y))
            k("v_and_b32 v%d, 0xffff0000, v%d" % (T + 9, y))
            k("v_add_f32 v%d, v%d, v%d" % (T + 8, T + 8, UD + 8 * j + 2 * i))
            k("v_add_f32 v%d, v%d, v%d" % (T + 9, T + 9, UD + 8 * j + 2 * i + 1))
            k("v_cvt_pk_bf16_f32 v%d, v%d, v%d" % (96 + 4 * j + i, T + 8, T + 9))
        k.vm("buffer_store_dwordx4 %s, v%d, s[%d:%d], s%d offen%s" % (vr(96 + 4 * j, 4), T + 5, R_D, R_D + 3, 66 + j, OUTF[opt.get("outf", 0)]))
    if k.dbg or not opt.get("nofin"):
        k("s_waitcnt vmcnt(0)")
    k.stamp()
    k.dump_stamps(32)
```

```python
from asmlib import Asm, vr, sr

NAME = "concat_heads__linear_kernel_hedgehog__ssm_conv_s4__prompt_kernel"

WK, WV, WQ = 0, 32768, 65536
BOUNCE = 98304
BREG = 114688
DSTRIDE = 22272
UCS = 4512
KBO = 18048
WPHI = 159232
SYNC = 160256
OLDS = 160512
LDS_TOTAL = 160768
WS_FLAGS = 0
WS_UT = 0x10000
WS_YT = 0x210000
WS_OF = 0x410000
WS_KVP = 0x610000
KVP_STRIDE = 2304
WS_DBG = 0x800000
WS_SIZE = 0x1000000
S_X, S_W, S_WPHI, S_WO, S_U, S_ARE, S_AIM, S_BRE, S_BIM, S_CRE, S_CIM, S_LDT, S_DSK, S_OUT, S_DBG, S_WS = [4 + 2 * i for i in range(16)]
S_WAVE, S_RB, S_HP, S_RW = 36, 37, 38, 39
R_WS = 40
R_A = 44
R_B = 48
R_C = 52
R_D = 56
S_T0 = 60
S_STAMP = 84
OUTF = ["", " sc1", " nt", " sc0 sc1", " sc1 nt"]
LIM_LDS = 200000
LIM_GLB = 20000


class K(Asm):
    def __init__(self, dbg=False):
        super().__init__()
        self.nvm = 0
        self.nlg = 0
        self.uid = 0
        self.dbg = dbg
        self.nstamp = 0
        self.slp = 0
        self.pl2 = 0
    def lbl(self, base):
        self.uid += 1
        return "L_%s_%d" % (base, self.uid)
    def vm(self, text):
        self(text); self.nvm += 1
        return self.nvm - 1
    def lg(self, text):
        self(text); self.nlg += 1
        return self.nlg - 1
    def wait_vm(self, seq):
        n = self.nvm - 1 - seq
        assert n >= 0
        if n <= 63:
            self("s_waitcnt vmcnt(%d)" % n)
        else:
            raise AssertionError("vmcnt overflow %d" % n)
    def wait_lg(self, seq):
        n = self.nlg - 1 - seq
        assert n >= 0
        self("s_waitcnt lgkmcnt(%d)" % min(n, 15))
    def srd(self, r, ptr, nbytes, off_sgpr=None, off_imm=0):
        if off_sgpr is None and off_imm == 0:
            self("s_mov_b32 s%d, s%d" % (r, ptr)); self("s_mov_b32 s%d, s%d" % (r + 1, ptr + 1))
        else:
            first = True
            for o in ([("s%d" % off_sgpr)] if off_sgpr is not None else []) + ([str(off_imm)] if off_imm else []):
                a, b = (ptr, ptr + 1) if first else (r, r + 1)
                self("s_add_u32 s%d, s%d, %s" % (r, a, o)); self("s_addc_u32 s%d, s%d, 0" % (r + 1, b))
                first = False
        self("s_mov_b32 s%d, %s" % (r + 2, nbytes if isinstance(nbytes, str) else hex(nbytes)))
        self("s_mov_b32 s%d, 0x00020000" % (r + 3))
    def stamp(self):
        if not self.dbg:
            return
        i = self.nstamp; self.nstamp += 1
        assert i < 16
        self("s_memrealtime s[80:81]"); self("s_waitcnt lgkmcnt(0)"); self("s_mov_b32 s%d, s80" % (S_STAMP + i))
    def dump_stamps(self, vt):
        if not self.dbg:
            return
        self("s_lshl_b32 s80, s2, 3"); self("s_add_u32 s80, s80, s%d" % S_WAVE); self("s_lshl_b32 s80, s80, 6")
        self("s_add_u32 s80, s80, %d" % WS_DBG)
        self("v_mov_b32 v%d, s80" % vt)
        self("s_mov_b64 exec, 1")
        for q in range(4):
            for i in range(4):
                self("v_mov_b32 v%d, s%d" % (vt + 4 + i, S_STAMP + 4 * q + i))
            self("buffer_store_dwordx4 %s, v%d, s[%d:%d], 0 offen offset:%d" % (vr(vt + 4, 4), vt, R_WS, R_WS + 3, 16 * q))
            self("s_waitcnt vmcnt(0)")
        self("s_mov_b64 exec, -1")
    def signal(self, vown, vtmp, val):
        self("v_mov_b32 v%d, %d" % (vtmp, val))
        self("s_mov_b64 exec, 1")
        self.lg("ds_write_b32 v%d, v%d" % (vown, vtmp))
        self("s_mov_b64 exec, -1")
    def wait_words(self, vaddr, off, nw, val, vt, first_issued=None):
        L = self.lbl("w"); D = self.lbl("wd")
        self("s_mov_b32 s%d, 0" % (S_T0 + 19))
        if first_issued is None:
            self.label(L)
            self._rdw(vaddr, off, nw, vt)
        self("s_waitcnt lgkmcnt(0)")
        if first_issued is not None:
            pass
        self._chk(nw, vt, val)
        if first_issued is None:
            self("s_cbranch_scc1 %s" % D)
            self("s_add_u32 s%d, s%d, 1" % (S_T0 + 19, S_T0 + 19))
            self("s_cmp_lt_u32 s%d, %d" % (S_T0 + 19, LIM_LDS))
            self("s_cbranch_scc1 %s" % L)
        else:
            self("s_cbranch_scc1 %s" % D)
            self.label(L)
            self._rdw(vaddr, off, nw, vt)
            self("s_waitcnt lgkmcnt(0)")
            self._chk(nw, vt, val)
            self("s_cbranch_scc1 %s" % D)
            self("s_add_u32 s%d, s%d, 1" % (S_T0 + 19, S_T0 + 19))
            self("s_cmp_lt_u32 s%d, %d" % (S_T0 + 19, LIM_LDS))
            self("s_cbranch_scc1 %s" % L)
        self.label(D)
    def wait_words2(self, vaddr, off, nw, val, vt, seq=None):
        if seq is None:
            return self.wait_words(vaddr, off, nw, val, vt)
        L = self.lbl("w"); D = self.lbl("wd")
        self.wait_lg(seq)
        self._chk(nw, vt, val)
        self("s_cbranch_scc1 %s" % D)
        self("s_mov_b32 s%d, 0" % (S_T0 + 19))
        self.label(L)
        n = self.nlg
        self._rdw(vaddr, off, nw, vt)
        self.nlg = n
        self("s_waitcnt lgkmcnt(0)")
        self._chk(nw, vt, val)
        self("s_cbranch_scc1 %s" % D)
        self("s_add_u32 s%d, s%d, 1" % (S_T0 + 19, S_T0 + 19))
        self("s_cmp_lt_u32 s%d, %d" % (S_T0 + 19, LIM_LDS))
        self("s_cbranch_scc1 %s" % L)
        self.label(D)
    def _rdw(self, vaddr, off, nw, vt):
        op = {1: "ds_read_b32", 2: "ds_read_b64", 4: "ds_read_b128"}[nw]
        return self.lg("%s %s, v%d offset:%d" % (op, vr(vt, nw), vaddr, off))
    def _chk(self, nw, vt, val):
        if nw == 4:
            self("v_min3_u32 v%d, v%d, v%d, v%d" % (vt, vt, vt + 1, vt + 2))
            self("v_min_u32 v%d, v%d, v%d" % (vt, vt, vt + 3))
        elif nw == 2:
            self("v_min_u32 v%d, v%d, v%d" % (vt, vt, vt + 1))
        self("v_readfirstlane_b32 s%d, v%d" % (S_T0 + 18, vt))
        self("s_cmp_ge_u32 s%d, %d" % (S_T0 + 18, val))

    def gather(self, loads, vt, between=None):
        n = len(loads)
        SP, SI, ST = S_T0 + 17, S_T0 + 16, S_T0 + 15
        L = self.lbl("g"); D = self.lbl("gd")
        self("s_mov_b32 s%d, %d" % (SP, (1 << n) - 1))
        self("s_mov_b32 s%d, 0" % SI)
        self.label(L)
        for p, (dst, nr, txt) in enumerate(loads):
            sk = self.lbl("gs")
            self("s_bitcmp1_b32 s%d, %d" % (SP, p))
            self("s_cbranch_scc0 %s" % sk)
            for t in txt:
                self(t)
            self.label(sk)
        self("s_waitcnt vmcnt(0)")
        for p, (dst, nr, txt) in enumerate(loads):
            if nr == 4:
                self("v_max3_u32 v%d, v%d, v%d, v%d" % (vt + p, dst, dst + 1, dst + 2))
                self("v_max_u32 v%d, v%d, v%d" % (vt + p, vt + p, dst + 3))
            elif nr == 2:
                self("v_max_u32 v%d, v%d, v%d" % (vt + p, dst, dst + 1))
        T = vt + n
        idx = list(range(n))
        if n == 1:
            self("v_mov_b32 v%d, v%d" % (T, vt))
        elif n == 2:
            self("v_max_u32 v%d, v%d, v%d" % (T, vt, vt + 1))
        else:
            self("v_max3_u32 v%d, v%d, v%d, v%d" % (T, vt, vt + 1, vt + 2))
            i = 3
            while i < n:
                if i + 1 < n:
                    self("v_max3_u32 v%d, v%d, v%d, v%d" % (T, T, vt + i, vt + i + 1)); i += 2
                else:
                    self("v_max_u32 v%d, v%d, v%d" % (T, T, vt + i)); i += 1
        self("v_cmp_eq_u32 vcc, -1, v%d" % T)
        self("s_nop 1")
        self("s_cbranch_vccz %s" % D)
        self("s_mov_b32 s%d, 0" % SP)
        for p in range(n):
            self("v_cmp_eq_u32 vcc, -1, v%d" % (vt + p))
            self("s_nop 1")
            self("s_cmp_lg_u64 vcc, 0")
            self("s_cselect_b32 s%d, %d, 0" % (ST, 1 << p))
            self("s_or_b32 s%d, s%d, s%d" % (SP, SP, ST))
        if self.slp:
            self("s_sleep %d" % self.slp)
        self("s_add_u32 s%d, s%d, 1" % (SI, SI))
        self("s_cmp_lt_u32 s%d, %d" % (SI, LIM_GLB))
        self("s_cbranch_scc1 %s" % L)
        self.label(D)

    def pg_issue(self, loads, plain=0):
        seqs = []
        for dst, nr, txt in loads:
            for t in txt:
                if t.startswith("buffer"):
                    s = self.vm(t.replace(" sc1", ["", " sc0", " nt"][plain - 1]) if plain else t)
                else:
                    self(t)
            seqs.append(s)
        return seqs
    def _pgchk(self, dst, nr, vt):
        self("v_max3_u32 v%d, v%d, v%d, v%d" % (vt, dst, dst + 1, dst + 2))
        i = 3
        while i + 1 < nr:
            self("v_max3_u32 v%d, v%d, v%d, v%d" % (vt, vt, dst + i, dst + i + 1)); i += 2
        self("v_max_u32 v%d, v%d, v%d" % (vt, vt, dst + i))
        self("v_cmp_eq_u32 vcc, -1, v%d" % vt)
    def pg_finish(self, loads, seqs, vt, consume, pre=None):
        SP, SI = S_T0 + 17, S_T0 + 16
        D = self.lbl("pgd"); L = self.lbl("pgl")
        self("s_mov_b32 s%d, 0" % SP)
        for p, (dst, nr, txt) in enumerate(loads):
            sk = self.lbl("pgs")
            self.wait_vm(seqs[p])
            if pre:
                pre(p)
            self._pgchk(dst, nr, vt)
            self("s_bitset1_b32 s%d, %d" % (SP, p))
            self("s_nop 0")
            self("s_cbranch_vccnz %s" % sk)
            self("s_bitset0_b32 s%d, %d" % (SP, p))
            consume(p)
            self.label(sk)
        self("s_cmp_eq_u32 s%d, 0" % SP)
        self("s_cbranch_scc1 %s" % D)
        self("s_mov_b32 s%d, 0" % SI)
        self.label(L)
        if self.slp:
            self("s_sleep %d" % self.slp)
        for p, (dst, nr, txt) in enumerate(loads):
            sk = self.lbl("pgr")
            self("s_bitcmp1_b32 s%d, %d" % (SP, p))
            self("s_cbranch_scc0 %s" % sk)
            for t in txt:
                self(t)
            self.label(sk)
        self("s_waitcnt vmcnt(0)")
        for p, (dst, nr, txt) in enumerate(loads):
            sk = self.lbl("pgc")
            self("s_bitcmp1_b32 s%d, %d" % (SP, p))
            self("s_cbranch_scc0 %s" % sk)
            if pre:
                pre(p)
            self._pgchk(dst, nr, vt)
            self("s_nop 1")
            self("s_cbranch_vccnz %s" % sk)
            self("s_bitset0_b32 s%d, %d" % (SP, p))
            consume(p)
            self.label(sk)
        self("s_cmp_eq_u32 s%d, 0" % SP)
        self("s_cbranch_scc1 %s" % D)
        self("s_add_u32 s%d, s%d, 1" % (SI, SI))
        self("s_cmp_lt_u32 s%d, %d" % (SI, LIM_GLB))
        self("s_cbranch_scc1 %s" % L)
        self.label(D)
        self.settle(8)


    def _pq_ld(self, p, txt, SR, PM, cnt):
        self("s_bitcmp1_b32 s%d, %d" % (SR, p))
        self("s_cselect_b64 exec, -1, s[%d:%d]" % (PM, PM + 1))
        if self.pl2:
            Lp = self.lbl("pqp"); Le = self.lbl("pqe")
            for t in txt:
                if not t.startswith("buffer"):
                    self(t)
            self("s_bitcmp1_b32 s67, %d" % p)
            self("s_cbranch_scc1 %s" % Lp)
            for t in txt:
                if t.startswith("buffer"):
                    self(t)
            self("s_branch %s" % Le)
            self.label(Lp)
            txt = [t.replace(" sc1", ["", " sc0"][self.pl2 - 1]) for t in txt if t.startswith("buffer")]
        for t in txt:
            if t.startswith("buffer") and cnt:
                s = self.vm(t)
            else:
                self(t); s = None
        if self.pl2:
            self.label(Le)
        return s
    def pq_issue(self, loads, SR, PM):
        seqs = [self._pq_ld(p, txt, SR, PM, True) for p, (dst, nr, txt) in enumerate(loads)]
        self("s_mov_b64 exec, -1")
        return seqs
    def pq_finish(self, loads, seqs, vt, consume, SR, PM, NB):
        SP, SI, SN, ST = S_T0 + 17, S_T0 + 16, S_T0 + 18, S_T0 + 19
        n = len(loads)
        D = self.lbl("pqd"); L = self.lbl("pql")
        def chk(p, dst, nr, sk):
            self._pgchk(dst, nr, vt)
            self("s_nop 1")
            self("s_bitcmp0_b32 vcc_hi, 31")
            self("s_cselect_b32 s%d, %d, 0" % (ST, 1 << p))
            self("s_or_b32 s%d, s%d, s%d" % (SN, SN, ST))
            self("s_bitcmp1_b32 s%d, %d" % (SR, p))
            self("s_cbranch_scc0 %s" % sk)
            self("s_cbranch_vccnz %s" % sk)
            self("s_bitset0_b32 s%d, %d" % (SP, p))
            consume(p)
            self.label(sk)
        self("s_mov_b32 s%d, %d" % (SP, (1 << n) - 1))
        self("s_mov_b32 s%d, 0" % SN)
        self("s_mov_b32 s%d, 0" % SI)
        for p, (dst, nr, txt) in enumerate(loads):
            self.wait_vm(seqs[p])
            chk(p, dst, nr, self.lbl("pqs"))
        self.label(L)
        self("s_cmp_eq_u32 s%d, 0" % SP)
        self("s_cbranch_scc1 %s" % D)
        self("s_add_u32 s%d, s%d, 1" % (SI, SI))
        self("s_cmp_ge_u32 s%d, %d" % (SI, LIM_GLB))
        self("s_cbranch_scc1 %s" % D)
        self("s_bcnt1_i32_b32 s%d, s%d" % (ST, SP))
        self("s_cmp_le_u32 s%d, %d" % (ST, NB))
        self("s_cselect_b32 s%d, -1, s%d" % (SR, SN))
        if self.pl2:
            self("s_andn2_b32 s67, s%d, s66" % SN)
            self("s_or_b32 s66, s66, s%d" % SR)
        if self.slp:
            sk = self.lbl("pqz")
            self("s_and_b32 s%d, s%d, s%d" % (ST, SN, SP))
            self("s_cbranch_scc1 %s" % sk)
            self("s_sleep %d" % self.slp)
            self.label(sk)
        for p, (dst, nr, txt) in enumerate(loads):
            sk = self.lbl("pqr")
            self("s_bitcmp1_b32 s%d, %d" % (SP, p))
            self("s_cbranch_scc0 %s" % sk)
            self._pq_ld(p, txt, SR, PM, False)
            self.label(sk)
        self("s_mov_b64 exec, -1")
        self("s_waitcnt vmcnt(0)")
        for p, (dst, nr, txt) in enumerate(loads):
            sk = self.lbl("pqc")
            self("s_bitcmp1_b32 s%d, %d" % (SP, p))
            self("s_cbranch_scc0 %s" % sk)
            chk(p, dst, nr, sk)
        self("s_branch %s" % L)
        self.label(D)
        self.settle(8)


def flag_addr(k, va, T):
    k("v_and_b32 v%d, 15, v1" % T)
    k("v_lshlrev_b32 v%d, 2, v%d" % (T, T))
    k("s_lshl_b32 s60, s%d, 8" % S_HP)
    k("s_lshl_b32 s61, s%d, 8" % S_RB); k("s_add_u32 s61, s61, 4096")
    k("v_mov_b32 v%d, s60" % (T + 1)); k("v_mov_b32 v%d, s61" % (T + 2))
    k("s_mov_b32 vcc_lo, 0xffff"); k("s_mov_b32 vcc_hi, 0xffff")
    k("v_cndmask_b32 v%d, v%d, v%d, vcc" % (va, T + 2, T + 1))
    k("v_add_u32 v%d, v%d, v%d" % (va, va, T))
    k("v_lshrrev_b32 v%d, 5, v1" % T)
    k("v_lshl_add_u32 v%d, v%d, 13, v%d" % (va, T, va))


def poll_flags(k, va, vold, vt, hi_mask, issued=False):
    LP = k.lbl("pf"); LD = k.lbl("pfd"); LC = k.lbl("pfc")
    k("s_mov_b32 s%d, 0" % (S_T0 + 19))
    k("s_mov_b32 exec_lo, 0"); k("s_mov_b32 exec_hi, 0x%x" % hi_mask)
    if issued is not False:
        k("s_waitcnt vmcnt(%d)" % issued)
        k("s_branch %s" % LC)
    k.label(LP)
    k("buffer_load_dword v%d, v%d, s[%d:%d], 0 offen sc1" % (vt, va, R_WS, R_WS + 3))
    k("s_waitcnt vmcnt(0)")
    k.label(LC)
    k("v_cmp_eq_u32 vcc, v%d, v%d" % (vt, vold))
    k("s_nop 1")
    k("s_cbranch_vccz %s" % LD)
    if k.slp:
        k("s_sleep %d" % k.slp)
    k("s_add_u32 s%d, s%d, 1" % (S_T0 + 19, S_T0 + 19))
    k("s_cmp_lt_u32 s%d, %d" % (S_T0 + 19, LIM_GLB))
    k("s_cbranch_scc1 %s" % LP)
    k.label(LD)
    k("s_mov_b64 exec, -1")


def wg_map(k, mp):
    if mp == 3:
        k("s_and_b32 s60, s2, 7"); k("s_lshl_b32 s60, s60, 1"); k("s_bfe_u32 s61, s2, 0x10003"); k("s_add_u32 s%d, s60, s61" % S_RB)
        k("s_lshr_b32 s%d, s2, 4" % S_HP)
        return
    if mp == 4:
        k("s_and_b32 s60, s2, 1"); k("s_lshl_b32 s60, s60, 3"); k("s_bfe_u32 s61, s2, 0x30003"); k("s_add_u32 s%d, s60, s61" % S_RB)
        k("s_bfe_u32 s60, s2, 0x20001"); k("s_lshl_b32 s60, s60, 2"); k("s_lshr_b32 s61, s2, 6"); k("s_add_u32 s%d, s60, s61" % S_HP)
        return
    k("s_and_b32 s60, s2, 3"); k("s_lshl_b32 s60, s60, 2"); k("s_bfe_u32 s61, s2, 0x20003"); k("s_add_u32 s%d, s60, s61" % S_RB)
    k("s_bfe_u32 s60, s2, 0x10002")
    if mp == 0:
        k("s_lshl_b32 s60, s60, 3"); k("s_lshr_b32 s61, s2, 5"); k("s_add_u32 s%d, s60, s61" % S_HP)
    elif mp == 1:
        k("s_lshl_b32 s60, s60, 1"); k("s_lshr_b32 s61, s2, 6"); k("s_lshl_b32 s61, s61, 2"); k("s_add_u32 s60, s60, s61")
        k("s_bfe_u32 s61, s2, 0x10005"); k("s_add_u32 s%d, s60, s61" % S_HP)
    elif mp == 2:
        k("s_lshl_b32 s60, s60, 2"); k("s_lshr_b32 s61, s2, 7"); k("s_lshl_b32 s61, s61, 3"); k("s_add_u32 s60, s60, s61")
        k("s_bfe_u32 s61, s2, 0x20005"); k("s_add_u32 s%d, s60, s61" % S_HP)
```

```python
from common import *

V_LANE = 1
V_XO, V_WO_, V_TR, V_TRQ, V_SY, V_OWN = 2, 3, 4, 5, 6, 7
PT = 8
V_SG = 12
V_GO = 13
V_T = 16
V_WF = 32
V_AK, V_AV, V_AQ, V_P = 64, 80, 80, 64
PH0, PH1 = 96, 100
V_RF = 104
V_X = 128
S_L2E = 62


def softmax_ops(P, E, out, T):
    o = []
    k = o.append
    mx0, mx1, mn0, mn1, a, b, c, d = T, T + 1, T + 2, T + 3, T + 4, T + 5, T + 6, T + 7
    for st in range(4):
        for op, dst in (("max", (mx0, mx1)), ("min", (mn0, mn1))):
            for t in range(2):
                p = P + 8 * t
                if st == 0:
                    k("v_%s3_f32 v%d, v%d, v%d, v%d" % (op, dst[t], p, p + 1, p + 2))
                elif st < 3:
                    k("v_%s3_f32 v%d, v%d, v%d, v%d" % (op, dst[t], dst[t], p + 1 + 2 * st, p + 2 + 2 * st))
                else:
                    k("v_%s_f32 v%d, v%d, v%d" % (op, dst[t], dst[t], p + 7))
    k("v_permlane32_swap_b32 v%d, v%d" % (mx0, mx1))
    k("v_permlane32_swap_b32 v%d, v%d" % (mn0, mn1))
    k("v_max_f32 v%d, v%d, v%d" % (a, mx0, mx1))
    k("v_min_f32 v%d, v%d, v%d" % (c, mn0, mn1))
    k("v_mul_f32 v%d, s%d, v%d" % (b, S_L2E, a))
    k("v_mul_f32 v%d, s%d, v%d" % (d, S_L2E, c))
    k("v_mul_f32 v%d, s%d, v%d" % (a, S_L2E, a))
    k("v_mul_f32 v%d, s%d, v%d" % (c, S_L2E, c))
    k("v_permlane32_swap_b32 v%d, v%d" % (a, b))
    k("v_permlane32_swap_b32 v%d, v%d" % (c, d))
    mxl = (a, b); mnl = (c, d)
    S = [[T + 8, T + 9], [T + 10, T + 11]]
    seq = [(sg, t, j) for j in range(8) for sg in range(2) for t in range(2)]
    def fma(sg, t, j):
        i = 8 * t + j
        if sg == 0:
            k("v_fma_f32 v%d, v%d, s%d, -v%d" % (E + i, P + i, S_L2E, mxl[t]))
        else:
            k("v_fma_f32 v%d, -v%d, s%d, v%d" % (E + 16 + i, P + i, S_L2E, mnl[t]))
    def ex(sg, t, j):
        e = E + 16 * sg + 8 * t + j
        k("v_exp_f32 v%d, v%d" % (e, e))
    def add(sg, t, j):
        e = E + 16 * sg + 8 * t
        if j == 1:
            k("v_add_f32 v%d, v%d, v%d" % (S[sg][t], e, e + 1))
        elif j > 1:
            k("v_add_f32 v%d, v%d, v%d" % (S[sg][t], S[sg][t], e + j))
    for n in range(32 + 4):
        if n < 32:
            fma(*seq[n])
        if 2 <= n < 34:
            ex(*seq[n - 2])
        if n >= 4:
            add(*seq[n - 4])
    for sg in range(2):
        k("v_permlane32_swap_b32 v%d, v%d" % (S[sg][0], S[sg][1]))
    R = [[T, T + 1], [T + 2, T + 3]]
    for sg in range(2):
        k("v_add_f32 v%d, v%d, v%d" % (R[sg][0], S[sg][0], S[sg][1]))
    for sg in range(2):
        k("v_rcp_f32 v%d, v%d" % (R[sg][0], R[sg][0]))
    for sg in range(2):
        k("v_mov_b32 v%d, v%d" % (R[sg][1], R[sg][0]))
    for sg in range(2):
        k("v_permlane32_swap_b32 v%d, v%d" % (R[sg][0], R[sg][1]))
    for t in range(2):
        for sg in range(2):
            e = E + 16 * sg + 8 * t
            for i in range(8):
                k("v_mul_f32 v%d, v%d, v%d" % (e + i, e + i, R[sg][t]))
            for j in range(4):
                k("v_cvt_pk_bf16_f32 v%d, v%d, v%d" % (out + (2 * t + sg) * 4 + j, e + 2 * j, e + 2 * j + 1))
            k("#stage %d" % (2 * t + sg))
    return o


Q8 = "q0 q1 q2 q3 q4 q5 q6 q7"
SCHEDS = {
    0: dict(order="k0 k1 k2 k3 x0 x1 k4 k5 k6 k7 x2 x3 v0 v1 x4 x5 x6 p x7 v2 v3 v4 v5 v6 v7 " + Q8, nup=20,
            groups="k0 k1 k2 k3 k4 k5 v0 k6 k7 v1 P v2 v3 v4 v5 v6 v7",
            need="k0:1 k4:2 v0:3 k6:2 v1:3 v2:4 v5:5",
            ev={"pro": "s1:k3 w1",
                "k0": "L L,L L,L L,L L", "k1": "s2:k7 L L,L L,L,L", "k2": "L,L,p L,L", "k3": "w2 s3:v1 L,L,L,L", "k4": "L,L,p L,L",
                "k5": "w3 L,L,L,L", "v0": "L,L,L,L", "k6": "L,L,L,L", "k7": "R L,,L,", "v1": ",C,,",
                "P": ",s4:v4 p 8 w4 16", "v2": "6,6,6,6", "v3": "6,6 s5:v7,6 p,6", "v4": "w5 6,6,6,6", "v5": "6,6,6,6", "v6": "6,6,6,6", "v7": "6,6,6,6"}),
    1: dict(order="k0 k1 k2 k3 x0 x1 k4 k5 k6 k7 x2 x3 v0 v1 x4 x5 x6 p x7 v2 v3 v4 v5 v6 v7 " + Q8, nup=30,
            groups="k0 k1 k2 k3 k4 k5 v0 k6 k7 v1 P v2 v3 v4 v5 v6 v7",
            need="k0:1 k4:2 v0:3 k6:2 v1:3 v2:4 v5:5",
            ev={"pro": "s1:k3 w1",
                "k0": "L L,L L,L L,L L", "k1": "s2:k7 L L,L L,L,L", "k2": "L,L,p L,L", "k3": "w2 s3:v1 L,L,L,L", "k4": "L,L,p L,L",
                "k5": "w3 L,L,L,L", "v0": "L,L,L,L", "k6": "L,L,L,L", "k7": "R L,,L,", "v1": ",C,,",
                "P": ",s4:v4 p 8 w4 16", "v2": "6,6,6,6", "v3": "6,6 s5:v7,6 p,6", "v4": "w5 6,6,6,6", "v5": "6,6,6,6", "v6": "6,6,6,6", "v7": "6,6,6,6"}),
    2: dict(order="k0 k1 k2 k3 x0 x1 k4 k5 k6 k7 x2 x3 x4 x5 x6 x7 p v0 v1 v2 v3 v4 v5 v6 v7 " + Q8, nup=28,
            groups="k0 k1 k2 k3 k4 k5 k6 k7 P v0 v1 v2 v3 v4 v5 v6 v7",
            need="k0:1 k4:2 v0:3 v4:4",
            ev={"pro": "s1:k3 w1", "d0": "L,L,L,L",
                "k0": "L L L,L L L,L L L,L L", "k1": "s2:k7 L,,L,", "k2": "L,,p L,", "k3": "w2 L,,L,", "k4": "L,,L,",
                "k5": "L,,L,", "k6": ",,,", "k7": "R,,,s3:v3 C",
                "P": "p,w3 10", "v0": "5,5,5 s4:v7,5", "v1": "5 L,5,5,5", "v2": "5 L,5,5 p,5", "v3": "w4 5,5 L,5,5", "v4": "5 L,5,5,5", "v5": "5,5,5,5", "v6": "5,5,5,5", "v7": "5,5,5,5"}),
    3: dict(order="k0 k1 k2 k3 x0 x1 k4 k5 k6 k7 x2 x3 x4 x5 x6 x7 p v0 v1 v2 v3 v4 v5 v6 v7 " + Q8, nup=20,
            groups="k0 k1 k2 k3 k4 k5 k6 k7 P v0 v1 v2 v3 v4 v5 v6 v7",
            need="k0:1 k4:2 v0:3 v4:4",
            ev={"pro": "s1:k3 w1", "d0": "L L L,L L L,L L L,L L L",
                "k0": "L L L,L L L,L L L,L L", "k1": "s2:k7 L,,L,", "k2": "L,,p L,", "k3": "w2 L,,L,", "k4": "L,,L,",
                "k5": "L,,L,", "k6": ",,,", "k7": "R,,,s3:v3 C",
                "P": "p,w3 10", "v0": "5,5,5 s4:v7,5", "v1": "5 L,5,5,5", "v2": "5 L,5,5 p,5", "v3": "w4 5,5 L,5,5", "v4": "5 L,5,5,5", "v5": "5,5,5,5", "v6": "5,5,5,5", "v7": "5,5,5,5"}),
    4: dict(order="k0 k1 k2 k3 x0 x1 k4 k5 k6 k7 x2 x3 x4 x5 x6 x7 p v0 v1 v2 v3 v4 v5 v6 v7 " + Q8, nup=28,
            groups="k0 k1 k2 k3 k4 k5 k6 k7 P v0 v1 v2 v3 v4 v5 v6 v7",
            need="k0:1 k4:2 v0:3 v4:4",
            ev={"pro": "s1:k3 w1", "d0": "L,L,L,L",
                "k0": "L L L,L L L,L L L,L L", "k1": "s2:k7 L,L,L,L", "k2": "L,,p L,", "k3": "w2,,,", "k4": ",,,",
                "k5": ",,,", "k6": ",,,", "k7": "R,,,s3:v3 C",
                "P": "p,w3 10", "v0": "5 L,5,5 s4:v7,5", "v1": "5 L,5,5 L,5", "v2": "5 L,5,5 p L,5", "v3": "w4 5,5 L,5,5", "v4": "5 L,5,5 L,5", "v5": "5,5,5,5", "v6": "5,5,5,5", "v7": "5,5,5,5"}),
    5: dict(order="k0 v0 k1 v1 k2 v2 k3 v3 x0 x1 k4 v4 k5 v5 k6 v6 k7 v7 x2 x3 x4 x5 x6 p x7 " + Q8, nup=24,
            groups="k0 v0 k1 v1 k2 v2 k3 v3 k4 v4 k5 v5 k6 v6 k7 P v7",
            need="k0:1 k4:2",
            ev={"pro": "s1:v3 w1",
                "k0": "L L,L,L L,L", "v0": "L L,L,L L,L", "k1": "s2:v7 L,L,L,L", "v1": "L,L,L,L", "k2": "L,L,L,", "v2": "L,p,L,",
                "k3": "w2 L,,L,", "v3": "L,,L,", "k4": "s3:x4 L,,L,", "v4": "L,,L,", "k7": "R,,p,C",
                "P": ",w3 10", "v7": "6,6,6,6"}),
    6: dict(order="k0 v0 k1 v1 k2 v2 k3 v3 x0 x1 k4 v4 k5 v5 k6 v6 k7 v7 x2 x3 x4 x5 x6 p x7 " + Q8, nup=24,
            groups="k0 v0 k1 v1 k2 v2 k3 v3 k4 v4 k5 v5 k6 k7 v6 P v7",
            need="k0:1 k4:2",
            ev={"pro": "s1:v3 w1",
                "k0": "L L,L,L L,L", "v0": "L L,L,L L,L", "k1": "s2:v7 L,L,L,L", "v1": "L,L,L,L", "k2": "L,L,L,", "v2": "L,p,L,",
                "k3": "w2 L,,L,", "v3": "L,,L,", "k4": "s3:x4 L,,L,", "v4": "L,,L,", "k7": "R,,p,", "v6": ",C,,",
                "P": ",w3 10", "v7": "6,6,6,6"}),
    7: dict(order="k0 v0 k1 v1 k2 v2 k3 v3 x0 x1 k4 v4 k5 v5 k6 v6 k7 v7 x2 x3 x4 x5 x6 x7 p " + Q8, nup=24,
            groups="k0 v0 k1 v1 k2 v2 k3 v3 k4 k5 v4 k6 k7 P v5 v6 v7",
            need="k0:1 k4:2",
            ev={"pro": "s1:v3 w1", "d0": "L L,L L,L L,L L",
                "k0": "L L,L,L L,L", "v0": "L L,L,L L,L", "k1": "s2:v7 L,L,L,L", "v1": "L,,L,", "k2": "L,,L,", "v2": "L,p,L,",
                "k3": "w2 L,,L,", "v3": "L,,L,", "k4": "s3:x4 L,,L,", "v4": "L,,L,", "k7": "R,,p,C",
                "P": ",w3 10", "v5": "6,6,6,6", "v6": "6,6,6,6", "v7": "6,6,6,6"}),
    8: dict(order="k0 v0 k1 v1 x0 k2 v2 k3 v3 x1 x2 k4 k5 k6 k7 x3 x4 x5 v4 v5 v6 v7 x6 x7 p " + Q8, nup=24,
            groups="k0 v0 k1 v1 k2 v2 k3 v3 k4 k5 k6 k7 P v4 v5 v6 v7",
            need="k0:1 k2:2 k4:3 v4:4",
            ev={"pro": "s1:v1 w1", "d0": "L L,L L,s2:v3 L L,L L",
                "k0": "L L,L,L L p,L", "v0": "L L,L,L L,L", "k1": "w2 s3:k7 L,L,L,L", "v1": "L,L,L,L", "k2": "L,,L,", "v2": "L,p,L,",
                "k3": "w3 L,,L,", "v3": "L,,L,", "k4": "s4:v7 L,,L,", "k5": "L,,L,", "k7": "R,,p,C",
                "P": ",w4 10", "v4": "6,6,6,6", "v5": "6,6,6,6", "v6": "6,6,6,6", "v7": "6,6,6,6"}),
    9: dict(order="k0 v0 x0 k1 v1 x1 k2 v2 k3 v3 x2 x3 k4 v4 k5 v5 x4 x5 k6 v6 k7 v7 x6 x7 p " + Q8, nup=16,
            groups="k0 v0 k1 v1 k2 v2 k3 v3 k4 v4 k5 v5 k6 v6 k7 P v7",
            need="k0:1 k2:2 k4:3 k6:4",
            ev={"pro": "s1:v1 w1",
                "k0": "L,L,L,L", "v0": "L,L,L,L s2:v3", "k1": "L,L,L,p L", "v1": "w2 L,L,L,L", "k2": "L,L,L,L", "v2": "L,L,L,L s3:v5",
                "k3": "L,L,L,p L", "v3": "w3 L,L,L,L", "k4": "L,L,L,L", "v4": "L,,L,s4:v7", "k5": "L,L,L,p L", "v5": "w4 L,L,L,L", "k6": "L,L,L,L", "k7": "R,,,C",
                "P": ",10", "v7": "6,6,6,6"}),
    10: dict(order="k0 v0 x0 k1 v1 k2 v2 k3 v3 x1 x2 k4 v4 k5 v5 k6 v6 k7 v7 x3 x4 x5 x6 x7 p " + Q8, nup=20,
            groups="k0 v0 k1 v1 k2 v2 k3 v3 k4 v4 k5 v5 k6 v6 k7 P v7",
            need="k0:1 k4:2",
            ev={"pro": "s1:v3 w1",
                "k0": "L L,L L,L L,L L", "v0": "L,L,L,L", "k1": "L L,L L,L L,L L", "v1": "L,L,L,L", "k2": "L,L,L,L", "v2": "s2:v7 L,L,L,L",
                "k3": "L,L,L,p L", "v3": "w2 L,L,L,L", "k4": "s3:x4 L,L,L,L", "v4": "L,,L,", "k7": "R,,p,C",
                "P": ",w3 10", "v7": "6,6,6,6"}),
}


def role_a(k, opt):
    T = V_T
    aw = S_RW
    V_XD = 56
    k("s_lshl_b32 s60, s%d, 6" % S_HP)
    k("s_sub_u32 s61, %d, s60" % (512 * 3072))
    k.srd(R_B, S_W, "s61", off_sgpr=60)
    k("v_lshrrev_b32 v%d, 2, v%d" % (T + 2, V_LANE))
    k("v_and_b32 v%d, 3, v%d" % (T + 3, V_LANE))
    k("s_movk_i32 s60, 3072")
    k("v_mul_lo_u32 v%d, v%d, s60" % (V_WO_, T + 2))
    k("v_lshl_add_u32 v%d, v%d, 4, v%d" % (V_WO_, T + 3, V_WO_))
    k("s_mul_i32 s66, s%d, %d" % (aw, 16 * 3072))
    k("s_add_u32 s76, s66, 1024"); k("s_add_u32 s77, s66, 2048")
    k("s_lshl_b32 s67, s%d, 10" % aw)
    k("s_lshl_b32 s63, s%d, 1" % S_RB); k("s_add_u32 s63, s63, s%d" % S_HP)
    last = {}
    WL = {"k": (WK, 76), "v": (WV, 77), "q": (WQ, 66)}
    def micro(item):
        kind, p = item
        out = []
        if kind in WL:
            lds, go = WL[kind]
            def f():
                k("s_add_u32 s64, s63, %d" % p); k("s_and_b32 s64, s64, 7")
                k("s_mul_i32 s65, s64, %d" % (64 * 3072)); k("s_add_u32 s65, s65, s%d" % go)
                k("s_add_u32 m0, s67, %d" % (lds + p * 4096))
                last[item] = k.vm("buffer_load_dwordx4 v%d, s[%d:%d], s65 offen lds" % (V_WO_, R_B, R_B + 3))
            out.append(f)
        elif kind == "x":
            for i in range(4):
                def f(i=i):
                    if i == 0:
                        k("s_add_u32 s68, s63, %d" % p); k("s_and_b32 s68, s68, %d" % (0 if opt.get("xsame") else 7)); k("s_lshl_b32 s68, s68, 7")
                    last[item] = k.vm("buffer_load_dwordx4 %s, v%d, s[%d:%d], s68 offen offset:%d" % (vr(V_X + 16 * p + 4 * i, 4), V_XD + i, R_A, R_A + 3, 1024 * i))
                out.append(f)
        elif kind == "p":
            def f():
                k("s_mov_b32 m0, %d" % WPHI)
                last[item] = k.vm("buffer_load_dwordx4 v%d, s[%d:%d], 0 offen lds" % (15, R_C, R_C + 3))
            out.append(f)
        return out
    SCH = SCHEDS[opt.get("sch", 0)]
    order = [(s[0], int(s[1:]) if s[0] != "p" else 0) for s in SCH["order"].split()]
    mq = [f for it in order for f in micro(it)]
    NW0 = 0
    while order[NW0][0] in WL:
        NW0 += 1
    NUP = opt.get("nup", SCH["nup"])
    nb = opt.get("abar", 0)
    for n, f in enumerate(mq[:NW0]):
        if n == nb and opt.get("bar"):
            k("s_barrier")
        f()
    k("s_lshl_b32 s60, s%d, 17" % S_RB); k("s_lshl_b32 s61, s%d, 15" % aw); k("s_add_u32 s60, s60, s61")
    k.srd(R_A, S_X, 32768, off_sgpr=60)
    k("v_lshrrev_b32 v%d, 5, v%d" % (T + 7, V_LANE))
    k("v_and_b32 v%d, 28, v%d" % (V_XD, V_LANE))
    k("v_lshlrev_b32 v%d, 10, v%d" % (V_XD, V_XD))
    k("v_lshl_add_u32 v%d, v%d, 6, v%d" % (V_XD, T + 7, V_XD))
    k("v_lshl_add_u32 v%d, v%d, 4, v%d" % (V_XD, T + 3, V_XD))
    for i in range(1, 4):
        k("v_xor_b32 v%d, %d, v%d" % (V_XD + i, 0 if opt.get("nosw") else 16 * i, V_XD))
    k("s_lshl_b32 s60, s%d, 10" % S_HP)
    k.srd(R_C, S_WPHI, 1024, off_sgpr=60)
    k("v_lshlrev_b32 v15, 4, v%d" % V_LANE)
    for n, f in enumerate(mq[NW0:NUP]):
        if n + NW0 == nb and opt.get("bar"):
            k("s_barrier")
        f()
    rest = mq[NUP:]
    k("v_lshrrev_b32 v%d, 4, v%d" % (T + 4, V_LANE))
    k("v_bfe_u32 v%d, v%d, 2, 2" % (T + 9, V_LANE))
    k("v_lshl_add_u32 v%d, v%d, 5, v%d" % (T + 10, T + 7, T + 9))
    k("v_and_b32 v%d, 1, v%d" % (T + 11, T + 4))
    k("v_lshlrev_b32 v%d, 6, v%d" % (V_TR, T + 10))
    k("v_lshl_add_u32 v%d, v%d, 5, v%d" % (V_TR, T + 11, V_TR))
    k("v_lshl_add_u32 v%d, v%d, 3, v%d" % (V_TR, T + 3, V_TR))
    k("v_add_u32 v%d, 0x10000, v%d" % (V_TRQ, V_TR))
    k("v_mov_b32 v%d, %d" % (V_SY, SYNC))
    k("s_lshl_b32 s60, s%d, 2" % aw)
    k("s_add_u32 s60, s60, %d" % SYNC)
    k("v_mov_b32 v%d, s60" % V_OWN)
    k("s_mov_b32 s%d, 0x3fb8aa3b" % S_L2E)
    k("s_mov_b32 s70, 0xaaaaaaaa"); k("s_mov_b32 s71, 0xaaaaaaaa")
    k("s_mov_b32 s72, 0xcccccccc"); k("s_mov_b32 s73, 0xcccccccc")
    VPA, VSK, VSV = 62, 60, 61
    k("v_lshl_add_u32 v%d, v%d, 2, v%d" % (VPA, T + 7, T + 9))
    k("v_lshlrev_b32 v%d, 5, v%d" % (VPA, VPA))
    k("v_lshl_add_u32 v%d, v%d, 9, v%d" % (VPA, T + 11, VPA))
    k("v_lshl_add_u32 v%d, v%d, 3, v%d" % (VPA, T + 3, VPA))
    k("v_add_u32 v%d, %d, v%d" % (VPA, WPHI, VPA))
    k("v_cmp_eq_u32 s[74:75], 0, v%d" % (T + 11))
    k("v_and_b32 v%d, 31, v%d" % (VSK, V_LANE))
    k("v_lshlrev_b32 v%d, 5, v%d" % (VSK, VSK))
    k("v_lshl_add_u32 v%d, v%d, 4, v%d" % (VSK, T + 7, VSK))
    k("s_lshl_b32 s60, s%d, 12" % aw); k("s_add_u32 s60, s60, %d" % BOUNCE)
    k("v_add_u32 v%d, s60, v%d" % (VSV, VSK))
    k("v_add_u32 v%d, s67, v%d" % (VSK, VSK))
    if opt.get("aprio", 0):
        k("s_setprio %d" % opt.get("aprio", 0))
    k.stamp()
    def xreg(c, j):
        return V_X + 16 * c + 4 * j
    def dp(c, g):
        R = [V_X + 16 * c + 4 * i for i in range(4)]
        Tt = [32 + 4 * i for i in range(4)]
        ops = []
        for (src, dst, m, x) in ((R, Tt, "s[70:71]", 1), (Tt, R, "s[72:73]", 2)):
            for a in (1, 2, 3, 0):
                for w in range(4):
                    ops.append("v_cndmask_b32 v%d, v%d, v%d, %s" % (dst[a] + w, src[a] + w, src[a ^ x] + w, m))
        for p, qp in ((1, "[1,0,3,2]"), (2, "[2,3,0,1]"), (3, "[3,2,1,0]")):
            for w in range(4):
                ops.append("v_mov_b32_dpp v%d, v%d quad_perm:%s row_mask:0xf bank_mask:0xf" % (R[p] + w, R[p] + w, qp))
        if g == 0:
            k.wait_vm(last[("x", c)])
            if opt.get("exp") == 1:
                k.stamp()
        for o in ops[11 * g:11 * g + 11]:
            if not opt.get("nodp"):
                k(o)
    groups = SCH["groups"].split()
    mf = [(g[0], int(g[1:]), ks) for g in groups if g != "P" for ks in range(4)]
    wr = {}
    nd = dict(s.split(":") for s in SCH["need"].split())
    lvl = []
    for g in groups:
        if g != "P":
            lvl += [int(nd[g]) if g in nd else lvl[-1]] * 4
    st = {"have": 0, "nread": 0, "cur": -1}
    LA = opt.get("la", 4)
    def pump():
        while st["nread"] < len(mf) and st["nread"] <= st["cur"] + LA and lvl[st["nread"]] <= st["have"]:
            tr(st["nread"]); st["nread"] += 1
    def tr(i):
        kind, c, ks = mf[i]
        for t in range(2):
            off = WL[kind][0] + c * 4096 + ks * 512 + 256 * t
            wr[i] = k.lg("ds_read_b64_tr_b16 %s, v%d offset:%d" % (vr(V_RF + 4 * (i % 6) + 2 * t, 2), V_TR, off))
    KB_ = 32
    PHI = V_P
    sm = softmax_ops(V_P, 32, PHI, T)
    def smx(n):
        nonlocal sm
        while n > 0 and sm:
            s = sm[0]; sm = sm[1:]
            if s[0] == "#":
                g = int(s.split()[1])
                k.lg("ds_write_b128 v14, %s offset:%d" % (vr(PHI + 4 * g, 4), g * 4096))
            else:
                k(s); n -= 1
    pre = {}
    raw = {}
    def event(e):
        nonlocal rest
        if e == "L":
            if rest:
                rest[0](); rest = rest[1:]
        elif e == "R":
            k.wait_vm(last[("p", 0)])
            k.lg("ds_read_b64_tr_b16 %s, v%d" % (vr(48, 2), VPA))
            raw["s"] = k.lg("ds_read_b64_tr_b16 %s, v%d offset:256" % (vr(50, 2), VPA))
        elif e == "C":
            k.wait_lg(raw["s"])
            for j in range(4):
                k("v_cndmask_b32 v%d, 0, v%d, s[74:75]" % (PH0 + j, 48 + j))
                k("v_cndmask_b32 v%d, v%d, 0, s[74:75]" % (PH1 + j, 48 + j))
            k("v_mov_b32 v14, v%d" % VSK); k("v_mov_b32 v15, v%d" % VSV)
            for j in range(8):
                k("v_cvt_pk_bf16_f32 v%d, v%d, v%d" % (KB_ + j, V_AK + 2 * j, V_AK + 2 * j + 1))
        elif e[0] == "s":
            v, it = e[1:].split(":")
            k.wait_vm(last[(it[0], int(it[1:]))])
            k.signal(V_OWN, V_SG, int(v))
        elif e[0] == "p":
            pre["seq"] = k._rdw(V_SY, 0, 4, PT)
        elif e[0] == "w":
            k.wait_words2(V_SY, 0, 4, int(e[1:]), PT, pre.pop("seq", None))
            st["have"] = int(e[1:])
            pump()
        else:
            smx(int(e))
    EV = SCH["ev"]
    if opt.get("iso"):
        k("s_waitcnt vmcnt(0)")
        k.signal(V_OWN, V_SG, 1)
        k.wait_words(V_SY, 0, 4, 1, PT)
        k.stamp()
        k("s_memtime s[100:101]")
        k("s_waitcnt lgkmcnt(0)")
    for e in EV.get("pro", "").split():
        event(e)
    for i in range(4):
        dp(0, i)
        for e in EV.get("d0", ",,,").split(",")[i].split():
            event(e)
    waited = -1
    i = 0
    first = {"k": True, "v": True}
    for gi, g in enumerate(groups):
        evg = EV.get(g, ",,,").split(",")
        if g == "P":
            for n, (ph, kb) in enumerate(((PH0, KB_), (PH1, KB_ + 4))):
                k("v_mfma_f32_32x32x16_bf16 %s, %s, %s, %s" % (vr(V_P, 16), vr(ph, 4), vr(kb, 4), vr(V_P, 16) if n else "0"))
                for e in evg[n].split():
                    event(e)
            if opt.get("iso"):
                k("s_memtime s[82:83]")
                k("s_waitcnt lgkmcnt(0)")
                k("s_sub_u32 s%d, s82, s100" % (S_STAMP + 12))
                k("s_add_u32 s%d, s%d, s%d" % (S_STAMP + 12, S_STAMP + 12, S_STAMP))
            k.stamp()
            continue
        nxt = groups[gi + 1] if gi + 1 < len(groups) else "-"
        for ks in range(4):
            kind, c, _ = mf[i]
            if wr[i] > waited:
                waited = wr[i]
                k.wait_lg(waited)
            acc = {"k": V_AK, "v": V_AV}[kind]
            k("v_mfma_f32_32x32x16_bf16 %s, %s, %s, %s" % (vr(acc, 16), vr(V_RF + 4 * (i % 6), 4), vr(xreg(c, ks), 4), "0" if first[kind] else vr(acc, 16)))
            first[kind] = False
            evs = evg[ks].split()
            st["cur"] = i
            lastw = 0 if evs and evs[0][0] == "w" else -1
            for e in evs[:lastw + 1]:
                event(e)
            pump()
            if nxt[0] == "k":
                dp(int(nxt[1:]), ks)
            for e in evs[lastw + 1:]:
                event(e)
            i += 1
    assert not rest
    if opt.get("bwo"):
        k.signal(V_OWN, V_SG, 8)
    nleft = len(sm)
    smx(12)
    VB = 104
    for j in range(8):
        k("v_cvt_pk_bf16_f32 v%d, v%d, v%d" % (VB + j, V_AV + 2 * j, V_AV + 2 * j + 1))
    for t in range(2):
        k.lg("ds_write_b128 v15, %s offset:%d" % (vr(VB + 4 * t, 4), t * 1024))
    smx(1000)
    print("softmax ops left after GEMM:", nleft)
    lastq = last[("q", 7)]
    k.signal(V_OWN, V_SG, 9)
    k("v_lshrrev_b32 v%d, 2, v%d" % (T, V_LANE))
    k("v_and_b32 v%d, 3, v%d" % (T + 1, V_LANE))
    k("v_lshlrev_b32 v%d, 5, v%d" % (T, T))
    k("v_lshl_add_u32 v%d, v%d, 3, v%d" % (T, T + 1, T))
    k("s_lshl_b32 s60, s%d, 12" % aw)
    k("s_lshr_b32 s61, s%d, 1" % aw); k("s_lshl_b32 s61, s61, 10"); k("s_add_u32 s61, s61, %d" % BOUNCE)
    k("v_add_u32 v%d, s60, v%d" % (T + 2, T))
    k("v_add_u32 v%d, s61, v%d" % (T + 3, T))
    ONES = T + 4
    for j in range(4):
        k("v_mov_b32 v%d, 0x3f803f80" % (ONES + j))
    s_cl = k.lg("ds_read_b32 v%d, v%d offset:32" % (T + 12, V_SY))
    k.wait_words(V_SY, 0, 4, 9, PT)
    k.stamp()
    if opt.get("exp"):
        k("s_waitcnt vmcnt(0)")
        k.stamp()
        k.dump_stamps(32)
        return
    seqs = []
    for e in range(4):
        for ab in range(2):
            for t in range(2):
                seqs.append(k.lg("ds_read_b64_tr_b16 %s, v%d offset:%d" % (vr(32 + 8 * e + 4 * ab + 2 * t, 2), T + 2 + ab, (4096 if ab else 1024) * e + 512 * t)))
    k("s_lshl_b32 s60, s%d, 4" % S_HP); k("s_add_u32 s60, s60, s%d" % S_RB); k("s_mul_i32 s60, s60, %d" % KVP_STRIDE)
    k("s_add_u32 s60, s60, %d" % WS_KVP)
    k("s_lshl_b32 s61, s%d, 9" % aw)
    k("v_and_b32 v%d, 15, v%d" % (T, V_LANE))
    k("v_lshrrev_b32 v%d, 5, v%d" % (T + 8, V_LANE))
    k("v_lshlrev_b32 v%d, 4, v%d" % (T, T))
    k("v_lshl_add_u32 v%d, v%d, 8, v%d" % (T, T + 8, T))
    k("v_add_u32 v%d, s61, v%d" % (T, T))
    k("v_and_b32 v%d, 31, v%d" % (V_GO, V_LANE))
    k("v_lshlrev_b32 v%d, 4, v%d" % (V_GO, V_GO))
    k("v_mul_u32_u24 v%d, %d, v%d" % (T + 8, KVP_STRIDE, T + 8))
    k("v_add3_u32 v%d, v%d, v%d, s61" % (V_GO, V_GO, T + 8))
    k("s_lshl_b32 s61, s%d, 6" % aw); k("s_add_u32 s61, s61, 2048")
    k("v_and_b32 v%d, 0x30, v%d" % (T + 1, V_LANE))
    k("v_add_u32 v%d, s61, v%d" % (T + 1, T + 1))
    k("v_mov_b32 v15, v%d" % (T + 1))
    KV, ZZ, KS = 104, 108, 112
    for e in range(4):
        k.wait_lg(seqs[4 * e + 3])
        k("v_mfma_f32_16x16x32_bf16 %s, %s, %s, %s" % (vr(KV, 4), vr(32 + 8 * e, 4), vr(36 + 8 * e, 4), vr(KV, 4) if e else "0"))
        k("v_mfma_f32_16x16x32_bf16 %s, %s, %s, %s" % (vr(ZZ, 4), vr(32 + 8 * e, 4), vr(ONES, 4), vr(ZZ, 4) if e else "0"))
    k.wait_words2(V_SY, 32, 1, 4, T + 12, s_cl)
    k("s_mov_b32 s68, 0x0000ffff"); k("s_mov_b32 s69, 0x0000ffff")
    k("s_mov_b32 s74, 0x00010001"); k("s_mov_b32 s75, 0x00010001")
    for j in range(4):
        k("v_cvt_pk_bf16_f32 v%d, v%d, v%d" % (KS + j, KV + 2 * (j % 2), KV + 2 * (j % 2) + 1))
    for j in range(2):
        k("v_permlane16_swap_b32 v%d, v%d" % (KS + j, KS + 2 + j))
    for j in range(4):
        k("v_min_u32 v%d, -2, v%d" % (KS + j, KS + j))
    for j in range(4):
        k("v_min_u32 v%d, -2, v%d" % (ZZ + j, ZZ + j))
    k("s_mov_b64 exec, s[68:69]")
    k.vm("buffer_store_dwordx4 %s, v%d, s[%d:%d], s60 offen sc1" % (vr(KS, 4), T, R_WS, R_WS + 3))
    k("s_mov_b64 exec, s[74:75]")
    k.vm("buffer_store_dwordx4 %s, v%d, s[%d:%d], s60 offen sc1" % (vr(ZZ, 4), T + 1, R_WS, R_WS + 3))
    k("s_mov_b64 exec, -1")
    k.wait_vm(lastq)
    k.signal(V_OWN, V_SG, 10)
    k.stamp()
    k("s_lshr_b32 s60, s%d, 1" % S_HP); k("s_lshl_b32 s60, s60, 7")
    k("s_sub_u32 s61, %d, s60" % (512 * 1024))
    k.srd(R_C, S_WO, "s61", off_sgpr=60)
    k("v_lshrrev_b32 v%d, 3, v%d" % (T + 2, V_LANE))
    k("v_and_b32 v%d, 7, v%d" % (T + 3, V_LANE))
    k("v_bfe_u32 v%d, v%d, 4, 1" % (T + 4, V_LANE))
    k("v_lshlrev_b32 v%d, 2, v%d" % (T + 4, T + 4))
    k("v_xor_b32 v%d, v%d, v%d" % (T + 3, T + 3, T + 4))
    k("v_lshlrev_b32 v%d, 10, v%d" % (V_XO, T + 2))
    k("v_lshl_add_u32 v%d, v%d, 4, v%d" % (V_XO, T + 3, V_XO))
    k("s_lshl_b32 s66, s%d, 13" % aw)
    def wo1(n):
        part, i = n // 8, n % 8
        k("s_add_u32 s68, s66, %d" % ((part * 256 + 32 * i) * 1024))
        k("s_add_u32 m0, s67, %d" % ((WV, WK)[part] + i * 4096))
        return k.vm("buffer_load_dwordx4 v%d, s[%d:%d], s68 offen lds" % (V_XO, R_C, R_C + 3))
    k.wait_words(V_SY, 0, 4, 10, PT)
    if opt.get("qst"):
        k.stamp()
    if opt.get("qprio"):
        k("s_setprio %d" % opt["qprio"])
    qs = {}
    def trq(i):
        if i < 32:
            for t in range(2):
                off = (i // 4) * 4096 + (i % 4) * 512 + 256 * t
                qs[i] = k.lg("ds_read_b64_tr_b16 %s, v%d offset:%d" % (vr(V_WF + 4 * (i % 8) + 2 * t, 2), V_TRQ, off))
    LQ = 6
    for i in range(LQ):
        trq(i)
    SEL = 104
    k("v_and_b32 v%d, 15, v%d" % (T, V_LANE))
    k("v_bfe_u32 v%d, v%d, 4, 1" % (T + 1, V_LANE))
    k("v_lshlrev_b32 v%d, 3, v%d" % (T + 1, T + 1))
    k("v_sub_u32 v%d, v%d, v%d" % (T + 1, T, T + 1))
    k("v_and_b32 v%d, 1, v%d" % (T + 2, T + 1))
    k("v_lshlrev_b32 v%d, 4, v%d" % (T + 2, T + 2))
    k("v_mov_b32 v%d, 0x3f80" % (T + 3))
    k("v_lshlrev_b32 v%d, v%d, v%d" % (T + 3, T + 2, T + 3))
    k("v_ashrrev_i32 v%d, 1, v%d" % (T + 1, T + 1))
    for w in range(4):
        k("v_cmp_eq_u32 s[68:69], %d, v%d" % (w, T + 1))
        k("v_cndmask_b32 v%d, 0, v%d, s[68:69]" % (SEL + w, T + 3))
    k("v_mul_u32_u24 v%d, %d, v%d" % (T, KVP_STRIDE, T))
    k("v_add_u32 v15, v15, v%d" % T)
    wpos = opt.get("wpos", 0)
    for i in range(32):
        k.wait_lg(qs[i])
        Q2 = opt.get("q2", 0)
        aq = V_P if (Q2 and i % 2 == 0 and i < Q2) else V_AQ
        k("v_mfma_f32_32x32x16_bf16 %s, %s, %s, %s" % (vr(aq, 16), vr(V_WF + 4 * (i % 8), 4), vr(xreg(i // 4, i % 4), 4), vr(aq, 16) if i > (1 if Q2 else 0) else "0"))
        trq(i + LQ)
        if opt.get("bwo"):
            if i % 4 == 0 and i < 16:
                wo1(8 + i // 4)
        elif wpos == 0 and i % 2 == 0:
            wo1(i // 2)
        if wpos == 1 and i < 16:
            wo1(i)
        if i == 28:
            s_rdy = k.lg("ds_read_b32 v%d, v%d offset:36" % (PT, V_SY))
    if opt.get("qst"):
        k.stamp()
    k("s_mul_i32 s60, s%d, %d" % (S_HP, 16 * KVP_STRIDE)); k("s_add_u32 s60, s60, %d" % WS_KVP)
    G0 = 128
    GA = 108
    loads = []
    for p in range(8):
        loads.append((G0 + 4 * p, 4, ["s_add_u32 s68, s60, %d" % (2 * p * KVP_STRIDE),
                                      "buffer_load_dwordx4 %s, v%d, s[%d:%d], s68 offen sc1" % (vr(G0 + 4 * p, 4), V_GO, R_WS, R_WS + 3)]))
    GZ = G0 + 32
    loads.append((GZ, 4, ["buffer_load_dwordx4 %s, v15, s[%d:%d], s60 offen sc1" % (vr(GZ, 4), R_WS, R_WS + 3)]))
    def kvcons(p):
        if p < 8:
            k("v_mfma_f32_16x16x32_bf16 %s, %s, %s, %s" % (vr(GA, 4), vr(SEL, 4), vr(G0 + 4 * p, 4), vr(GA, 4)))
    for j in range(4):
        k("v_mov_b32 v%d, 0" % (GA + j))
    for j in range(8):
        for w in range(2 if Q2 else 0):
            k("v_add_f32 v%d, v%d, v%d" % (V_AQ + 2 * j + w, V_AQ + 2 * j + w, V_P + 2 * j + w))
        k("v_cvt_pk_bf16_f32 v%d, v%d, v%d" % (KB_ + j, V_AQ + 2 * j, V_AQ + 2 * j + 1))
    k("v_mfma_f32_32x32x16_bf16 %s, %s, %s, 0" % (vr(V_P, 16), vr(PH0, 4), vr(KB_, 4)))
    k("v_mfma_f32_32x32x16_bf16 %s, %s, %s, %s" % (vr(V_P, 16), vr(PH1, 4), vr(KB_ + 4, 4), vr(V_P, 16)))
    sm = [s for s in softmax_ops(V_P, 32, PHI, T) if s[0] != "#"]
    gpos = opt.get("gpos", 0)
    smx(gpos)
    k.wait_words2(V_SY, 36, 1, 1, PT, s_rdy)
    gs = k.pg_issue(loads, opt.get("kpl", 0))
    if "qprio2" in opt:
        k("s_setprio %d" % opt["qprio2"])
    if opt.get("qst"):
        k.stamp()
    if wpos == 2:
        for i in range(16):
            smx(10)
            wo1(i)
    smx(1000)
    k.stamp()
    k("v_and_b32 v%d, 15, v%d" % (T, V_LANE))
    k("v_lshrrev_b32 v%d, 4, v%d" % (T + 2, V_LANE))
    k("v_lshlrev_b32 v%d, 5, v%d" % (T, T))
    k("v_lshl_add_u32 v%d, v%d, 3, v%d" % (T, T + 2, T))
    k("s_lshl_b32 s61, s%d, 12" % aw); k("s_add_u32 s61, s61, %d" % BOUNCE)
    k("v_add_u32 v%d, s61, v%d" % (T, T))
    k("v_and_b32 v%d, 31, v%d" % (T + 1, V_LANE))
    k("v_lshrrev_b32 v%d, 5, v%d" % (T + 2, V_LANE))
    k("v_lshlrev_b32 v%d, 5, v%d" % (T + 1, T + 1))
    k("v_lshl_add_u32 v%d, v%d, 4, v%d" % (T + 1, T + 2, T + 1))
    k("v_add_u32 v%d, %d, v%d" % (T + 1, BOUNCE, T + 1))
    k.pg_finish(loads, gs, T + 8, kvcons)
    k.stamp()
    for step in (8, 4, 2, 1):
        for j in range(4):
            k("v_add_f32_dpp v%d, v%d, v%d row_ror:%d row_mask:0xf bank_mask:0xf" % (GZ + j, GZ + j, GZ + j, step))
        if step == 4:
            k("v_cvt_pk_bf16_f32 v%d, v%d, v%d" % (T + 4, GA, GA + 1)); k("v_cvt_pk_bf16_f32 v%d, v%d, v%d" % (T + 5, GA + 2, GA + 3))
            k.lg("ds_write_b64 v%d, %s" % (T, vr(T + 4, 2)))
    k("v_cvt_pk_bf16_f32 v%d, v%d, v%d" % (T + 6, GZ, GZ + 1)); k("v_cvt_pk_bf16_f32 v%d, v%d, v%d" % (T + 7, GZ + 2, GZ + 3))
    k.lg("ds_write_b64 v%d, %s offset:512" % (T, vr(T + 6, 2)))
    k.signal(V_OWN, V_SG, 11)
    k("s_lshl_b32 s60, s%d, 2" % S_RB); k("s_add_u32 s60, s60, s%d" % aw); k("s_lshl_b32 s60, s60, 4"); k("s_add_u32 s60, s60, s%d" % S_HP)
    k("s_lshl_b32 s60, s60, 11"); k("s_add_u32 s60, s60, %d" % WS_OF)
    k("v_lshlrev_b32 v15, 4, v%d" % V_LANE)
    k("s_mov_b32 s61, 0x358637bd")
    k.wait_words(V_SY, 0, 4, 11, PT)
    seqs = [k.lg("ds_read_b128 %s, v%d offset:%d" % (vr(32 + 4 * g, 4), T + 1, 4096 * g)) for g in range(4)]
    s_rb = k.lg("ds_read_b32 v%d, v%d offset:40" % (PT, V_SY))
    if opt.get("bwo"):
        s_bw = k.lg("ds_read_b32 v%d, v%d offset:52" % (T + 12, V_SY))
    D0 = (48, 80)
    for t in range(2):
        k.wait_lg(seqs[2 * t + 1])
        k("v_mfma_f32_32x32x16_bf16 %s, %s, %s, 0" % (vr(D0[t], 16), vr(32 + 8 * t, 4), vr(PHI + 8 * t, 4)))
        k("v_mfma_f32_32x32x16_bf16 %s, %s, %s, %s" % (vr(D0[t], 16), vr(36 + 8 * t, 4), vr(PHI + 8 * t + 4, 4), vr(D0[t], 16)))
    k("v_lshrrev_b32 v%d, 5, v%d" % (T, V_LANE))
    k("v_bfe_u32 v%d, v%d, 2, 2" % (T + 1, V_LANE))
    k("v_lshl_add_u32 v%d, v%d, 3, v%d" % (T, T, T + 1))
    k("v_lshlrev_b32 v%d, 7, v%d" % (T, T))
    k("v_bfe_u32 v%d, v%d, 3, 1" % (T + 1, V_LANE))
    k("v_lshl_add_u32 v%d, v%d, 6, v%d" % (T, T + 1, T))
    k("v_bfe_u32 v%d, v%d, 4, 1" % (T + 1, V_LANE))
    k("v_lshl_add_u32 v%d, v%d, 5, v%d" % (T, T + 1, T))
    k("v_and_b32 v%d, 3, v%d" % (T + 1, V_LANE))
    k("v_lshl_add_u32 v%d, v%d, 3, v%d" % (T, T + 1, T))
    OP = 96
    k("s_lshl_b32 s64, s%d, 2" % S_RB); k("s_and_b32 s68, s%d, 1" % S_HP); k("s_lshl_b32 s68, s68, 1"); k("s_add_u32 s64, s64, s68")
    k("s_and_b32 s68, s%d, 1" % aw); k("s_add_u32 s65, s64, s68")
    k("s_lshr_b32 s68, s%d, 1" % aw)
    k("s_lshl_b32 s64, s65, 1"); k("s_add_u32 s64, s64, s68"); k("s_lshl_b32 s64, s64, 14"); k("s_add_u32 s64, s64, %d" % WS_OF)
    k("v_lshlrev_b32 v%d, 11, v%d" % (T + 10, V_LANE))
    k("s_mov_b32 s72, 0"); k("s_mov_b32 s73, 0x80000000")
    k.wait_words2(V_SY, 40, 1, 1, PT, s_rb)
    PRB = {}
    def probe():
        k("s_mov_b64 exec, 0xff")
        PRB["s"] = k.vm("buffer_load_dword v%d, v%d, s[%d:%d], s64 offen offset:2044 sc1" % (T + 11, T + 10, R_WS, R_WS + 3))
        k("s_mov_b64 exec, -1")
    if opt.get("pq") and opt.get("ppos", 0) == 0:
        probe()
    for t in range(2):
        k("v_add_f32 v%d, s61, v%d" % (T + 4 + t, D0[t] + 8))
        k("v_rcp_f32 v%d, v%d" % (T + 4 + t, T + 4 + t))
        for i in range(8):
            k("v_mul_f32 v%d, v%d, v%d" % (D0[t] + i, D0[t] + i, T + 4 + t))
        for j in range(4):
            k("v_cvt_pk_bf16_f32 v%d, v%d, v%d" % (OP + 4 * t + j, D0[t] + 2 * j, D0[t] + 2 * j + 1))
        for j in range(4):
            k("v_min_u32 v%d, -2, v%d" % (OP + 4 * t + j, OP + 4 * t + j))
        k.vm("buffer_store_dwordx4 %s, v15, s[%d:%d], s60 offen offset:%d%s" % (vr(OP + 4 * t, 4), R_WS, R_WS + 3, 1024 * t, "" if opt.get("rpl") == 2 else " sc1"))
    k.stamp()
    if opt.get("pq") and opt.get("ppos", 0) == 1:
        probe()
    k("s_lshr_b32 s61, s%d, 1" % aw)
    k("s_xor_b32 s60, s61, 1"); k("s_lshl_b32 s60, s60, 15")
    k("v_add_u32 v%d, s60, v%d" % (T, T))
    k("v_xor_b32 v%d, 64, v%d" % (T + 1, T))
    WF = 128
    if opt.get("bwo"):
        k.wait_words2(V_SY, 52, 1, 4, T + 12, s_bw)
    for ks in range(16):
        for ct in range(2):
            for t in range(2):
                k.lg("ds_read_b64_tr_b16 %s, v%d offset:%d" % (vr(WF + 8 * ks + 4 * ct + 2 * t, 2), T + ct, 2048 * ks + 512 * t))
    if opt.get("pq") and opt.get("ppos", 0) == 2:
        probe()
    k("s_mov_b32 s60, s64"); k("s_mov_b32 s70, s65")
    G1 = 32
    AC = (96, 112)
    loads = []
    for p in range(8):
        loads.append((G1 + 8 * p, 8, ["s_add_u32 s68, s60, %d" % ((p // 2) * 4096)] +
                      ["buffer_load_dwordx4 %s, v15, s[%d:%d], s68 offen offset:%d sc1" % (vr(G1 + 8 * p + 4 * t, 4), R_WS, R_WS + 3, (p % 2) * 2048 + 1024 * t) for t in range(2)]))
    if opt.get("rpl"):
        loads = [(a, b, [t.replace(" sc1", " sc0") for t in c]) for a, b, c in loads]
    def ocons(p):
        for ks in (2 * p, 2 * p + 1):
            for ct in range(2):
                k("v_mfma_f32_32x32x16_bf16 %s, %s, %s, %s" % (vr(AC[ct], 16), vr(WF + 8 * ks + 4 * ct, 4), vr(G1 + 4 * ks, 4), vr(AC[ct], 16)))
    def o_issue():
        if opt.get("odly"):
            k("s_sleep %d" % opt.get("odly"))
        if opt.get("pq"):
            k.wait_vm(PRB["s"])
            k("v_cmp_ne_u32 vcc, -1, v%d" % (T + 11))
            k("s_nop 1")
            k("s_and_b32 s74, vcc_lo, 0xff")
            k("s_bcnt1_i32_b32 s75, s74")
            k.pl2 = opt.get("pl2", 0)
            k("s_mov_b32 s67, s74")
            k("s_cmp_ge_u32 s75, %d" % (8 - opt["pq"]))
            k("s_cselect_b32 s74, -1, s74")
            k("s_mov_b32 s66, s74")
            gs = k.pq_issue(loads, 74, 72)
        else:
            gs = k.pg_issue(loads, opt.get("opl", 0))
        return gs
    if not opt.get('oord'):
        gs = o_issue()
    for j in range(32):
        k("v_mov_b32 v%d, 0" % (96 + j))
    k("s_lshl_b32 s71, s%d, 12" % aw); k("s_add_u32 s71, s71, %d" % WQ)
    k("v_add_u32 v%d, s71, v15" % T)
    k("s_xor_b32 s71, s71, 8192")
    k("v_add_u32 v%d, s71, v15" % (T + 1))
    k("v_xor_b32 v%d, 8, v%d" % (T + 2, V_OWN))
    k("s_lshl_b32 s70, s70, 16")
    k("s_lshr_b32 s69, s%d, 1" % S_HP); k("s_lshl_b32 s69, s69, 7"); k("s_add_u32 s70, s70, s69")
    k("s_lshl_b32 s69, s61, 6"); k("s_add_u32 s70, s70, s69")
    k("v_and_b32 v%d, 31, v%d" % (T + 3, V_LANE))
    k("v_lshrrev_b32 v%d, 5, v%d" % (T + 4, V_LANE))
    k("v_lshlrev_b32 v%d, 11, v%d" % (T + 3, T + 3))
    k("v_lshl_add_u32 v%d, v%d, 4, v%d" % (T + 3, T + 4, T + 3))
    k.srd(R_D, S_OUT, 2048 * 2048)
    k("s_waitcnt lgkmcnt(0)")
    if opt.get('oord'):
        gs = o_issue()
    if opt.get("pq"):
        k.pq_finish(loads, gs, T + 8, ocons, 74, 72, opt["pq"])
    else:
        k.pg_finish(loads, gs, T + 8, ocons)
    k.stamp()
    L1 = k.lbl("kh1"); LJ = k.lbl("khj")
    k("s_cmp_eq_u32 s61, 1")
    k.settle(12)
    k("s_cbranch_scc1 %s" % L1)
    FIN = 32
    for kh in range(2):
        if kh == 1:
            k.label(L1, clear=True)
        snd, keep = AC[1 - kh], AC[kh]
        for j in range(4):
            k.lg("ds_write_b128 v%d, %s offset:%d" % (T, vr(snd + 4 * j, 4), 1024 * j))
        k.signal(V_OWN, V_SG, 12)
        k.wait_words(T + 2, 0, 1, 12, PT)
        seqs = [k.lg("ds_read_b128 %s, v%d offset:%d" % (vr(48 + 4 * j, 4), T + 1, 1024 * j)) for j in range(4)]
        for j in range(4):
            k.wait_lg(seqs[j])
            for i in range(4):
                k("v_add_f32 v%d, v%d, v%d" % (48 + 4 * j + i, 48 + 4 * j + i, keep + 4 * j + i))
        if kh == 0:
            k("s_branch %s" % LJ)
    k.label(LJ)
    for j in range(8):
        k("v_cvt_pk_bf16_f32 v%d, v%d, v%d" % (FIN + j, 48 + 2 * j, 48 + 2 * j + 1))
    for b in (0, 4):
        k("v_permlane32_swap_b32 v%d, v%d" % (FIN + b, FIN + b + 2))
        k("v_permlane32_swap_b32 v%d, v%d" % (FIN + b + 1, FIN + b + 3))
    for b in (0, 1):
        k.vm("buffer_store_dwordx4 %s, v%d, s[%d:%d], s70 offen offset:%d%s" % (vr(FIN + 4 * b, 4), T + 3, R_D, R_D + 3, 32 * b, OUTF[opt.get("outf", 0)]))
    if k.dbg or not opt.get("nofin"):
        k("s_waitcnt vmcnt(0)")
    k.stamp()
    k.dump_stamps(32)
```

```python
from common import *
import math, struct

def f2u(f):
    return struct.unpack("<I", struct.pack("<f", f))[0]

V_LANE = 1
V_OLD, V_FA = 2, 3
V_SY, V_OWN, V_PAR = 4, 5, 6
V_UF = 8
V_DS = 16
V_LF = 20
T = 192
PT = 24
S_D, S_NH, S_DI, S_PB = 62, 63, 64, 65


def kgen2(k, opt, hooks, PR, TB, VA):
    Wr = lambda j: 64 + 2 * j
    BS = {256: 98, 512: 100, 768: 102, 1024: 104, 1280: 106, 1536: 108, 1792: 110}
    ZR = 112
    TP = 120
    PK = T + 8
    FRG = {3: 128, 0: 144, 1: 160, 2: 176}
    Z0 = ZR
    k("v_mul_f32 v%d, -v%d, v%d" % (Z0 + 1, PR + 4, PR + 3))
    k("v_fma_f32 v%d, -v%d, v%d, v%d" % (Z0, PR + 5, PR + 3, TB + 2))
    k("v_fma_f32 v%d, -v%d, v%d, v%d" % (Z0 + 1, PR + 5, PR + 2, Z0 + 1))
    X, PH = T + 8, T + 12
    dst = (Wr(16), Wr(1), BS[256])
    k("s_mov_b32 s60, 0x41800000"); k("s_mov_b32 s61, 0x43800000")
    k("v_mul_f32 v%d, s60, v%d" % (PH, TB + 1)); k("v_mul_f32 v%d, s61, v%d" % (PH + 2, TB + 1))
    k("v_mul_f32 v%d, s60, v%d" % (X, TB)); k("v_mul_f32 v%d, s61, v%d" % (X + 2, TB))
    for i in range(3):
        k("v_fract_f32 v%d, v%d" % (PH + i, TB + 1 if i == 1 else PH + i))
    for i in range(3):
        k("v_exp_f32 v%d, v%d" % (X + i, TB if i == 1 else X + i))
        k("v_cos_f32 v%d, v%d" % (dst[i], PH + i))
        k("v_sin_f32 v%d, v%d" % (dst[i] + 1, PH + i))
    for i in range(3):
        k("v_mul_f32 v%d, v%d, v%d" % (dst[i], dst[i], X + i))
        k("v_mul_f32 v%d, v%d, v%d" % (dst[i] + 1, dst[i] + 1, X + i))
    def cmul(D, A, B, conj=False):
        assert D != A and D != B
        if opt.get("pk"):
            k("v_pk_mul_f32 %s, %s, %s op_sel:[0,0] op_sel_hi:[1,0]" % (vr(D, 2), vr(A, 2), vr(B, 2)))
            k("v_pk_fma_f32 %s, %s, %s, %s op_sel:[1,1,0] op_sel_hi:[0,1,1] %s:[0,1,0]" % (vr(D, 2), vr(A, 2), vr(B, 2), vr(D, 2), "neg_hi" if conj else "neg_lo"))
        else:
            k("v_mul_f32 v%d, v%d, v%d" % (D, A, B))
            k("v_mul_f32 v%d, v%d, v%d" % (D + 1, A + 1, B))
            k("v_fma_f32 v%d, %sv%d, v%d, v%d" % (D, "" if conj else "-", A + 1, B + 1, D))
            k("v_fma_f32 v%d, %sv%d, v%d, v%d" % (D + 1, "-" if conj else "", A, B + 1, D + 1))
    def cvt(p, R):
        k("v_cvt_pk_bf16_f32 v%d, v%d, v%d" % (p, R, R + 1))
    def wr2(q, h, p0, p1):
        k.lg("ds_write2_b32 v%d, v%d, v%d offset0:%d offset1:%d" % (34 + q, p0, p1, 136 * h, 136 * h + 68))
    rs = {}
    def rd(t):
        for ks in range(4):
            rs[(t, ks)] = k.lg("ds_read_b128 %s, v38 offset:%d" % (vr(FRG[t] + 4 * ks, 4), 64 * ks))
    def mm(t, kss):
        for ks in kss:
            k.wait_lg(rs[(t, ks)])
            k("v_mfma_f32_16x16x32_bf16 %s, %s, %s, %s" % (vr(VA + 4 * t, 4), vr(FRG[t] + 4 * ks, 4), vr(FRG[3] + 4 * ks, 4), vr(VA + 4 * t, 4) if ks else "0"))
    slot = [0]
    def hk():
        for fn in hooks.get(slot[0], []):
            fn()
        slot[0] += 1
    hk()
    for a in range(16):
        z = ZR + 2 * (a % 4)
        if a:
            cmul(z, ZR + 2 * ((a - 1) % 4), Wr(16), True)
        cvt(PK + a, z)
        if a % 2:
            wr2(a // 4, (a // 2) % 2, PK + a - 1, PK + a)
        if a % 4 == 3 and a < 15:
            hk()
    rd(3)
    src = {2: (1, 1), 3: (2, 1), 4: (2, 2)}
    for j in range(5, 9):
        src[j] = (4, j - 4)
    for j in range(9, 16):
        src[j] = (8, j - 8)
    for m in range(16):
        if m == 0:
            k("v_mov_b32 v%d, 0x3f80" % PK)
        else:
            if m > 1:
                cmul(Wr(m), Wr(src[m][0]), Wr(src[m][1]))
            cvt(PK + m, Wr(m))
        if m % 2:
            wr2(m // 4, (m // 2) % 2, PK + m - 1, PK + m)
        if m % 4 == 3:
            hk()
    rd(0)
    nt = [0]
    def prod(p, A, B):
        d = TP + 2 * (nt[0] % 4); nt[0] += 1
        cmul(d, A, B); cvt(p, d)
    bsrc = {512: (256, 256), 768: (512, 256), 1024: (512, 512), 1280: (1024, 256), 1536: (1024, 512), 1792: (1024, 768)}
    rows = [(512, 0), (512, 4), (512, 8), (512, 12), (768, 0), (768, 4), (768, 8), (768, 12),
            (1024, 0), (1024, 8), (1280, 0), (1280, 8), (1536, 0), (1536, 8), (1792, 0), (1792, 8)]
    for m, (b, o) in enumerate(rows):
        if o == 0:
            cmul(BS[b], BS[bsrc[b][0]], BS[bsrc[b][1]]); cvt(PK + m, BS[b])
        else:
            prod(PK + m, BS[b], Wr(o))
        if m % 2:
            wr2(m // 4, (m // 2) % 2, PK + m - 1, PK + m)
        if m in (5, 7, 9, 11):
            mm(0, [(m - 5) // 2])
        if m % 4 == 3:
            hk()
    rd(2)
    prod(PK + 9, BS[1792], Wr(16))
    cvt(PK, BS[256])
    for j in range(1, 9):
        prod(PK + j, BS[256], Wr(2 * j))
        if j % 2:
            wr2(j // 2, 0, PK + j - 1, PK + j)
        else:
            wr2(j // 2 - 1, 1, PK + j, PK + 9)
        if j >= 5:
            mm(2, [j - 5])
        if j in (2, 4, 6):
            hk()
    rd(1)
    hk()
    mm(1, range(4))
    hk()
    assert slot[0] == 17, slot


def role_b(k, opt):
    bw = S_RW
    if opt.get("no_b"):
        k("s_endpgm")
    if opt.get("bprio", 3):
        k("s_setprio %d" % opt.get("bprio", 3))
    k("s_lshl_b32 s60, s%d, 17" % S_RB); k("s_lshl_b32 s61, s%d, 15" % bw); k("s_add_u32 s60, s60, s61")
    k("s_lshl_b32 s61, s%d, 6" % S_HP); k("s_add_u32 s60, s60, s61")
    k.srd(R_A, S_U, 32768 - 960, off_sgpr=60)
    k("v_lshrrev_b32 v%d, 2, v%d" % (T, V_LANE))
    k("v_and_b32 v%d, 3, v%d" % (T + 1, V_LANE))
    k("v_lshlrev_b32 v%d, 10, v%d" % (T + 2, T))
    k("v_lshl_add_u32 v%d, v%d, 4, v%d" % (T + 2, T + 1, T + 2))
    k("s_lshl_b32 s68, s%d, 11" % bw); k("s_add_u32 s68, s68, %d" % BREG)
    SU = {}
    k("v_mov_b32 v%d, v%d" % (T + 56, T + 2))
    def uld():
        k("s_mov_b32 m0, s68")
        k.vm("buffer_load_dwordx4 v%d, s[%d:%d], 0 offen lds" % (T + 56, R_A, R_A + 3))
        k("s_add_u32 m0, s68, 1024")
        k("s_mov_b32 s60, 16384")
        SU["s"] = k.vm("buffer_load_dwordx4 v%d, s[%d:%d], s60 offen lds" % (T + 56, R_A, R_A + 3))
    if opt.get("bar") != 4:
        uld()
    if opt.get("bcut") == 1:
        k("s_barrier") if opt.get("bar") == 1 and 1 < 3 else 0
        k("s_waitcnt vmcnt(0)"); k("s_endpgm")
    k("s_and_b32 s%d, s%d, 1" % (S_NH, bw))
    k("s_lshr_b32 s%d, s%d, 1" % (S_DI, bw))
    k("s_lshl_b32 s%d, s%d, 5" % (S_D, S_HP)); k("s_lshl_b32 s60, s%d, 1" % S_RB); k("s_add_u32 s%d, s%d, s60" % (S_D, S_D))
    k("s_lshl_b32 s60, s%d, 1" % S_D)
    k("s_load_dword s66, s[%d:%d], s60" % (S_LDT, S_LDT + 1))
    k("s_mov_b32 s67, s%d" % S_D)
    k("s_add_u32 s%d, s%d, s%d" % (S_D, S_D, S_DI))
    k("s_mul_i32 s%d, s%d, %d" % (S_PB, S_DI, DSTRIDE)); k("s_add_u32 s%d, s%d, %d" % (S_PB, S_PB, BREG))
    k("s_lshl_b32 s60, s%d, 8" % S_D); k("s_lshl_b32 s61, s%d, 7" % S_NH); k("s_add_u32 s60, s60, s61")
    k("v_lshlrev_b32 v%d, 1, v%d" % (T + 3, V_LANE))
    PR = 28
    for i, sp in enumerate((S_ARE, S_AIM, S_BRE, S_BIM, S_CRE, S_CIM)):
        r = (R_B, R_C)[i % 2]
        k.srd(r, sp, 131072)
        s_par = k.vm("buffer_load_ushort v%d, v%d, s[%d:%d], s60 offen" % (PR + i, T + 3, r, r + 3))
    if opt.get("bcut") == 2:
        k("s_barrier") if opt.get("bar") == 1 and 2 < 3 else 0
        k("s_waitcnt vmcnt(0)"); k("s_endpgm")
    US = opt.get("us", 0)
    UA = T + 40
    if opt.get("bar") == 1 and US != 2:
        k("s_barrier")
    k("v_lshlrev_b32 v7, 4, v%d" % V_LANE)
    SEN = 52
    for j in range(4):
        k("v_mov_b32 v%d, -1" % (SEN + j))
    SE = vr(SEN, 4)
    def clear_kv():
        k("s_lshl_b32 s60, s%d, 4" % S_HP); k("s_add_u32 s60, s60, s%d" % S_RB); k("s_mul_i32 s60, s60, %d" % KVP_STRIDE)
        k("s_add_u32 s60, s60, %d" % WS_KVP)
        k("s_mul_i32 s61, s%d, %d" % (bw, KVP_STRIDE // 4)); k("s_add_u32 s61, s61, s60")
        k("s_mov_b32 exec_hi, 15")
        k.vm("buffer_store_dwordx4 %s, v7, s[%d:%d], s61 offen sc1" % (SE, R_WS, R_WS + 3))
        k("s_mov_b32 exec_hi, -1")
    k("v_and_b32 v%d, 0x30, v%d" % (UA + 4, V_LANE))
    k("v_and_b32 v%d, 0xf0, v7" % (T + 4))
    k("v_lshl_add_u32 v%d, v%d, 8, v%d" % (UA + 4, UA + 4, T + 4))
    k("s_lshl_b32 s72, s%d, 17" % S_HP); k("s_add_u32 s72, s72, %d" % (WS_UT + 4096 - 256))
    k("s_lshl_b32 s61, s%d, 8" % S_RB); k("s_sub_u32 s72, s72, s61")
    k("s_lshl_b32 s61, s%d, 15" % bw); k("s_add_u32 s72, s72, s61")
    k("s_add_u32 s73, s72, 16384")
    if US:
        for j in range(2):
            k.vm("buffer_store_dwordx4 %s, v%d, s[%d:%d], s%d offen sc1" % (SE, UA + 4, R_WS, R_WS + 3, 72 + j))
        clear_kv()
    flag_addr(k, V_FA, T + 5)
    k("s_mov_b32 exec_hi, 0")
    k.vm("buffer_load_dword v%d, v%d, s[%d:%d], 0 offen sc1" % (V_OLD, V_FA, R_WS, R_WS + 3))
    k("s_mov_b32 exec_hi, -1")
    if US == 2:
        k("s_barrier")
    k.srd(R_B, S_DSK, 1024)
    k("v_and_b32 v%d, 0x30, v%d" % (T + 4, V_LANE))
    k("s_lshl_b32 s60, s%d, 6" % S_HP)
    k.vm("buffer_load_dwordx4 %s, v%d, s[%d:%d], s60 offen" % (vr(V_DS, 4), T + 4, R_B, R_B + 3))
    SE2 = T + 32
    def clear_o():
        k("s_lshl_b32 s60, s%d, 2" % S_RB); k("s_add_u32 s60, s60, s%d" % bw); k("s_lshl_b32 s60, s60, 4"); k("s_add_u32 s60, s60, s%d" % S_HP)
        k("s_lshl_b32 s60, s60, 11"); k("s_add_u32 s60, s60, %d" % WS_OF); k("s_add_u32 s61, s60, 32768")
        for j in range(4):
            k("v_mov_b32 v%d, -1" % (SE2 + j))
        for j in range(4):
            k("buffer_store_dwordx4 %s, v7, s[%d:%d], s%d offen offset:%d sc1" % (vr(SE2, 4), R_WS, R_WS + 3, 60 + j // 2, 1024 * (j % 2)))
    def rbp(chk, loop=False, nv=0):
        Ls = k.lbl("rbs"); Li = k.lbl("rbi"); Lt = k.lbl("rbt")
        k("s_cmp_eq_u32 s76, 0")
        k("s_cbranch_scc1 %s" % Ls)
        k("s_mov_b32 exec_lo, 0xffff0000"); k("s_mov_b32 exec_hi, 0")
        if chk:
            k("s_waitcnt vmcnt(%d)" % nv)
            k.label(Lt)
            k("v_cmp_eq_u32 vcc, v%d, v%d" % (T + 12, V_OLD))
            k("s_nop 1")
            k("s_cbranch_vccnz %s" % Li)
            k("s_mov_b32 s76, 0")
            k("s_mov_b64 exec, s[74:75]")
            k("v_mov_b32 v%d, %d" % (T + 13, SYNC + 40)); k("v_mov_b32 v%d, 1" % (T + 14))
            k("v_add_u32 v%d, 2, v%d" % (T + 15, V_OLD))
            k("ds_write_b32 v%d, v%d" % (T + 13, T + 14))
            k("buffer_store_dword v%d, v%d, s[%d:%d], 0 offen sc1" % (T + 15, V_FA, R_WS, R_WS + 3))
            k("s_branch %s" % Ls)
            k.label(Li)
        k("buffer_load_dword v%d, v%d, s[%d:%d], 0 offen sc1" % (T + 12, V_FA, R_WS, R_WS + 3))
        if loop:
            k("s_waitcnt vmcnt(0)")
            k("s_add_u32 s76, s76, 1")
            k("s_cmp_lt_u32 s76, %d" % LIM_GLB)
            k("s_cbranch_scc1 %s" % Lt)
        k.label(Ls)
        k("s_mov_b64 exec, -1")
    k("v_mov_b32 v%d, %d" % (V_SY, SYNC + 16))
    k("s_lshl_b32 s60, s%d, 2" % bw); k("s_add_u32 s60, s60, %d" % (SYNC + 16))
    k("v_mov_b32 v%d, s60" % V_OWN)
    k("v_xor_b32 v%d, 4, v%d" % (V_PAR, V_OWN))
    k.stamp()
    k("v_and_b32 v%d, 3, v%d" % (T, V_LANE))
    k("v_bfe_u32 v%d, v%d, 2, 2" % (T + 1, V_LANE))
    k("v_and_b32 v%d, 0x30, v%d" % (T + 2, V_LANE))
    k("s_movk_i32 s60, %d" % UCS)
    k("v_mul_lo_u32 v%d, v%d, s60" % (T + 3, T))
    k("v_lshlrev_b32 v%d, 7, v%d" % (T + 1, T + 1))
    k("v_sub_u32 v%d, v%d, v%d" % (T + 3, T + 3, T + 1))
    k("v_add_u32 v%d, v%d, v%d" % (T + 3, T + 3, T + 2))
    k("s_lshl_b32 s61, s%d, 8" % S_NH); k("s_add_u32 s61, s61, s%d" % S_PB)
    k("s_add_u32 s60, s61, 384")
    k("v_add_u32 v%d, s60, v%d" % (T + 3, T + 3))
    k("v_and_b32 v%d, 15, v%d" % (T + 4, V_LANE))
    k("v_lshl_add_u32 v%d, v%d, 3, v%d" % (T + 4, T + 4, T + 2))
    k("s_add_u32 s60, s61, %d" % KBO)
    k("v_add_u32 v%d, s60, v%d" % (T + 4, T + 4))
    k("v_and_b32 v%d, 1, v%d" % (T + 6, V_LANE))
    k("v_and_b32 v%d, 62, v%d" % (T + 5, V_LANE))
    k("v_lshlrev_b32 v%d, 3, v%d" % (T + 5, T + 5))
    k("v_lshl_add_u32 v%d, v%d, 9, v%d" % (T + 5, T + 6, T + 5))
    k("v_xor_b32 v%d, 0x300, v%d" % (T + 5, T + 5))
    k("s_xor_b32 s71, s%d, 1" % S_NH); k("s_lshl_b32 s71, s71, 11")
    k("s_add_u32 s60, s71, s%d" % S_PB)
    k("v_add_u32 v%d, s60, v%d" % (T + 6, T + 5))
    CA, CB, CY, CU = T + 27, T + 28, T + 29, T + 47
    for dst, src in ((CA, T + 3), (CB, T + 4), (CY, T + 5), (CU, T + 6)):
        k("v_mov_b32 v%d, v%d" % (dst, src))
    k("v_and_b32 v%d, 15, v%d" % (T, V_LANE))
    k("v_bfe_u32 v%d, v%d, 2, 2" % (T + 1, V_LANE))
    k("v_and_b32 v%d, 3, v%d" % (T + 2, V_LANE))
    for _ in range(0 if opt.get('kg') else 1):
        k("v_cvt_f32_u32 v%d, v%d" % (V_LF, T))
        k("v_lshlrev_b32 v%d, 4, v%d" % (T + 3, T))
        k("v_cvt_f32_u32 v%d, v%d" % (V_LF + 3, T + 3))
        k("v_lshlrev_b32 v%d, 2, v%d" % (T + 3, T + 1))
        k("v_lshl_add_u32 v%d, v%d, 1, v%d" % (T + 3, T + 2, T + 3))
        k("v_add_u32 v%d, 256, v%d" % (T + 3, T + 3))
        k("v_mov_b32 v%d, 1808" % (T + 4))
        k("v_cmp_eq_u32 vcc, 3, v%d" % (T + 2))
        k("v_cndmask_b32 v%d, v%d, v%d, vcc" % (T + 3, T + 3, T + 4))
        k("v_cvt_f32_u32 v%d, v%d" % (V_LF + 1, T + 3))
        k("v_lshlrev_b32 v%d, 8, v%d" % (T + 3, T + 1))
        k("v_lshl_add_u32 v%d, v%d, 2, v%d" % (T + 3, T + 2, T + 3))
        k("v_add_u32 v%d, 512, v%d" % (T + 3, T + 3))
        k("v_lshlrev_b32 v%d, 9, v%d" % (T + 4, T + 1))
        k("v_bfe_u32 v%d, v%d, 1, 1" % (T + 5, V_LANE))
        k("v_lshl_add_u32 v%d, v%d, 8, v%d" % (T + 4, T + 5, T + 4))
        k("v_and_b32 v%d, 1, v%d" % (T + 5, V_LANE))
        k("v_lshl_add_u32 v%d, v%d, 3, v%d" % (T + 4, T + 5, T + 4))
        k("v_cmp_lt_u32 vcc, 1, v%d" % (T + 1))
        k("v_cndmask_b32 v%d, v%d, v%d, vcc" % (T + 3, T + 3, T + 4))
        k("v_cvt_f32_u32 v%d, v%d" % (V_LF + 2, T + 3))
    STG = BREG + DSTRIDE
    if opt.get("kg"):
        k("s_mul_i32 s60, s%d, 4352" % bw); k("s_add_u32 s60, s60, %d" % STG)
        k("v_lshl_add_u32 v34, v%d, 2, s60" % V_LANE)
        for q in range(1, 4):
            k("v_add_u32 v%d, %d, v34" % (34 + q, 1088 * q))
        k("v_mul_u32_u24 v38, 272, v%d" % T)
        k("v_and_b32 v39, 0x30, v%d" % V_LANE)
        k("v_add3_u32 v38, v38, v39, s60")
    UA = T + 40
    UDt = T + 48
    TT = BREG + 8192
    k("v_lshrrev_b32 v%d, 4, v%d" % (T, V_LANE))
    k("v_lshl_add_u32 v%d, v%d, 3, v%d" % (UA, T, T + 1))
    k("v_sub_u32 v%d, 27, v%d" % (UA, UA))
    k("v_lshlrev_b32 v%d, 6, v%d" % (UA, UA))
    k("v_lshl_add_u32 v%d, v%d, 3, v%d" % (UA, T + 2, UA))
    k("v_add_u32 v%d, s68, v%d" % (UA, UA))
    k("v_and_b32 v%d, 15, v%d" % (T + 4, V_LANE))
    k("v_lshlrev_b32 v%d, 6, v%d" % (UA + 1, T + 4))
    k("v_lshl_add_u32 v%d, v%d, 4, v%d" % (UA + 1, T, UA + 1))
    k("v_add_u32 v%d, s68, v%d" % (UA + 1, UA + 1))
    k("s_movk_i32 s60, 272")
    k("v_mul_lo_u32 v%d, v%d, s60" % (UA + 2, T + 4))
    k("v_lshl_add_u32 v%d, v%d, 4, v%d" % (UA + 2, T, UA + 2))
    k("s_lshl_b32 s61, s%d, 6" % bw); k("s_sub_u32 s61, %d, s61" % (TT + 192))
    k("v_add_u32 v%d, s61, v%d" % (UA + 2, UA + 2))
    k("v_mul_lo_u32 v%d, v%d, s60" % (UA + 3, T))
    k("v_lshl_add_u32 v%d, v%d, 4, v%d" % (UA + 3, T + 4, UA + 3))
    k("s_mul_i32 s61, s%d, %d" % (bw, 8 * 272)); k("s_add_u32 s61, s61, %d" % TT)
    k("v_add_u32 v%d, s61, v%d" % (UA + 3, UA + 3))
    k("v_mov_b32 v%d, %d" % (UA + 5, SYNC + 44))
    def ut1():
        k.wait_vm(SU["s"])
        sq = []
        for j in range(2):
            for t in range(2):
                sq.append(k.lg("ds_read_b64_tr_b16 %s, v%d offset:%d" % (vr(UDt + 4 * j + 2 * t, 2), UA, 32 * j + 256 * (1 - t))))
        for j in range(2):
            k.lg("ds_read_b128 %s, v%d offset:%d" % (vr(V_UF + 4 * j, 4), UA + 1, 1024 * j))
        for j in range(2):
            k.wait_lg(sq[2 * j + 1])
            k.lg("ds_write_b128 v%d, %s offset:%d" % (UA + 2, vr(UDt + 4 * j, 4), 16 * 272 * j))
        k("v_mov_b32 v%d, 1" % (UA + 6))
        k("s_mov_b64 exec, 1")
        k.lg("ds_add_u32 v%d, v%d" % (UA + 5, UA + 6))
        k("s_mov_b64 exec, -1")
    def ut2():
        k.wait_words(UA + 5, 0, 1, 4, PT)
        sq = [k.lg("ds_read_b128 %s, v%d offset:%d" % (vr(UDt + 4 * j, 4), UA + 3, 4 * 272 * j)) for j in range(2)]
        for j in range(2):
            k.wait_lg(sq[j])
            for w in range(4 if US else 0):
                k("v_min_u32 v%d, -2, v%d" % (UDt + 4 * j + w, UDt + 4 * j + w))
            k.vm("buffer_store_dwordx4 %s, v%d, s[%d:%d], s%d offen sc1" % (vr(UDt + 4 * j, 4), UA + 4, R_WS, R_WS + 3, 72 + j))
    W = 160
    def pub(second=False):
        P = T + 36
        k("s_waitcnt vmcnt(0)")
        k("v_mov_b32 v%d, %d" % (P, SYNC + (48 if second else 32))); k("v_mov_b32 v%d, 1" % (P + 1))
        k("s_mov_b64 exec, 1")
        sq = (k if second == 2 else k.lg)("ds_add_rtn_u32 v%d, v%d, v%d" % (P + 2, P, P + 1))
        k("s_mov_b64 exec, -1")
        if second:
            k("s_lshl_b32 s74, 0x10000, s%d" % S_HP)
        else:
            k("s_lshl_b32 s74, 1, s%d" % S_RB)
        k("s_mov_b32 s75, 0")
        k("v_add_u32 v%d, 1, v%d" % (P + 3, V_OLD))
        return sq
    def pubb(sq=None, cnt=3):
        P = T + 36
        if sq is None:
            k("s_waitcnt lgkmcnt(0)")
        else:
            k.wait_lg(sq)
        k("v_readfirstlane_b32 s60, v%d" % (P + 2))
        Ls = k.lbl("nopub")
        k("s_cmp_lg_u32 s60, %d" % cnt)
        k("s_cbranch_scc1 %s" % Ls)
        k("s_mov_b64 exec, s[74:75]")
        k("buffer_store_dword v%d, v%d, s[%d:%d], 0 offen sc1" % (P + 3, V_FA, R_WS, R_WS + 3))
        k("s_mov_b64 exec, -1")
        k.label(Ls)
    def unot():
        for j in range(8):
            k("v_not_b32 v%d, v%d" % (UDt + j, UDt + j))
    def pub1():
        pub(); pubb()
        if not US:
            unot()
    UL = 64
    def utg():
        k("s_lshl_b32 s60, s%d, 12" % S_D)
        k.srd(R_A, S_WS, 4096, off_sgpr=60, off_imm=WS_UT)
        k("s_mov_b32 s60, 16")
        for rd in range(4):
            k("buffer_load_dwordx4 %s, v7, s[%d:%d], 0 offen offset:%d sc1" % (vr(UL + 8 * rd, 4), R_A, R_A + 3, 1024 * rd))
            k("buffer_load_dwordx2 %s, v7, s[%d:%d], s60 offen offset:%d sc1" % (vr(UL + 8 * rd + 4, 2), R_A, R_A + 3, 1024 * rd))
    def ep(chk, iss):
        Ls = k.lbl("eps"); Li = k.lbl("epi")
        k("s_cmp_lg_u32 s77, 1")
        k("s_cbranch_scc1 %s" % Ls)
        k("s_mov_b64 exec, 0xffff")
        if chk:
            k("s_waitcnt vmcnt(0)")
            k("v_cmp_eq_u32 vcc, v%d, v%d" % (T + 30, V_OLD))
            k("s_nop 1")
            k("s_cbranch_vccnz %s" % Li)
            k("s_mov_b32 s77, 2")
            k("v_mov_b32 v%d, %d" % (T + 30, SYNC + 36)); k("v_mov_b32 v%d, 1" % (T + 31))
            k("ds_write_b32 v%d, v%d" % (T + 30, T + 31))
            k("s_mov_b64 exec, -1")
            utg()
            k("s_branch %s" % Ls)
            k.label(Li)
        if iss:
            k("buffer_load_dword v%d, v%d, s[%d:%d], 0 offen sc1" % (T + 30, V_FA, R_WS, R_WS + 3))
        k("s_mov_b64 exec, -1")
        k.label(Ls)
    k("s_mov_b32 s77, s%d" % S_NH)
    def clo():
        Ls = k.lbl("clo")
        k("s_cmp_eq_u32 s%d, 1" % S_NH)
        k("s_cbranch_scc1 %s" % Ls)
        clear_o()
        k.label(Ls)
    hooks = {}
    CCL = opt.get("c_cl", 0 if US else -1)
    hl = [("h_ut1", ut1, -1), ("h_ut2", ut2, 0), ("h_kvc", clear_kv, 0), ("h_pub", pub1, 15 if opt.get("kg") else 6),
          ("h_e1", lambda: ep(0, 1), 11), ("h_e2", lambda: ep(1, 1), 99), ("h_e3", lambda: ep(1, 0), 15), ("h_clo", clo, 16 if opt.get("kg") else 13)]
    if US:
        hl = [("h_ut1", ut1, -1), ("h_pub", pub1, -1), ("h_ut2", ut2, 0), ("h_not", unot, 5), ("h_clo", clo, 16)]
    if CCL >= 0 or opt.get("cgate"):
        hl = hl[:-1]
    def pfetch(ptr, rs):
        k("s_and_b32 s60, s%d, 3" % S_RB); k("s_lshl_b32 s60, s60, 1"); k("s_and_b32 s61, s%d, 1" % S_HP); k("s_add_u32 s60, s60, s61")
        k("s_lshl_b32 s60, s60, 2"); k("s_add_u32 s60, s60, s%d" % bw); k("s_mul_i32 s60, s60, %d" % (16 * rs))
        k("s_lshr_b32 s61, s%d, 1" % S_HP); k("s_lshl_b32 s61, s61, 7"); k("s_add_u32 s60, s60, s61")
        k("s_add_u32 s70, s%d, s60" % ptr); k("s_addc_u32 s71, s%d, 0" % (ptr + 1))
        for i in range(16):
            k("s_load_dword s69, s[70:71], %d" % (i * rs))
    hl = [("h_pfq", lambda: pfetch(S_W, 3072), 99), ("h_pfo", lambda: pfetch(S_WO, 1024), 99)] + hl
    for name, fn, dflt in hl:
        def wrap(fn=fn):
            if opt.get("hprio"):
                k("s_setprio %d" % opt["hprio"])
            fn()
            if opt.get("hprio"):
                k("s_setprio %d" % opt.get("bprio2", 0))
        hooks.setdefault(opt.get(name, dflt), []).append(wrap)
    if opt.get("bar") == 4:
        k("s_barrier")
        uld()
    for fn in hooks.get(-1, []):
        fn()
    if opt.get("bcut") == 4:
        k("s_barrier") if opt.get("bar") == 1 and 4 < 3 else 0
        k("s_waitcnt vmcnt(0)"); k("s_endpgm")
    k("s_setprio %d" % opt.get("bprio2", 0))
    k.stamp()
    k("s_waitcnt lgkmcnt(0)")
    k("s_lshl_b32 s60, s%d, 4" % S_DI); k("s_lshr_b32 s66, s66, s60"); k("s_lshl_b32 s66, s66, 16")
    k("s_mov_b32 s69, 0x3fb8aa3b")
    k("v_mov_b32 v%d, s66" % T)
    k("v_mul_f32 v%d, s69, v%d" % (T, T))
    k("v_exp_f32 v%d, v%d" % (T, T))
    k("v_cvt_pk_bf16_f32 v%d, v%d, v%d" % (T, T, T))
    k("v_and_b32 v%d, 0xffff0000, v%d" % (T, T))
    k.wait_vm(s_par)
    for i in range(6):
        k("v_lshlrev_b32 v%d, 16, v%d" % (PR + i, PR + i))
    for i in range(4):
        k("v_mul_f32 v%d, v%d, v%d" % (PR + i, PR + i, T))
    TB = T + 4
    k("v_mul_f32 v%d, s69, v%d" % (TB, PR))
    k("v_mul_f32 v%d, 0.15915494, v%d" % (TB + 1, PR + 1))
    k("v_mul_f32 v%d, v%d, v%d" % (TB + 2, PR + 4, PR + 2))
    VA = 40
    if opt.get('kg'):
        kgen2(k, opt, hooks, PR, TB, VA)
    for _ in range(0 if opt.get('kg') else 1):
        k("v_mul_f32 v%d, v%d, v%d" % (TB + 3, PR + 4, PR + 3))
        k("v_fma_f32 v%d, -v%d, v%d, v%d" % (TB + 2, PR + 5, PR + 3, TB + 2))
        k("v_fma_f32 v%d, v%d, v%d, v%d" % (TB + 3, PR + 5, PR + 2, TB + 3))
        k("s_lshl_b32 s60, s%d, 10" % S_NH); k("s_add_u32 s60, s60, s%d" % S_PB); k("s_add_u32 s60, s60, %d" % KBO)
        k("v_add_u32 v%d, s60, v7" % (T + 1))
        k.lg("ds_write_b128 v%d, %s" % (T + 1, vr(TB, 4)))
        k("v_and_b32 v%d, 0x30, v%d" % (T + 2, V_LANE))
        k("v_lshlrev_b32 v%d, 2, v%d" % (T + 2, T + 2))
        k("v_add_u32 v%d, s60, v%d" % (T + 2, T + 2))
        TAB = 64
        tseq = []
        for ks in range(4):
            for j in range(4):
                tseq.append(k.lg("ds_read_b128 %s, v%d offset:%d" % (vr(TAB + 16 * ks + 4 * j, 4), T + 2, 256 * ks + 16 * j)))
        FR = 128
        VA = 40
        for ks in range(4):
            if opt.get("kst"):
                k.stamp()
            F = FR + 16 * (ks % 2)
            for j in range(4):
                k.wait_lg(tseq[4 * ks + j])
                e = TAB + 16 * ks + 4 * j
                X, PHs, SN, CS = W, W + 4, W + 8, W + 12
                for t in range(4):
                    k("v_mul_f32 v%d, v%d, v%d" % (PHs + t, e + 1, V_LF + t))
                for t in range(4):
                    k("v_mul_f32 v%d, v%d, v%d" % (X + t, e, V_LF + t))
                for t in range(4):
                    k("v_fract_f32 v%d, v%d" % (PHs + t, PHs + t))
                for t in range(4):
                    k("v_exp_f32 v%d, v%d" % (X + t, X + t))
                for t in range(4):
                    k("v_sin_f32 v%d, v%d" % (SN + t, PHs + t))
                for t in range(4):
                    k("v_cos_f32 v%d, v%d" % (CS + t, PHs + t))
                for t in (3, 0, 1, 2):
                    k("v_mul_f32 v%d, v%d, v%d" % (SN + t, SN + t, X + t))
                for t in (3, 0, 1, 2):
                    k("v_mul_f32 v%d, v%d, v%d" % (CS + t, CS + t, X + t))
                k("v_mul_f32 v%d, v%d, v%d" % (W + 16, CS + 3, e + 2))
                k("v_mul_f32 v%d, -v%d, v%d" % (W + 17, CS + 3, e + 3))
                for t in range(3):
                    k("v_cvt_pk_bf16_f32 v%d, v%d, v%d" % (F + 4 * t + j, CS + t, SN + t))
                k("v_fma_f32 v%d, -v%d, v%d, v%d" % (W + 16, SN + 3, e + 3, W + 16))
                k("v_fma_f32 v%d, -v%d, v%d, v%d" % (W + 17, SN + 3, e + 2, W + 17))
                k("v_cvt_pk_bf16_f32 v%d, v%d, v%d" % (F + 12 + j, W + 16, W + 17))
                if j < 3:
                    for fn in hooks.get(4 * ks + j, []):
                        fn()
            for t in range(3):
                k("v_mfma_f32_16x16x32_bf16 %s, %s, %s, %s" % (vr(VA + 4 * t, 4), vr(F + 4 * t, 4), vr(F + 12, 4), vr(VA + 4 * t, 4) if ks else "0"))
            for fn in hooks.get(4 * ks + 3, []):
                fn()
    k.stamp()
    if opt.get("exp"):
        k.dump_stamps(32)
        return
    LN1 = k.lbl("nh1"); LJ = k.lbl("nhj")
    k("s_add_u32 s60, s%d, %d" % (S_PB, KBO + 1024))
    k("v_add_u32 v%d, s60, v7" % (T + 1))
    k("s_cmp_eq_u32 s%d, 1" % S_NH)
    k("s_cbranch_scc1 %s" % LN1)
    if opt.get("kg"):
        k.signal(V_OWN, T + 8, 1)
    k.wait_words(V_PAR, 0, 1, 1, PT)
    sq = [k.lg("ds_read_b128 %s, v%d offset:%d" % (vr(W + 4 * t, 4), T + 1, 1024 * t)) for t in range(3)]
    k("v_and_b32 v%d, 15, v%d" % (T + 2, V_LANE))
    k("v_lshrrev_b32 v%d, 4, v%d" % (T + 3, V_LANE))
    k("s_add_u32 s60, s%d, %d" % (S_PB, KBO))
    k("v_lshlrev_b32 v%d, 5, v%d" % (T + 2, T + 2))
    k("v_add_u32 v%d, s60, v%d" % (T + 2, T + 2))
    k("v_lshl_add_u32 v%d, v%d, 3, v%d" % (T + 4, T + 3, T + 2))
    k("v_lshl_add_u32 v%d, v%d, 9, v%d" % (T + 5, T + 3, T + 2))
    k("v_add_u32 v%d, %d, v%d" % (T + 5, 120 + 1024 - 4, T + 5))
    k("v_lshl_add_u32 v%d, v%d, 10, v%d" % (T + 6, T + 3, T + 2))
    k("v_add_u32 v%d, %d, v%d" % (T + 6, 120 - 8, T + 6))
    k("v_lshlrev_b32 v%d, 2, v%d" % (T + 7, V_LANE))
    k("v_add_u32 v%d, s60, v%d" % (T + 7, T + 7))
    k("v_mov_b32 v%d, 0" % (T + 8))
    for t in range(3):
        k.wait_lg(sq[t])
        for i in range(4):
            k("v_add_f32 v%d, v%d, v%d" % (VA + 4 * t + i, VA + 4 * t + i, W + 4 * t + i))
    Q = T + 16
    V0, V1, V2 = VA, VA + 4, VA + 8
    pk = [(V2, V2), (V2, V2 + 1), (V2 + 1, V2 + 1), (V2 + 2, V2 + 2), (V2 + 2, V2 + 3), (V2 + 3, V2 + 3),
          (V1, V1), (V1 + 1, V1 + 2), (V0, V0 + 1), (V0 + 2, V0 + 3), (V1 + 3, V1 + 3)]
    for i, (a, b) in enumerate(pk):
        k("v_cvt_pk_bf16_f32 v%d, v%d, v%d" % (Q + i, a, b))
    aa, ab, bb, cc, cd, dd = [Q + i for i in range(6)]
    k("s_mov_b32 s70, 0"); k("s_mov_b32 s71, -1")
    k("s_mov_b64 exec, s[70:71]")
    for run, (x, xy, y) in enumerate(((aa, ab, bb), (cc, cd, dd))):
        o = 128 * run
        for i, (p, q) in enumerate(((x, x), (x, x), (xy, y), (y, y))):
            k.lg("ds_write2_b32 v%d, v%d, v%d offset0:%d offset1:%d" % (T + 6, p, q, o + 2 * i, o + 2 * i + 1))
    k("s_mov_b32 exec_lo, -1"); k("s_mov_b32 exec_hi, 0")
    for i, (p, q) in enumerate(((aa, aa), (ab, bb), (cc, cc), (cd, dd))):
        k.lg("ds_write2_b32 v%d, v%d, v%d offset0:%d offset1:%d" % (T + 5, p, q, 2 * i, 2 * i + 1))
    k("s_mov_b64 exec, -1")
    k.lg("ds_write_b64 v%d, %s offset:%d" % (T + 4, vr(Q + 6, 2), 120 + 512))
    k.lg("ds_write_b64 v%d, %s offset:%d" % (T + 4, vr(Q + 8, 2), 120))
    k("s_mov_b64 exec, 0x8000")
    k.lg("ds_write_b32 v%d, v%d offset:%d" % (T + 2, Q + 10, 120 + 4088 - 480))
    k.lg("ds_write_b32 v%d, v%d offset:%d" % (T + 2, Q + 10, 120 + 4092 - 480))
    k("s_mov_b64 exec, 0x3fffffff")
    k.lg("ds_write_b32 v%d, v%d" % (T + 7, T + 8))
    k("s_mov_b64 exec, -1")
    k.signal(V_OWN, T + 8, 2)
    def pub2():
        pub(2); pubb(None, 1)
        k("s_cmp_eq_u32 s%d, 0" % bw); k("s_cselect_b32 s76, 1, 0")
        rbp(False)
    if CCL < 0:
        if opt.get("cgate"):
            k("v_mov_b32 v%d, %d" % (T + 9, SYNC))
            k.wait_words(T + 9, 0, 4, opt["cgate"], PT)
            clear_o()
    if CCL < 0 and "c_p2" not in opt:
        pub2()
    else:
        k("s_mov_b32 s76, 0")
    if opt.get("bwo"):
        k("s_lshr_b32 s60, s%d, 1" % S_HP); k("s_lshl_b32 s60, s60, 7")
        k("s_sub_u32 s61, %d, s60" % (512 * 1024))
        k.srd(R_C, S_WO, "s61", off_sgpr=60)
        k("v_lshrrev_b32 v%d, 3, v%d" % (T + 16, V_LANE))
        k("v_and_b32 v%d, 7, v%d" % (T + 17, V_LANE))
        k("v_bfe_u32 v%d, v%d, 4, 1" % (T + 18, V_LANE))
        k("v_lshlrev_b32 v%d, 2, v%d" % (T + 18, T + 18))
        k("v_xor_b32 v%d, v%d, v%d" % (T + 17, T + 17, T + 18))
        k("v_lshlrev_b32 v%d, 10, v%d" % (T + 16, T + 16))
        k("v_lshl_add_u32 v%d, v%d, 4, v%d" % (T + 16, T + 17, T + 16))
        k("s_lshl_b32 s60, s%d, 14" % S_DI); k("s_lshl_b32 s61, s%d, 11" % S_DI)
        k("v_mov_b32 v%d, %d" % (T + 9, SYNC))
        k.wait_words(T + 9, 0, 4, 8, PT)
        for part, i in [(0, i) for i in range(8)] + [(1, i) for i in range(4, 8)]:
            for a in range(2):
                k("s_add_u32 s66, s60, %d" % ((part * 256 + 32 * i + 8 * a) * 1024))
                k("s_add_u32 m0, s61, %d" % ((WV, WK)[part] + i * 4096 + a * 1024))
                k("buffer_load_dwordx4 v%d, s[%d:%d], s66 offen lds" % (T + 16, R_C, R_C + 3))
    k("s_branch %s" % LJ)
    k.label(LN1)
    k.settle(8)
    for t in range(3):
        k.lg("ds_write_b128 v%d, %s offset:%d" % (T + 1, vr(VA + 4 * t, 4), 1024 * t))
    k.signal(V_OWN, T + 8, 1)
    LW3 = k.lbl("w3"); LRD = k.lbl("rdy"); LUG = k.lbl("ug")
    k("s_cmp_eq_u32 s77, 2")
    k("s_cbranch_scc1 %s" % LUG)
    k("s_cmp_eq_u32 s%d, 3" % bw)
    k("s_cbranch_scc1 %s" % LW3)
    LP = k.lbl("poll"); LPD = k.lbl("polld")
    if opt.get("pgate"):
        k("v_mov_b32 v%d, %d" % (T + 9, SYNC))
        k.wait_words(T + 9, 0, 4, opt["pgate"], PT)
    k("s_mov_b32 s61, 0")
    k("s_mov_b64 exec, 0xffff")
    k.label(LP)
    k("buffer_load_dword v%d, v%d, s[%d:%d], 0 offen sc1" % (T + 8, V_FA, R_WS, R_WS + 3))
    k("s_waitcnt vmcnt(0)")
    k("v_cmp_eq_u32 vcc, v%d, v%d" % (T + 8, V_OLD))
    k("s_nop 1")
    k("s_cbranch_vccz %s" % LPD)
    if opt.get("slp1", k.slp):
        k("s_sleep %d" % opt.get("slp1", k.slp))
    k("s_add_u32 s61, s61, 1")
    k("s_cmp_lt_u32 s61, %d" % LIM_GLB)
    k("s_cbranch_scc1 %s" % LP)
    k.label(LPD)
    k("s_mov_b64 exec, 1")
    k("v_mov_b32 v%d, %d" % (T + 9, SYNC + 36)); k("v_mov_b32 v%d, 1" % (T + 10))
    k.lg("ds_write_b32 v%d, v%d" % (T + 9, T + 10))
    if US:
        k("s_mov_b64 exec, s[74:75]")
        k("v_add_u32 v%d, 2, v%d" % (T + 11, V_OLD))
        k("buffer_store_dword v%d, v%d, s[%d:%d], 0 offen sc1" % (T + 11, V_FA, R_WS, R_WS + 3))
    k("s_mov_b64 exec, -1")
    k("s_branch %s" % LRD)
    k.label(LW3)
    k.wait_words(V_SY, 20, 1, 1, PT)
    k.label(LRD)
    utg()
    k.label(LUG)
    k.stamp()
    k.nvm = 8
    sq = [1, 3, 5, 7]
    k("v_add_u32 v%d, s%d, v7" % (T + 2, S_PB))
    for j in range(4):
        k("v_mov_b32 v%d, 0" % (T + 4 + j))
    if opt.get("kg"):
        k.wait_words(V_SY, 0, 4, 1, PT)
    k("s_mov_b64 exec, 0xffffff")
    for c in range(4):
        k.lg("ds_write_b128 v%d, %s offset:%d" % (T + 2, vr(T + 4, 4), c * UCS + 4096))
    k("s_mov_b64 exec, -1")
    def ucons(rd):
        D = UL + 8 * rd
        O = 128 + 16 * (rd % 2)
        for j in range(5):
            k("v_alignbit_b32 v%d, v%d, v%d, 16" % (O + j, D + j + 1, D + j))
        for j in range(4):
            k("v_mov_b32 v%d, v%d" % (O + 8 + j, D + 1 + j))
            k("v_mov_b32 v%d, v%d" % (O + 12 + j, O + 1 + j))
        k.lg("ds_write_b128 v%d, %s offset:%d" % (T + 2, vr(D, 4), 3 * UCS + 1024 * rd))
        k.lg("ds_write_b128 v%d, %s offset:%d" % (T + 2, vr(O, 4), 2 * UCS + 1024 * rd))
        k.lg("ds_write_b128 v%d, %s offset:%d" % (T + 2, vr(O + 8, 4), 1 * UCS + 1024 * rd))
        k.lg("ds_write_b128 v%d, %s offset:%d" % (T + 2, vr(O + 12, 4), 0 * UCS + 1024 * rd))
    if US:
        uloads = [(UL + 8 * rd, 6, ["buffer_load_dwordx4 %s, v7, s[%d:%d], 0 offen offset:%d sc1" % (vr(UL + 8 * rd, 4), R_A, R_A + 3, 1024 * rd),
                                    "buffer_load_dwordx2 %s, v7, s[%d:%d], s60 offen offset:%d sc1" % (vr(UL + 8 * rd + 4, 2), R_A, R_A + 3, 1024 * rd)]) for rd in range(4)]
        k.pg_finish(uloads, sq, T + 12, ucons)
    else:
        for rd in range(4):
            k.wait_vm(sq[rd])
            ucons(rd)
        k("v_add_u32 v%d, 2, v%d" % (T + 11, V_OLD))
        k("s_mov_b64 exec, s[74:75]")
        k("buffer_store_dword v%d, v%d, s[%d:%d], 0 offen sc1" % (T + 11, V_FA, R_WS, R_WS + 3))
        k("s_mov_b64 exec, -1")
    k.signal(V_OWN, T + 8, 2)
    k("s_mov_b32 s76, 0")
    k.label(LJ)
    k.wait_words(V_PAR, 0, 1, 2, PT)
    k.stamp()
    UO = T + 56
    if opt.get("dump_k"):
        pass
    AC = 32
    AF = (64, 96); BF = (128, 160)
    def rdfr(ri):
        s = {}
        buf = ri % 2
        for i in range(8):
            s[("A", i)] = k.lg("ds_read_b128 %s, v%d offset:%d" % (vr(AF[buf] + 4 * i, 4), CA, 512 * (7 - i) + 64 * ri))
            k.lg("ds_read_b64 %s, v%d offset:%d" % (vr(BF[buf] + 4 * i, 2), CB, 512 * i + 64 * ri))
            s[("B", i)] = k.lg("ds_read_b64 %s, v%d offset:%d" % (vr(BF[buf] + 4 * i + 2, 2), CB, 512 * i + 64 * ri + 8))
        return s
    cur = rdfr(0)
    touched = set()
    c_pub = opt.get("c_pub", 44); c_rb = opt.get("c_rb", 80)
    for ri in range(4):
        buf = ri % 2
        pairs = sorted([(a, b) for a in range(8) for b in range(8) if a + b <= 7], key=lambda p: (max(p), p))
        order = []
        rem = pairs[:]
        while rem:
            for idx, p in enumerate(rem):
                if not order or (order[-1][0] + order[-1][1]) != (p[0] + p[1]) or idx == len(rem) - 1:
                    order.append(rem.pop(idx)); break
        nxt = None
        waited = -1
        for n, (a, b) in enumerate(order):
            if n == 2 and ri == CCL:
                clo()
            if n == 12 and ri == opt.get("c_p2", 2) and (CCL >= 0 or "c_p2" in opt):
                Lq = k.lbl("p2")
                k("s_cmp_eq_u32 s%d, 1" % S_NH)
                k("s_cbranch_scc1 %s" % Lq)
                pub2()
                k.label(Lq)
            if n == 12 and ri < 3:
                need = max(cur.values())
                if need > waited:
                    k.wait_lg(need); waited = need
                nxt = rdfr(ri + 1)
            if n == 4 and ri == 0:
                for j in range(2):
                    k.lg("ds_read_b128 %s, v%d offset:%d" % (vr(UO + 4 * j, 4), CU, 3 * UCS + 1024 * (1 - j)))
            if n == opt.get("rbn", 30) and ri == opt.get("bwo", 0) - 1:
                k("s_waitcnt vmcnt(0)")
                k("v_mov_b32 v%d, %d" % (T + 16, SYNC + 52)); k("v_mov_b32 v%d, 1" % (T + 17))
                k("s_mov_b64 exec, 1")
                k.lg("ds_add_u32 v%d, v%d" % (T + 16, T + 17))
                k("s_mov_b64 exec, -1")
            if n == opt.get("rbn", 30):
                rbp(True)
            need = max(cur[("A", b)], cur[("B", a)])
            if need > waited:
                k.wait_lg(need); waited = need
            q = a + b
            k("v_mfma_f32_16x16x32_bf16 %s, %s, %s, %s" % (vr(AC + 4 * q, 4), vr(AF[buf] + 4 * b, 4), vr(BF[buf] + 4 * a, 4), vr(AC + 4 * q, 4) if q in touched else "0"))
            touched.add(q)
        cur = nxt
    k.signal(V_OWN, T + 8, 3)
    k.stamp()
    k("s_mul_i32 s60, s%d, %d" % (S_NH, UCS)); k("s_add_u32 s60, s60, s%d" % S_PB)
    k("v_add_u32 v%d, s60, v7" % T)
    k("s_xor_b32 s61, s%d, 1" % S_NH); k("s_mul_i32 s61, s61, %d" % UCS); k("s_add_u32 s61, s61, s%d" % S_PB)
    k("v_add_u32 v%d, s61, v7" % (T + 1))
    k("s_xor_b32 s66, s%d, 1" % S_NH); k("s_lshl_b32 s66, s66, 11")
    k("s_lshl_b32 s60, s%d, 12" % S_D); k("s_add_u32 s60, s60, s66"); k("s_add_u32 s60, s60, %d" % WS_UT)
    k.wait_words(V_PAR, 0, 1, 3, PT)
    L1 = k.lbl("c1"); LJ2 = k.lbl("cj")
    k("s_cmp_eq_u32 s%d, 1" % S_NH)
    k("s_cbranch_scc1 %s" % L1)
    for nh in range(2):
        if nh == 1:
            k.label(L1)
        snd, keep = AC + 16 * (1 - nh), AC + 16 * nh
        for j in range(4):
            k.lg("ds_write_b128 v%d, %s offset:%d" % (T, vr(snd + 4 * j, 4), 1024 * j))
        k.signal(V_OWN, T + 8, 4)
        k.wait_words(V_PAR, 0, 1, 4, PT)
        sq = [k.lg("ds_read_b128 %s, v%d offset:%d" % (vr(64 + 4 * j, 4), T + 1, 1024 * j)) for j in range(4)]
        for j in range(4):
            k.wait_lg(sq[j])
            for i in range(4):
                k("v_add_f32 v%d, v%d, v%d" % (64 + 4 * j + i, 64 + 4 * j + i, keep + 4 * j + i))
        if nh == 0:
            k("s_branch %s" % LJ2)
    k.label(LJ2)
    for j in range(8):
        k("v_cvt_pk_bf16_f32 v%d, v%d, v%d" % (96 + j, 64 + 2 * j, 64 + 2 * j + 1))
    for j in range(8):
        k("v_min_u32 v%d, -2, v%d" % (96 + j, 96 + j))
    k("s_mov_b32 vcc_lo, 0x55555555"); k("s_mov_b32 vcc_hi, 0x55555555")
    for j in range(2):
        for w in range(2):
            k("v_cndmask_b32_dpp v%d, v%d, v%d, vcc quad_perm:[1,0,3,2] row_mask:0xf bank_mask:0xf" % (104 + 4 * j + w, 96 + 4 * j + 2 + w, 96 + 4 * j + w))
    k("s_not_b64 vcc, vcc")
    for j in range(2):
        for w in range(2):
            k("v_cndmask_b32_dpp v%d, v%d, v%d, vcc quad_perm:[1,0,3,2] row_mask:0xf bank_mask:0xf" % (104 + 4 * j + 2 + w, 96 + 4 * j + w, 96 + 4 * j + 2 + w))
    for j in range(2):
        for w in range(4):
            k("v_add3_u32 v%d, v%d, v%d, 1" % (104 + 4 * j + w, 104 + 4 * j + w, UO + 4 * j + w))
        k.vm("buffer_store_dwordx4 %s, v%d, s[%d:%d], s60 offen offset:%d sc1" % (vr(104 + 4 * j, 4), CY, R_WS, R_WS + 3, 1024 * (1 - j)))
    k.stamp()
    rbp(True, True, 2)
    k("v_lshrrev_b32 v%d, 4, v%d" % (T, V_LANE))
    k("v_and_b32 v%d, 15, v%d" % (T + 1, V_LANE))
    STG = BREG + 2 * UCS
    k("s_movk_i32 s66, 288")
    k("v_mul_lo_u32 v%d, v%d, s66" % (T + 3, T))
    k("v_lshl_add_u32 v%d, v%d, 4, v%d" % (T + 3, T + 1, T + 3))
    k("s_mul_i32 s66, s%d, %d" % (bw, 8 * 288 + 128)); k("s_add_u32 s66, s66, %d" % STG)
    k("v_add_u32 v%d, s66, v%d" % (T + 3, T + 3))
    k("s_movk_i32 s66, %d" % (8 * 288 + 128))
    k("v_mul_lo_u32 v%d, v%d, s66" % (T + 4, T))
    k("v_bfe_u32 v%d, v%d, 2, 2" % (T + 5, V_LANE))
    k("s_movk_i32 s66, 288")
    k("v_mul_lo_u32 v%d, v%d, s66" % (T + 5, T + 5))
    k("v_add_u32 v%d, v%d, v%d" % (T + 4, T + 4, T + 5))
    k("v_and_b32 v%d, 3, v%d" % (T + 5, V_LANE))
    k("v_lshl_add_u32 v%d, v%d, 3, v%d" % (T + 4, T + 5, T + 4))
    k("s_lshl_b32 s66, s%d, 6" % bw); k("s_add_u32 s66, s66, %d" % STG)
    k("v_add_u32 v%d, s66, v%d" % (T + 4, T + 4))
    k("v_lshlrev_b32 v%d, 11, v%d" % (T + 5, T + 1))
    k("v_lshl_add_u32 v%d, v%d, 4, v%d" % (T + 5, T, T + 5))
    k("s_lshl_b32 s66, s%d, 18" % S_RB); k("s_lshl_b32 s67, s%d, 16" % bw); k("s_add_u32 s66, s66, s67")
    k("s_lshl_b32 s67, s%d, 6" % S_HP); k("s_add_u32 s66, s66, s67"); k("s_add_u32 s66, s66, 1024")
    k("s_add_u32 s67, s66, 32768")
    k.srd(R_D, S_OUT, 2048 * 2048)
    loads = [(64 + 4 * j, 4, ["buffer_load_dwordx4 %s, v%d, s[%d:%d], s%d offen sc1" % (vr(64 + 4 * j, 4), UA + 4, R_WS, R_WS + 3, 72 + j)]) for j in range(2)]
    def dec(p):
        for w in range(4):
            k("v_add_u32 v%d, v%d, v%d" % (64 + 4 * p + w, 64 + 4 * p + w, UDt + 4 * p + w))
    if opt.get("ydly"):
        k("s_sleep %d" % opt.get("ydly"))
    if opt.get("udp", 0) == 1:
        gs = k.pg_issue(loads)
    UD = 208
    for j in range(2):
        for i in range(4):
            k("v_lshlrev_b32 v%d, 16, v%d" % (T + 8, V_UF + 4 * j + i))
            k("v_and_b32 v%d, 0xffff0000, v%d" % (T + 9, V_UF + 4 * j + i))
            k("v_lshlrev_b32 v%d, 16, v%d" % (T + 10, V_DS + i))
            k("v_and_b32 v%d, 0xffff0000, v%d" % (T + 11, V_DS + i))
            k("v_mul_f32 v%d, v%d, v%d" % (T + 8, T + 8, T + 10))
            k("v_mul_f32 v%d, v%d, v%d" % (T + 9, T + 9, T + 11))
            k("v_cvt_pk_bf16_f32 v%d, v%d, v%d" % (T + 8, T + 8, T + 9))
            k("v_lshlrev_b32 v%d, 16, v%d" % (UD + 8 * j + 2 * i, T + 8))
            k("v_and_b32 v%d, 0xffff0000, v%d" % (UD + 8 * j + 2 * i + 1, T + 8))
    if opt.get("udp", 0) == 0:
        gs = k.pg_issue(loads)
    k.pg_finish(loads, gs, 72, lambda p: None, dec)
    k.stamp()
    k.wait_words(V_SY, 0, 2, 3, PT)
    for j in range(2):
        k.lg("ds_write_b128 v%d, %s offset:%d" % (T + 3, vr(64 + 4 * j, 4), 4 * 288 * j))
    k.signal(V_OWN, T + 8, 5)
    k.wait_words(V_SY, 0, 4, 5, PT)
    sq = []
    for j in range(2):
        for t in range(2):
            sq.append(k.lg("ds_read_b64_tr_b16 %s, v%d offset:%d" % (vr(80 + 4 * j + 2 * t, 2), T + 4, 32 * j + 4 * 288 * t)))
    for j in range(2):
        k.wait_lg(sq[2 * j + 1])
        for i in range(4):
            y = 80 + 4 * j + i
            k("v_lshlrev_b32 v%d, 16, v%d" % (T + 8, y))
            k("v_and_b32 v%d, 0xffff0000, v%d" % (T + 9, y))
            k("v_add_f32 v%d, v%d, v%d" % (T + 8, T + 8, UD + 8 * j + 2 * i))
            k("v_add_f32 v%d, v%d, v%d" % (T + 9, T + 9, UD + 8 * j + 2 * i + 1))
            k("v_cvt_pk_bf16_f32 v%d, v%d, v%d" % (96 + 4 * j + i, T + 8, T + 9))
        k.vm("buffer_store_dwordx4 %s, v%d, s[%d:%d], s%d offen%s" % (vr(96 + 4 * j, 4), T + 5, R_D, R_D + 3, 66 + j, OUTF[opt.get("outf", 0)]))
    if k.dbg or not opt.get("nofin"):
        k("s_waitcnt vmcnt(0)")
    k.stamp()
    k.dump_stamps(32)
```

```python
from asmlib import Asm, vr, sr

NAME = "concat_heads__linear_kernel_hedgehog__ssm_conv_s4__prompt_kernel"

WK, WV, WQ = 0, 32768, 65536
BOUNCE = 98304
BREG = 114688
DSTRIDE = 22272
UCS = 4512
KBO = 18048
WPHI = 159232
SYNC = 160256
OLDS = 160512
LDS_TOTAL = 160768
WS_FLAGS = 0
WS_UT = 0x10000
WS_YT = 0x210000
WS_OF = 0x410000
WS_KVP = 0x610000
KVP_STRIDE = 2304
import os
if os.environ.get('WSL')=='1':
    WS_KVP=0x10000; WS_UT=0x200000; WS_OF=0x400000
if os.environ.get('WSL')=='2':
    WS_KVP=0x10000; WS_UT=0xA0000; WS_OF=0x2A0000
WS_DBG = 0x800000
WS_SIZE = 0x1000000
S_X, S_W, S_WPHI, S_WO, S_U, S_ARE, S_AIM, S_BRE, S_BIM, S_CRE, S_CIM, S_LDT, S_DSK, S_OUT, S_DBG, S_WS = [4 + 2 * i for i in range(16)]
S_WAVE, S_RB, S_HP, S_RW = 36, 37, 38, 39
R_WS = 40
R_A = 44
R_B = 48
R_C = 52
R_D = 56
S_T0 = 60
S_STAMP = 84
OUTF = ["", " sc1", " nt", " sc0 sc1", " sc1 nt"]
LIM_LDS = 200000
LIM_GLB = 20000


class K(Asm):
    def __init__(self, dbg=False):
        super().__init__()
        self.nvm = 0
        self.nlg = 0
        self.uid = 0
        self.dbg = dbg
        self.nstamp = 0
        self.slp = 0
        self.pl2 = 0
    def lbl(self, base):
        self.uid += 1
        return "L_%s_%d" % (base, self.uid)
    def vm(self, text):
        self(text); self.nvm += 1
        return self.nvm - 1
    def lg(self, text):
        self(text); self.nlg += 1
        return self.nlg - 1
    def wait_vm(self, seq):
        n = self.nvm - 1 - seq
        assert n >= 0
        if n <= 63:
            self("s_waitcnt vmcnt(%d)" % n)
        else:
            raise AssertionError("vmcnt overflow %d" % n)
    def wait_lg(self, seq):
        n = self.nlg - 1 - seq
        assert n >= 0
        self("s_waitcnt lgkmcnt(%d)" % min(n, 15))
    def srd(self, r, ptr, nbytes, off_sgpr=None, off_imm=0):
        if off_sgpr is None and off_imm == 0:
            self("s_mov_b32 s%d, s%d" % (r, ptr)); self("s_mov_b32 s%d, s%d" % (r + 1, ptr + 1))
        else:
            first = True
            for o in ([("s%d" % off_sgpr)] if off_sgpr is not None else []) + ([str(off_imm)] if off_imm else []):
                a, b = (ptr, ptr + 1) if first else (r, r + 1)
                self("s_add_u32 s%d, s%d, %s" % (r, a, o)); self("s_addc_u32 s%d, s%d, 0" % (r + 1, b))
                first = False
        self("s_mov_b32 s%d, %s" % (r + 2, nbytes if isinstance(nbytes, str) else hex(nbytes)))
        self("s_mov_b32 s%d, 0x00020000" % (r + 3))
    def stamp(self):
        if not self.dbg:
            return
        i = self.nstamp; self.nstamp += 1
        assert i < 16
        self("s_memrealtime s[80:81]"); self("s_waitcnt lgkmcnt(0)"); self("s_mov_b32 s%d, s80" % (S_STAMP + i))
    def dump_stamps(self, vt):
        if not self.dbg:
            return
        self("s_lshl_b32 s80, s2, 3"); self("s_add_u32 s80, s80, s%d" % S_WAVE); self("s_lshl_b32 s80, s80, 6")
        self("s_add_u32 s80, s80, %d" % WS_DBG)
        self("v_mov_b32 v%d, s80" % vt)
        self("s_mov_b64 exec, 1")
        for q in range(4):
            for i in range(4):
                self("v_mov_b32 v%d, s%d" % (vt + 4 + i, S_STAMP + 4 * q + i))
            self("buffer_store_dwordx4 %s, v%d, s[%d:%d], 0 offen offset:%d" % (vr(vt + 4, 4), vt, R_WS, R_WS + 3, 16 * q))
            self("s_waitcnt vmcnt(0)")
        self("s_mov_b64 exec, -1")
    def signal(self, vown, vtmp, val):
        self("v_mov_b32 v%d, %d" % (vtmp, val))
        self("s_mov_b64 exec, 1")
        self.lg("ds_write_b32 v%d, v%d" % (vown, vtmp))
        self("s_mov_b64 exec, -1")
    def wait_words(self, vaddr, off, nw, val, vt, first_issued=None):
        L = self.lbl("w"); D = self.lbl("wd")
        self("s_mov_b32 s%d, 0" % (S_T0 + 19))
        if first_issued is None:
            self.label(L)
            self._rdw(vaddr, off, nw, vt)
        self("s_waitcnt lgkmcnt(0)")
        if first_issued is not None:
            pass
        self._chk(nw, vt, val)
        if first_issued is None:
            self("s_cbranch_scc1 %s" % D)
            self("s_add_u32 s%d, s%d, 1" % (S_T0 + 19, S_T0 + 19))
            self("s_cmp_lt_u32 s%d, %d" % (S_T0 + 19, LIM_LDS))
            self("s_cbranch_scc1 %s" % L)
        else:
            self("s_cbranch_scc1 %s" % D)
            self.label(L)
            self._rdw(vaddr, off, nw, vt)
            self("s_waitcnt lgkmcnt(0)")
            self._chk(nw, vt, val)
            self("s_cbranch_scc1 %s" % D)
            self("s_add_u32 s%d, s%d, 1" % (S_T0 + 19, S_T0 + 19))
            self("s_cmp_lt_u32 s%d, %d" % (S_T0 + 19, LIM_LDS))
            self("s_cbranch_scc1 %s" % L)
        self.label(D)
    def wait_words2(self, vaddr, off, nw, val, vt, seq=None):
        if seq is None:
            return self.wait_words(vaddr, off, nw, val, vt)
        L = self.lbl("w"); D = self.lbl("wd")
        self.wait_lg(seq)
        self._chk(nw, vt, val)
        self("s_cbranch_scc1 %s" % D)
        self("s_mov_b32 s%d, 0" % (S_T0 + 19))
        self.label(L)
        n = self.nlg
        self._rdw(vaddr, off, nw, vt)
        self.nlg = n
        self("s_waitcnt lgkmcnt(0)")
        self._chk(nw, vt, val)
        self("s_cbranch_scc1 %s" % D)
        self("s_add_u32 s%d, s%d, 1" % (S_T0 + 19, S_T0 + 19))
        self("s_cmp_lt_u32 s%d, %d" % (S_T0 + 19, LIM_LDS))
        self("s_cbranch_scc1 %s" % L)
        self.label(D)
    def _rdw(self, vaddr, off, nw, vt):
        op = {1: "ds_read_b32", 2: "ds_read_b64", 4: "ds_read_b128"}[nw]
        return self.lg("%s %s, v%d offset:%d" % (op, vr(vt, nw), vaddr, off))
    def _chk(self, nw, vt, val):
        if nw == 4:
            self("v_min3_u32 v%d, v%d, v%d, v%d" % (vt, vt, vt + 1, vt + 2))
            self("v_min_u32 v%d, v%d, v%d" % (vt, vt, vt + 3))
        elif nw == 2:
            self("v_min_u32 v%d, v%d, v%d" % (vt, vt, vt + 1))
        self("v_readfirstlane_b32 s%d, v%d" % (S_T0 + 18, vt))
        self("s_cmp_ge_u32 s%d, %d" % (S_T0 + 18, val))

    def gather(self, loads, vt, between=None):
        n = len(loads)
        SP, SI, ST = S_T0 + 17, S_T0 + 16, S_T0 + 15
        L = self.lbl("g"); D = self.lbl("gd")
        self("s_mov_b32 s%d, %d" % (SP, (1 << n) - 1))
        self("s_mov_b32 s%d, 0" % SI)
        self.label(L)
        for p, (dst, nr, txt) in enumerate(loads):
            sk = self.lbl("gs")
            self("s_bitcmp1_b32 s%d, %d" % (SP, p))
            self("s_cbranch_scc0 %s" % sk)
            for t in txt:
                self(t)
            self.label(sk)
        self("s_waitcnt vmcnt(0)")
        for p, (dst, nr, txt) in enumerate(loads):
            if nr == 4:
                self("v_max3_u32 v%d, v%d, v%d, v%d" % (vt + p, dst, dst + 1, dst + 2))
                self("v_max_u32 v%d, v%d, v%d" % (vt + p, vt + p, dst + 3))
            elif nr == 2:
                self("v_max_u32 v%d, v%d, v%d" % (vt + p, dst, dst + 1))
        T = vt + n
        idx = list(range(n))
        if n == 1:
            self("v_mov_b32 v%d, v%d" % (T, vt))
        elif n == 2:
            self("v_max_u32 v%d, v%d, v%d" % (T, vt, vt + 1))
        else:
            self("v_max3_u32 v%d, v%d, v%d, v%d" % (T, vt, vt + 1, vt + 2))
            i = 3
            while i < n:
                if i + 1 < n:
                    self("v_max3_u32 v%d, v%d, v%d, v%d" % (T, T, vt + i, vt + i + 1)); i += 2
                else:
                    self("v_max_u32 v%d, v%d, v%d" % (T, T, vt + i)); i += 1
        self("v_cmp_eq_u32 vcc, -1, v%d" % T)
        self("s_nop 1")
        self("s_cbranch_vccz %s" % D)
        self("s_mov_b32 s%d, 0" % SP)
        for p in range(n):
            self("v_cmp_eq_u32 vcc, -1, v%d" % (vt + p))
            self("s_nop 1")
            self("s_cmp_lg_u64 vcc, 0")
            self("s_cselect_b32 s%d, %d, 0" % (ST, 1 << p))
            self("s_or_b32 s%d, s%d, s%d" % (SP, SP, ST))
        if self.slp:
            self("s_sleep %d" % self.slp)
        self("s_add_u32 s%d, s%d, 1" % (SI, SI))
        self("s_cmp_lt_u32 s%d, %d" % (SI, LIM_GLB))
        self("s_cbranch_scc1 %s" % L)
        self.label(D)

    def pg_issue(self, loads, plain=0):
        seqs = []
        for dst, nr, txt in loads:
            for t in txt:
                if t.startswith("buffer"):
                    s = self.vm(t.replace(" sc1", ["", " sc0", " nt"][plain - 1]) if plain else t)
                else:
                    self(t)
            seqs.append(s)
        return seqs
    def _pgchk(self, dst, nr, vt):
        self("v_max3_u32 v%d, v%d, v%d, v%d" % (vt, dst, dst + 1, dst + 2))
        i = 3
        while i + 1 < nr:
            self("v_max3_u32 v%d, v%d, v%d, v%d" % (vt, vt, dst + i, dst + i + 1)); i += 2
        self("v_max_u32 v%d, v%d, v%d" % (vt, vt, dst + i))
        self("v_cmp_eq_u32 vcc, -1, v%d" % vt)
    def pg_finish(self, loads, seqs, vt, consume, pre=None):
        SP, SI = S_T0 + 17, S_T0 + 16
        D = self.lbl("pgd"); L = self.lbl("pgl")
        self("s_mov_b32 s%d, 0" % SP)
        for p, (dst, nr, txt) in enumerate(loads):
            sk = self.lbl("pgs")
            self.wait_vm(seqs[p])
            if pre:
                pre(p)
            self._pgchk(dst, nr, vt)
            self("s_bitset1_b32 s%d, %d" % (SP, p))
            self("s_nop 0")
            self("s_cbranch_vccnz %s" % sk)
            self("s_bitset0_b32 s%d, %d" % (SP, p))
            consume(p)
            self.label(sk)
        self("s_cmp_eq_u32 s%d, 0" % SP)
        self("s_cbranch_scc1 %s" % D)
        self("s_mov_b32 s%d, 0" % SI)
        self.label(L)
        if self.slp:
            self("s_sleep %d" % self.slp)
        for p, (dst, nr, txt) in enumerate(loads):
            sk = self.lbl("pgr")
            self("s_bitcmp1_b32 s%d, %d" % (SP, p))
            self("s_cbranch_scc0 %s" % sk)
            for t in txt:
                self(t)
            self.label(sk)
        self("s_waitcnt vmcnt(0)")
        for p, (dst, nr, txt) in enumerate(loads):
            sk = self.lbl("pgc")
            self("s_bitcmp1_b32 s%d, %d" % (SP, p))
            self("s_cbranch_scc0 %s" % sk)
            if pre:
                pre(p)
            self._pgchk(dst, nr, vt)
            self("s_nop 1")
            self("s_cbranch_vccnz %s" % sk)
            self("s_bitset0_b32 s%d, %d" % (SP, p))
            consume(p)
            self.label(sk)
        self("s_cmp_eq_u32 s%d, 0" % SP)
        self("s_cbranch_scc1 %s" % D)
        self("s_add_u32 s%d, s%d, 1" % (SI, SI))
        self("s_cmp_lt_u32 s%d, %d" % (SI, LIM_GLB))
        self("s_cbranch_scc1 %s" % L)
        self.label(D)
        self.settle(8)


    def _pq_ld(self, p, txt, SR, PM, cnt):
        self("s_bitcmp1_b32 s%d, %d" % (SR, p))
        self("s_cselect_b64 exec, -1, s[%d:%d]" % (PM, PM + 1))
        if self.pl2:
            Lp = self.lbl("pqp"); Le = self.lbl("pqe")
            for t in txt:
                if not t.startswith("buffer"):
                    self(t)
            self("s_bitcmp1_b32 s67, %d" % p)
            self("s_cbranch_scc1 %s" % Lp)
            for t in txt:
                if t.startswith("buffer"):
                    self(t)
            self("s_branch %s" % Le)
            self.label(Lp)
            txt = [t.replace(" sc1", ["", " sc0"][self.pl2 - 1]) for t in txt if t.startswith("buffer")]
        for t in txt:
            if t.startswith("buffer") and cnt:
                s = self.vm(t)
            else:
                self(t); s = None
        if self.pl2:
            self.label(Le)
        return s
    def pq_issue(self, loads, SR, PM):
        seqs = [self._pq_ld(p, txt, SR, PM, True) for p, (dst, nr, txt) in enumerate(loads)]
        self("s_mov_b64 exec, -1")
        return seqs
    def pq_finish(self, loads, seqs, vt, consume, SR, PM, NB):
        SP, SI, SN, ST = S_T0 + 17, S_T0 + 16, S_T0 + 18, S_T0 + 19
        n = len(loads)
        D = self.lbl("pqd"); L = self.lbl("pql")
        def chk(p, dst, nr, sk):
            self._pgchk(dst, nr, vt)
            self("s_nop 1")
            self("s_bitcmp0_b32 vcc_hi, 31")
            self("s_cselect_b32 s%d, %d, 0" % (ST, 1 << p))
            self("s_or_b32 s%d, s%d, s%d" % (SN, SN, ST))
            self("s_bitcmp1_b32 s%d, %d" % (SR, p))
            self("s_cbranch_scc0 %s" % sk)
            self("s_cbranch_vccnz %s" % sk)
            self("s_bitset0_b32 s%d, %d" % (SP, p))
            consume(p)
            self.label(sk)
        self("s_mov_b32 s%d, %d" % (SP, (1 << n) - 1))
        self("s_mov_b32 s%d, 0" % SN)
        self("s_mov_b32 s%d, 0" % SI)
        for p, (dst, nr, txt) in enumerate(loads):
            self.wait_vm(seqs[p])
            chk(p, dst, nr, self.lbl("pqs"))
        self.label(L)
        self("s_cmp_eq_u32 s%d, 0" % SP)
        self("s_cbranch_scc1 %s" % D)
        self("s_add_u32 s%d, s%d, 1" % (SI, SI))
        self("s_cmp_ge_u32 s%d, %d" % (SI, LIM_GLB))
        self("s_cbranch_scc1 %s" % D)
        self("s_bcnt1_i32_b32 s%d, s%d" % (ST, SP))
        self("s_cmp_le_u32 s%d, %d" % (ST, NB))
        self("s_cselect_b32 s%d, -1, s%d" % (SR, SN))
        if self.pl2:
            self("s_andn2_b32 s67, s%d, s66" % SN)
            self("s_or_b32 s66, s66, s%d" % SR)
        if self.slp:
            sk = self.lbl("pqz")
            self("s_and_b32 s%d, s%d, s%d" % (ST, SN, SP))
            self("s_cbranch_scc1 %s" % sk)
            self("s_sleep %d" % self.slp)
            self.label(sk)
        for p, (dst, nr, txt) in enumerate(loads):
            sk = self.lbl("pqr")
            self("s_bitcmp1_b32 s%d, %d" % (SP, p))
            self("s_cbranch_scc0 %s" % sk)
            self._pq_ld(p, txt, SR, PM, False)
            self.label(sk)
        self("s_mov_b64 exec, -1")
        self("s_waitcnt vmcnt(0)")
        for p, (dst, nr, txt) in enumerate(loads):
            sk = self.lbl("pqc")
            self("s_bitcmp1_b32 s%d, %d" % (SP, p))
            self("s_cbranch_scc0 %s" % sk)
            chk(p, dst, nr, sk)
        self("s_branch %s" % L)
        self.label(D)
        self.settle(8)


def flag_addr(k, va, T):
    k("v_and_b32 v%d, 15, v1" % T)
    k("v_lshlrev_b32 v%d, 2, v%d" % (T, T))
    k("s_lshl_b32 s60, s%d, 8" % S_HP)
    k("s_lshl_b32 s61, s%d, 8" % S_RB); k("s_add_u32 s61, s61, 4096")
    k("v_mov_b32 v%d, s60" % (T + 1)); k("v_mov_b32 v%d, s61" % (T + 2))
    k("s_mov_b32 vcc_lo, 0xffff"); k("s_mov_b32 vcc_hi, 0xffff")
    k("v_cndmask_b32 v%d, v%d, v%d, vcc" % (va, T + 2, T + 1))
    k("v_add_u32 v%d, v%d, v%d" % (va, va, T))
    k("v_lshrrev_b32 v%d, 5, v1" % T)
    k("v_lshl_add_u32 v%d, v%d, 13, v%d" % (va, T, va))


def poll_flags(k, va, vold, vt, hi_mask, issued=False):
    LP = k.lbl("pf"); LD = k.lbl("pfd"); LC = k.lbl("pfc")
    k("s_mov_b32 s%d, 0" % (S_T0 + 19))
    k("s_mov_b32 exec_lo, 0"); k("s_mov_b32 exec_hi, 0x%x" % hi_mask)
    if issued is not False:
        k("s_waitcnt vmcnt(%d)" % issued)
        k("s_branch %s" % LC)
    k.label(LP)
    k("buffer_load_dword v%d, v%d, s[%d:%d], 0 offen sc1" % (vt, va, R_WS, R_WS + 3))
    k("s_waitcnt vmcnt(0)")
    k.label(LC)
    k("v_cmp_eq_u32 vcc, v%d, v%d" % (vt, vold))
    k("s_nop 1")
    k("s_cbranch_vccz %s" % LD)
    if k.slp:
        k("s_sleep %d" % k.slp)
    k("s_add_u32 s%d, s%d, 1" % (S_T0 + 19, S_T0 + 19))
    k("s_cmp_lt_u32 s%d, %d" % (S_T0 + 19, LIM_GLB))
    k("s_cbranch_scc1 %s" % LP)
    k.label(LD)
    k("s_mov_b64 exec, -1")


def wg_map(k, mp):
    if mp == 3:
        k("s_and_b32 s60, s2, 7"); k("s_lshl_b32 s60, s60, 1"); k("s_bfe_u32 s61, s2, 0x10003"); k("s_add_u32 s%d, s60, s61" % S_RB)
        k("s_lshr_b32 s%d, s2, 4" % S_HP)
        return
    if mp == 4:
        k("s_and_b32 s60, s2, 1"); k("s_lshl_b32 s60, s60, 3"); k("s_bfe_u32 s61, s2, 0x30003"); k("s_add_u32 s%d, s60, s61" % S_RB)
        k("s_bfe_u32 s60, s2, 0x20001"); k("s_lshl_b32 s60, s60, 2"); k("s_lshr_b32 s61, s2, 6"); k("s_add_u32 s%d, s60, s61" % S_HP)
        return
    k("s_and_b32 s60, s2, 3"); k("s_lshl_b32 s60, s60, 2"); k("s_bfe_u32 s61, s2, 0x20003"); k("s_add_u32 s%d, s60, s61" % S_RB)
    k("s_bfe_u32 s60, s2, 0x10002")
    if mp == 0:
        k("s_lshl_b32 s60, s60, 3"); k("s_lshr_b32 s61, s2, 5"); k("s_add_u32 s%d, s60, s61" % S_HP)
    elif mp == 1:
        k("s_lshl_b32 s60, s60, 1"); k("s_lshr_b32 s61, s2, 6"); k("s_lshl_b32 s61, s61, 2"); k("s_add_u32 s60, s60, s61")
        k("s_bfe_u32 s61, s2, 0x10005"); k("s_add_u32 s%d, s60, s61" % S_HP)
    elif mp == 2:
        k("s_lshl_b32 s60, s60, 2"); k("s_lshr_b32 s61, s2, 7"); k("s_lshl_b32 s61, s61, 3"); k("s_add_u32 s60, s60, s61")
        k("s_bfe_u32 s61, s2, 0x20005"); k("s_add_u32 s%d, s60, s61" % S_HP)
```

```python
import sys
from common import *
from role_a import role_a
from role_b import role_b

def build(opt):
    k = K(dbg=opt.get("dbg", 0))
    k.slp = opt.get("slp", 0)
    hdr = open("concat_heads__linear_kernel_hedgehog__ssm_conv_s4__prompt.s.ref").read().split("; Override")[0]
    k.raw(hdr.rstrip("\n"))
    k.raw("; @launch grid=(256,1,1) block=(512,1,1) lds=%d" % LDS_TOTAL)
    k.raw('.amdgcn_target "amdgcn-amd-amdhsa--gfx950"')
    k.raw(".text"); k.raw(".globl %s" % NAME); k.raw(".p2align 8"); k.raw(".type %s,@function" % NAME)
    k.label(NAME)
    k("s_cmp_ge_u32 s2, 256")
    k("s_cbranch_scc1 L_end")
    k("s_load_dwordx16 s[4:19], s[0:1], 0")
    k("s_load_dwordx16 s[20:35], s[0:1], 64")
    if opt.get("dbg"):
        for i in range(16):
            k("s_mov_b32 s%d, 0" % (S_STAMP + i))
        k.stamp()
    if opt.get("cpf"):
        k("s_cmp_ge_u32 s2, %d" % opt["cpf"])
        k("s_cbranch_scc1 L_nopf")
        k("s_getpc_b64 s[62:63]")
        k.raw("L_pc:")
        k("v_lshlrev_b32 v98, 6, v0")
        k("v_min_u32 v98, L_end-L_pc, v98")
        k("v_mov_b32 v99, s63")
        k("v_add_co_u32 v98, vcc, s62, v98")
        k("v_addc_co_u32 v99, vcc, 0, v99, vcc")
        k("global_load_dword v100, v[98:99], off")
        k.raw("L_nopf:")
    k("v_lshrrev_b32 v2, 6, v0")
    k("v_and_b32 v1, 63, v0")
    k("v_readfirstlane_b32 s%d, v2" % S_WAVE)
    k("v_and_b32 v3, 15, v0"); k("v_lshlrev_b32 v3, 2, v3"); k("v_add_u32 v3, %d, v3" % SYNC); k("v_mov_b32 v4, 0")
    k("ds_write_b32 v3, v4")
    wg_map(k, opt.get("map", 0))
    k("s_and_b32 s%d, s%d, 3" % (S_RW, S_WAVE))
    k("s_waitcnt lgkmcnt(0)")
    if not opt.get("bar"):
        k("s_barrier")
    k.srd(R_WS, S_WS, WS_SIZE)
    k("s_cmp_ge_u32 s%d, 4" % S_WAVE)
    k("s_cbranch_scc1 L_roleB")
    ns = k.nstamp
    role_a(k, opt)
    k("s_endpgm")
    k.label("L_roleB", clear=True)
    k.nvm = 0; k.nlg = 0; k.nstamp = ns
    role_b(k, opt)
    k.label("L_end")
    k("s_endpgm")
    k.raw('.section .rodata,"a"\n.p2align 6\n.amdhsa_kernel %s' % NAME)
    k.raw("""  .amdhsa_next_free_vgpr 256
  .amdhsa_next_free_sgpr 102
  .amdhsa_accum_offset 256
  .amdhsa_group_segment_fixed_size 0
  .amdhsa_kernarg_size 128
  .amdhsa_user_sgpr_count 2
  .amdhsa_user_sgpr_kernarg_segment_ptr 1
  .amdhsa_system_sgpr_workgroup_id_x 1
.end_amdhsa_kernel""")
    return k.text()

if __name__ == "__main__":
    opt = {}
    for a in sys.argv[2:]:
        kk, v = a.split("="); opt[kk] = int(v, 0)
    open(sys.argv[1], "w").write(build(opt))
```

```python
from asmlib import Asm, vr, sr

NAME = "concat_heads__linear_kernel_hedgehog__ssm_conv_s4__prompt_kernel"

WK, WV, WQ = 0, 32768, 65536
BOUNCE = 98304
BREG = 114688
DSTRIDE = 22272
UCS = 4512
KBO = 18048
WPHI = 159232
SYNC = 160256
OLDS = 160512
LDS_TOTAL = 160768
WS_FLAGS = 0
WS_UT = 0x10000
WS_YT = 0x210000
WS_OF = 0x410000
WS_KVP = 0x610000
KVP_STRIDE = 2304
import os
if os.environ.get('WSL')=='1':
    WS_KVP=0x10000; WS_UT=0x200000; WS_OF=0x400000
if os.environ.get('WSL')=='2':
    WS_KVP=0x10000; WS_UT=0xA0000; WS_OF=0x2A0000
WS_DBG = 0x800000
WS_SIZE = 0x1000000
S_X, S_W, S_WPHI, S_WO, S_U, S_ARE, S_AIM, S_BRE, S_BIM, S_CRE, S_CIM, S_LDT, S_DSK, S_OUT, S_DBG, S_WS = [4 + 2 * i for i in range(16)]
S_WAVE, S_RB, S_HP, S_RW = 36, 37, 38, 39
R_WS = 40
R_A = 44
R_B = 48
R_C = 52
R_D = 56
S_T0 = 60
S_STAMP = 84
OUTF = ["", " sc1", " nt", " sc0 sc1", " sc1 nt"]
LIM_LDS = 200000
LIM_GLB = 20000


class K(Asm):
    def __init__(self, dbg=False):
        super().__init__()
        self.nvm = 0
        self.nlg = 0
        self.uid = 0
        self.dbg = dbg
        self.nstamp = 0
        self.slp = 0
        self.pl2 = 0
    def lbl(self, base):
        self.uid += 1
        return "L_%s_%d" % (base, self.uid)
    def vm(self, text):
        self(text); self.nvm += 1
        return self.nvm - 1
    def lg(self, text):
        self(text); self.nlg += 1
        return self.nlg - 1
    def wait_vm(self, seq):
        n = self.nvm - 1 - seq
        assert n >= 0
        if n <= 63:
            self("s_waitcnt vmcnt(%d)" % n)
        else:
            raise AssertionError("vmcnt overflow %d" % n)
    def wait_lg(self, seq):
        n = self.nlg - 1 - seq
        assert n >= 0
        self("s_waitcnt lgkmcnt(%d)" % min(n, 15))
    def srd(self, r, ptr, nbytes, off_sgpr=None, off_imm=0):
        if off_sgpr is None and off_imm == 0:
            self("s_mov_b32 s%d, s%d" % (r, ptr)); self("s_mov_b32 s%d, s%d" % (r + 1, ptr + 1))
        else:
            first = True
            for o in ([("s%d" % off_sgpr)] if off_sgpr is not None else []) + ([str(off_imm)] if off_imm else []):
                a, b = (ptr, ptr + 1) if first else (r, r + 1)
                self("s_add_u32 s%d, s%d, %s" % (r, a, o)); self("s_addc_u32 s%d, s%d, 0" % (r + 1, b))
                first = False
        self("s_mov_b32 s%d, %s" % (r + 2, nbytes if isinstance(nbytes, str) else hex(nbytes)))
        self("s_mov_b32 s%d, 0x00020000" % (r + 3))
    def stamp(self):
        if not self.dbg:
            return
        i = self.nstamp; self.nstamp += 1
        assert i < 16
        self("s_memrealtime s[80:81]"); self("s_waitcnt lgkmcnt(0)"); self("s_mov_b32 s%d, s80" % (S_STAMP + i))
    def dump_stamps(self, vt):
        if not self.dbg:
            return
        self("s_lshl_b32 s80, s2, 3"); self("s_add_u32 s80, s80, s%d" % S_WAVE); self("s_lshl_b32 s80, s80, 6")
        self("s_add_u32 s80, s80, %d" % WS_DBG)
        self("v_mov_b32 v%d, s80" % vt)
        self("s_mov_b64 exec, 1")
        for q in range(4):
            for i in range(4):
                self("v_mov_b32 v%d, s%d" % (vt + 4 + i, S_STAMP + 4 * q + i))
            self("buffer_store_dwordx4 %s, v%d, s[%d:%d], 0 offen offset:%d" % (vr(vt + 4, 4), vt, R_WS, R_WS + 3, 16 * q))
            self("s_waitcnt vmcnt(0)")
        self("s_mov_b64 exec, -1")
    def signal(self, vown, vtmp, val):
        self("v_mov_b32 v%d, %d" % (vtmp, val))
        self("s_mov_b64 exec, 1")
        self.lg("ds_write_b32 v%d, v%d" % (vown, vtmp))
        self("s_mov_b64 exec, -1")
    def wait_words(self, vaddr, off, nw, val, vt, first_issued=None):
        L = self.lbl("w"); D = self.lbl("wd")
        self("s_mov_b32 s%d, 0" % (S_T0 + 19))
        if first_issued is None:
            self.label(L)
            self._rdw(vaddr, off, nw, vt)
        self("s_waitcnt lgkmcnt(0)")
        if first_issued is not None:
            pass
        self._chk(nw, vt, val)
        if first_issued is None:
            self("s_cbranch_scc1 %s" % D)
            self("s_add_u32 s%d, s%d, 1" % (S_T0 + 19, S_T0 + 19))
            self("s_cmp_lt_u32 s%d, %d" % (S_T0 + 19, LIM_LDS))
            self("s_cbranch_scc1 %s" % L)
        else:
            self("s_cbranch_scc1 %s" % D)
            self.label(L)
            self._rdw(vaddr, off, nw, vt)
            self("s_waitcnt lgkmcnt(0)")
            self._chk(nw, vt, val)
            self("s_cbranch_scc1 %s" % D)
            self("s_add_u32 s%d, s%d, 1" % (S_T0 + 19, S_T0 + 19))
            self("s_cmp_lt_u32 s%d, %d" % (S_T0 + 19, LIM_LDS))
            self("s_cbranch_scc1 %s" % L)
        self.label(D)
    def wait_words2(self, vaddr, off, nw, val, vt, seq=None):
        if seq is None:
            return self.wait_words(vaddr, off, nw, val, vt)
        L = self.lbl("w"); D = self.lbl("wd")
        self.wait_lg(seq)
        self._chk(nw, vt, val)
        self("s_cbranch_scc1 %s" % D)
        self("s_mov_b32 s%d, 0" % (S_T0 + 19))
        self.label(L)
        n = self.nlg
        self._rdw(vaddr, off, nw, vt)
        self.nlg = n
        self("s_waitcnt lgkmcnt(0)")
        self._chk(nw, vt, val)
        self("s_cbranch_scc1 %s" % D)
        self("s_add_u32 s%d, s%d, 1" % (S_T0 + 19, S_T0 + 19))
        self("s_cmp_lt_u32 s%d, %d" % (S_T0 + 19, LIM_LDS))
        self("s_cbranch_scc1 %s" % L)
        self.label(D)
    def _rdw(self, vaddr, off, nw, vt):
        op = {1: "ds_read_b32", 2: "ds_read_b64", 4: "ds_read_b128"}[nw]
        return self.lg("%s %s, v%d offset:%d" % (op, vr(vt, nw), vaddr, off))
    def _chk(self, nw, vt, val):
        if nw == 4:
            self("v_min3_u32 v%d, v%d, v%d, v%d" % (vt, vt, vt + 1, vt + 2))
            self("v_min_u32 v%d, v%d, v%d" % (vt, vt, vt + 3))
        elif nw == 2:
            self("v_min_u32 v%d, v%d, v%d" % (vt, vt, vt + 1))
        self("v_readfirstlane_b32 s%d, v%d" % (S_T0 + 18, vt))
        self("s_cmp_ge_u32 s%d, %d" % (S_T0 + 18, val))

    def gather(self, loads, vt, between=None):
        n = len(loads)
        SP, SI, ST = S_T0 + 17, S_T0 + 16, S_T0 + 15
        L = self.lbl("g"); D = self.lbl("gd")
        self("s_mov_b32 s%d, %d" % (SP, (1 << n) - 1))
        self("s_mov_b32 s%d, 0" % SI)
        self.label(L)
        for p, (dst, nr, txt) in enumerate(loads):
            sk = self.lbl("gs")
            self("s_bitcmp1_b32 s%d, %d" % (SP, p))
            self("s_cbranch_scc0 %s" % sk)
            for t in txt:
                self(t)
            self.label(sk)
        self("s_waitcnt vmcnt(0)")
        for p, (dst, nr, txt) in enumerate(loads):
            if nr == 4:
                self("v_max3_u32 v%d, v%d, v%d, v%d" % (vt + p, dst, dst + 1, dst + 2))
                self("v_max_u32 v%d, v%d, v%d" % (vt + p, vt + p, dst + 3))
            elif nr == 2:
                self("v_max_u32 v%d, v%d, v%d" % (vt + p, dst, dst + 1))
        T = vt + n
        idx = list(range(n))
        if n == 1:
            self("v_mov_b32 v%d, v%d" % (T, vt))
        elif n == 2:
            self("v_max_u32 v%d, v%d, v%d" % (T, vt, vt + 1))
        else:
            self("v_max3_u32 v%d, v%d, v%d, v%d" % (T, vt, vt + 1, vt + 2))
            i = 3
            while i < n:
                if i + 1 < n:
                    self("v_max3_u32 v%d, v%d, v%d, v%d" % (T, T, vt + i, vt + i + 1)); i += 2
                else:
                    self("v_max_u32 v%d, v%d, v%d" % (T, T, vt + i)); i += 1
        self("v_cmp_eq_u32 vcc, -1, v%d" % T)
        self("s_nop 1")
        self("s_cbranch_vccz %s" % D)
        self("s_mov_b32 s%d, 0" % SP)
        for p in range(n):
            self("v_cmp_eq_u32 vcc, -1, v%d" % (vt + p))
            self("s_nop 1")
            self("s_cmp_lg_u64 vcc, 0")
            self("s_cselect_b32 s%d, %d, 0" % (ST, 1 << p))
            self("s_or_b32 s%d, s%d, s%d" % (SP, SP, ST))
        if self.slp:
            self("s_sleep %d" % self.slp)
        self("s_add_u32 s%d, s%d, 1" % (SI, SI))
        self("s_cmp_lt_u32 s%d, %d" % (SI, LIM_GLB))
        self("s_cbranch_scc1 %s" % L)
        self.label(D)

    def pg_issue(self, loads, plain=0):
        seqs = []
        for dst, nr, txt in loads:
            for t in txt:
                if t.startswith("buffer"):
                    s = self.vm(t.replace(" sc1", ["", " sc0", " nt"][plain - 1]) if plain else t)
                else:
                    self(t)
            seqs.append(s)
        return seqs
    def _pgchk(self, dst, nr, vt):
        self("v_max3_u32 v%d, v%d, v%d, v%d" % (vt, dst, dst + 1, dst + 2))
        i = 3
        while i + 1 < nr:
            self("v_max3_u32 v%d, v%d, v%d, v%d" % (vt, vt, dst + i, dst + i + 1)); i += 2
        self("v_max_u32 v%d, v%d, v%d" % (vt, vt, dst + i))
        self("v_cmp_eq_u32 vcc, -1, v%d" % vt)
    def pg_finish(self, loads, seqs, vt, consume, pre=None):
        SP, SI = S_T0 + 17, S_T0 + 16
        D = self.lbl("pgd"); L = self.lbl("pgl")
        self("s_mov_b32 s%d, 0" % SP)
        for p, (dst, nr, txt) in enumerate(loads):
            sk = self.lbl("pgs")
            self.wait_vm(seqs[p])
            if pre:
                pre(p)
            self._pgchk(dst, nr, vt)
            self("s_bitset1_b32 s%d, %d" % (SP, p))
            self("s_nop 0")
            self("s_cbranch_vccnz %s" % sk)
            self("s_bitset0_b32 s%d, %d" % (SP, p))
            consume(p)
            self.label(sk)
        self("s_cmp_eq_u32 s%d, 0" % SP)
        ool = getattr(self, "ool", 0)
        if ool:
            E = self.lbl("pge")
            self("s_cbranch_scc0 %s" % E)
            i0 = len(self.lines)
            self.label(E)
        else:
            self("s_cbranch_scc1 %s" % D)
        self("s_mov_b32 s%d, 0" % SI)
        self.label(L)
        if self.slp:
            self("s_sleep %d" % self.slp)
        for p, (dst, nr, txt) in enumerate(loads):
            sk = self.lbl("pgr")
            self("s_bitcmp1_b32 s%d, %d" % (SP, p))
            self("s_cbranch_scc0 %s" % sk)
            for t in txt:
                self(t)
            self.label(sk)
        self("s_waitcnt vmcnt(0)")
        for p, (dst, nr, txt) in enumerate(loads):
            sk = self.lbl("pgc")
            self("s_bitcmp1_b32 s%d, %d" % (SP, p))
            self("s_cbranch_scc0 %s" % sk)
            if pre:
                pre(p)
            self._pgchk(dst, nr, vt)
            self("s_nop 1")
            self("s_cbranch_vccnz %s" % sk)
            self("s_bitset0_b32 s%d, %d" % (SP, p))
            consume(p)
            self.label(sk)
        self("s_cmp_eq_u32 s%d, 0" % SP)
        self("s_cbranch_scc1 %s" % D)
        self("s_add_u32 s%d, s%d, 1" % (SI, SI))
        self("s_cmp_lt_u32 s%d, %d" % (SI, LIM_GLB))
        self("s_cbranch_scc1 %s" % L)
        if ool:
            self("s_branch %s" % D)
            self.deferred = getattr(self, "deferred", []) + self.lines[i0:]
            del self.lines[i0:]
        self.label(D)
        self.settle(8)


    def _pq_ld(self, p, txt, SR, PM, cnt):
        self("s_bitcmp1_b32 s%d, %d" % (SR, p))
        self("s_cselect_b64 exec, -1, s[%d:%d]" % (PM, PM + 1))
        if self.pl2:
            Lp = self.lbl("pqp"); Le = self.lbl("pqe")
            for t in txt:
                if not t.startswith("buffer"):
                    self(t)
            self("s_bitcmp1_b32 s67, %d" % p)
            self("s_cbranch_scc1 %s" % Lp)
            for t in txt:
                if t.startswith("buffer"):
                    self(t)
            self("s_branch %s" % Le)
            self.label(Lp)
            txt = [t.replace(" sc1", ["", " sc0"][self.pl2 - 1]) for t in txt if t.startswith("buffer")]
        for t in txt:
            if t.startswith("buffer") and cnt:
                s = self.vm(t)
            else:
                self(t); s = None
        if self.pl2:
            self.label(Le)
        return s
    def pq_issue(self, loads, SR, PM):
        seqs = [self._pq_ld(p, txt, SR, PM, True) for p, (dst, nr, txt) in enumerate(loads)]
        self("s_mov_b64 exec, -1")
        return seqs
    def pq_finish(self, loads, seqs, vt, consume, SR, PM, NB):
        SP, SI, SN, ST = S_T0 + 17, S_T0 + 16, S_T0 + 18, S_T0 + 19
        n = len(loads)
        D = self.lbl("pqd"); L = self.lbl("pql")
        def chk(p, dst, nr, sk):
            self._pgchk(dst, nr, vt)
            self("s_nop 1")
            self("s_bitcmp0_b32 vcc_hi, 31")
            self("s_cselect_b32 s%d, %d, 0" % (ST, 1 << p))
            self("s_or_b32 s%d, s%d, s%d" % (SN, SN, ST))
            self("s_bitcmp1_b32 s%d, %d" % (SR, p))
            self("s_cbranch_scc0 %s" % sk)
            self("s_cbranch_vccnz %s" % sk)
            self("s_bitset0_b32 s%d, %d" % (SP, p))
            consume(p)
            self.label(sk)
        self("s_mov_b32 s%d, %d" % (SP, (1 << n) - 1))
        self("s_mov_b32 s%d, 0" % SN)
        self("s_mov_b32 s%d, 0" % SI)
        for p, (dst, nr, txt) in enumerate(loads):
            self.wait_vm(seqs[p])
            chk(p, dst, nr, self.lbl("pqs"))
        self.label(L)
        self("s_cmp_eq_u32 s%d, 0" % SP)
        self("s_cbranch_scc1 %s" % D)
        self("s_add_u32 s%d, s%d, 1" % (SI, SI))
        self("s_cmp_ge_u32 s%d, %d" % (SI, LIM_GLB))
        self("s_cbranch_scc1 %s" % D)
        self("s_bcnt1_i32_b32 s%d, s%d" % (ST, SP))
        self("s_cmp_le_u32 s%d, %d" % (ST, NB))
        self("s_cselect_b32 s%d, -1, s%d" % (SR, SN))
        if self.pl2:
            self("s_andn2_b32 s67, s%d, s66" % SN)
            self("s_or_b32 s66, s66, s%d" % SR)
        if self.slp:
            sk = self.lbl("pqz")
            self("s_and_b32 s%d, s%d, s%d" % (ST, SN, SP))
            self("s_cbranch_scc1 %s" % sk)
            self("s_sleep %d" % self.slp)
            self.label(sk)
        for p, (dst, nr, txt) in enumerate(loads):
            sk = self.lbl("pqr")
            self("s_bitcmp1_b32 s%d, %d" % (SP, p))
            self("s_cbranch_scc0 %s" % sk)
            self._pq_ld(p, txt, SR, PM, False)
            self.label(sk)
        self("s_mov_b64 exec, -1")
        self("s_waitcnt vmcnt(0)")
        for p, (dst, nr, txt) in enumerate(loads):
            sk = self.lbl("pqc")
            self("s_bitcmp1_b32 s%d, %d" % (SP, p))
            self("s_cbranch_scc0 %s" % sk)
            chk(p, dst, nr, sk)
        self("s_branch %s" % L)
        self.label(D)
        self.settle(8)


def flag_addr(k, va, T):
    k("v_and_b32 v%d, 15, v1" % T)
    k("v_lshlrev_b32 v%d, 2, v%d" % (T, T))
    k("s_lshl_b32 s60, s%d, 8" % S_HP)
    k("s_lshl_b32 s61, s%d, 8" % S_RB); k("s_add_u32 s61, s61, 4096")
    k("v_mov_b32 v%d, s60" % (T + 1)); k("v_mov_b32 v%d, s61" % (T + 2))
    k("s_mov_b32 vcc_lo, 0xffff"); k("s_mov_b32 vcc_hi, 0xffff")
    k("v_cndmask_b32 v%d, v%d, v%d, vcc" % (va, T + 2, T + 1))
    k("v_add_u32 v%d, v%d, v%d" % (va, va, T))
    k("v_lshrrev_b32 v%d, 5, v1" % T)
    k("v_lshl_add_u32 v%d, v%d, 13, v%d" % (va, T, va))


def poll_flags(k, va, vold, vt, hi_mask, issued=False):
    LP = k.lbl("pf"); LD = k.lbl("pfd"); LC = k.lbl("pfc")
    k("s_mov_b32 s%d, 0" % (S_T0 + 19))
    k("s_mov_b32 exec_lo, 0"); k("s_mov_b32 exec_hi, 0x%x" % hi_mask)
    if issued is not False:
        k("s_waitcnt vmcnt(%d)" % issued)
        k("s_branch %s" % LC)
    k.label(LP)
    k("buffer_load_dword v%d, v%d, s[%d:%d], 0 offen sc1" % (vt, va, R_WS, R_WS + 3))
    k("s_waitcnt vmcnt(0)")
    k.label(LC)
    k("v_cmp_eq_u32 vcc, v%d, v%d" % (vt, vold))
    k("s_nop 1")
    k("s_cbranch_vccz %s" % LD)
    if k.slp:
        k("s_sleep %d" % k.slp)
    k("s_add_u32 s%d, s%d, 1" % (S_T0 + 19, S_T0 + 19))
    k("s_cmp_lt_u32 s%d, %d" % (S_T0 + 19, LIM_GLB))
    k("s_cbranch_scc1 %s" % LP)
    k.label(LD)
    k("s_mov_b64 exec, -1")


def wg_map(k, mp):
    if mp == 3:
        k("s_and_b32 s60, s2, 7"); k("s_lshl_b32 s60, s60, 1"); k("s_bfe_u32 s61, s2, 0x10003"); k("s_add_u32 s%d, s60, s61" % S_RB)
        k("s_lshr_b32 s%d, s2, 4" % S_HP)
        return
    if mp == 4:
        k("s_and_b32 s60, s2, 1"); k("s_lshl_b32 s60, s60, 3"); k("s_bfe_u32 s61, s2, 0x30003"); k("s_add_u32 s%d, s60, s61" % S_RB)
        k("s_bfe_u32 s60, s2, 0x20001"); k("s_lshl_b32 s60, s60, 2"); k("s_lshr_b32 s61, s2, 6"); k("s_add_u32 s%d, s60, s61" % S_HP)
        return
    k("s_and_b32 s60, s2, 3"); k("s_lshl_b32 s60, s60, 2"); k("s_bfe_u32 s61, s2, 0x20003"); k("s_add_u32 s%d, s60, s61" % S_RB)
    k("s_bfe_u32 s60, s2, 0x10002")
    if mp == 0:
        k("s_lshl_b32 s60, s60, 3"); k("s_lshr_b32 s61, s2, 5"); k("s_add_u32 s%d, s60, s61" % S_HP)
    elif mp == 1:
        k("s_lshl_b32 s60, s60, 1"); k("s_lshr_b32 s61, s2, 6"); k("s_lshl_b32 s61, s61, 2"); k("s_add_u32 s60, s60, s61")
        k("s_bfe_u32 s61, s2, 0x10005"); k("s_add_u32 s%d, s60, s61" % S_HP)
    elif mp == 2:
        k("s_lshl_b32 s60, s60, 2"); k("s_lshr_b32 s61, s2, 7"); k("s_lshl_b32 s61, s61, 3"); k("s_add_u32 s60, s60, s61")
        k("s_bfe_u32 s61, s2, 0x20005"); k("s_add_u32 s%d, s60, s61" % S_HP)
```

```python
import sys
from common import *
from role_a import role_a
from role_b import role_b

def build(opt):
    k = K(dbg=opt.get("dbg", 0))
    k.slp = opt.get("slp", 0)
    hdr = open("concat_heads__linear_kernel_hedgehog__ssm_conv_s4__prompt.s.ref").read().split("; Override")[0]
    k.raw(hdr.rstrip("\n"))
    k.raw("; @launch grid=(256,1,1) block=(512,1,1) lds=%d" % LDS_TOTAL)
    k.raw('.amdgcn_target "amdgcn-amd-amdhsa--gfx950"')
    k.raw(".text"); k.raw(".globl %s" % NAME); k.raw(".p2align 8"); k.raw(".type %s,@function" % NAME)
    k.label(NAME)
    k.ool = opt.get("ool", 0)
    k("s_cmp_ge_u32 s2, 256")
    k("s_cbranch_scc1 L_end")
    k("s_load_dwordx16 s[4:19], s[0:1], 0")
    k("s_load_dwordx16 s[20:35], s[0:1], 64")
    if opt.get("dbg"):
        for i in range(16):
            k("s_mov_b32 s%d, 0" % (S_STAMP + i))
        k.stamp()
    if opt.get("cpf"):
        k("s_cmp_ge_u32 s2, %d" % opt["cpf"])
        k("s_cbranch_scc1 L_nopf")
        k("s_getpc_b64 s[62:63]")
        k.raw("L_pc:")
        k("v_lshlrev_b32 v98, 6, v0")
        k("v_min_u32 v98, L_end-L_pc, v98")
        k("v_mov_b32 v99, s63")
        k("v_add_co_u32 v98, vcc, s62, v98")
        k("v_addc_co_u32 v99, vcc, 0, v99, vcc")
        k("global_load_dword v100, v[98:99], off")
        k.raw("L_nopf:")
    k("v_lshrrev_b32 v2, 6, v0")
    k("v_and_b32 v1, 63, v0")
    k("v_readfirstlane_b32 s%d, v2" % S_WAVE)
    k("v_and_b32 v3, 15, v0"); k("v_lshlrev_b32 v3, 2, v3"); k("v_add_u32 v3, %d, v3" % SYNC); k("v_mov_b32 v4, 0")
    k("ds_write_b32 v3, v4")
    wg_map(k, opt.get("map", 0))
    k("s_and_b32 s%d, s%d, 3" % (S_RW, S_WAVE))
    k("s_waitcnt lgkmcnt(0)")
    if not opt.get("bar"):
        k("s_barrier")
    k.srd(R_WS, S_WS, WS_SIZE)
    k("s_cmp_ge_u32 s%d, 4" % S_WAVE)
    k("s_cbranch_scc1 L_roleB")
    ns = k.nstamp
    role_a(k, opt)
    k("s_endpgm")
    k.label("L_roleB", clear=True)
    k.nvm = 0; k.nlg = 0; k.nstamp = ns
    role_b(k, opt)
    if opt.get("ool"):
        k("s_endpgm")
        k.lines += getattr(k, "deferred", [])
    k.label("L_end")
    k("s_endpgm")
    k.raw('.section .rodata,"a"\n.p2align 6\n.amdhsa_kernel %s' % NAME)
    k.raw("""  .amdhsa_next_free_vgpr 256
  .amdhsa_next_free_sgpr 102
  .amdhsa_accum_offset 256
  .amdhsa_group_segment_fixed_size 0
  .amdhsa_kernarg_size 128
  .amdhsa_user_sgpr_count 2
  .amdhsa_user_sgpr_kernarg_segment_ptr 1
  .amdhsa_system_sgpr_workgroup_id_x 1
.end_amdhsa_kernel""")
    return k.text()

if __name__ == "__main__":
    opt = {}
    for a in sys.argv[2:]:
        kk, v = a.split("="); opt[kk] = int(v, 0)
    open(sys.argv[1], "w").write(build(opt))
```

```python
from common import *
import math, struct

def f2u(f):
    return struct.unpack("<I", struct.pack("<f", f))[0]

V_LANE = 1
V_OLD, V_FA = 2, 3
V_SY, V_OWN, V_PAR = 4, 5, 6
V_UF = 8
V_DS = 16
V_LF = 20
T = 192
PT = 24
S_D, S_NH, S_DI, S_PB = 62, 63, 64, 65


def kgen2(k, opt, hooks, PR, TB, VA):
    Wr = lambda j: 64 + 2 * j
    BS = {256: 98, 512: 100, 768: 102, 1024: 104, 1280: 106, 1536: 108, 1792: 110}
    ZR = 112
    TP = 120
    PK = T + 8
    FRG = {3: 128, 0: 144, 1: 160, 2: 176}
    Z0 = ZR
    k("v_mul_f32 v%d, -v%d, v%d" % (Z0 + 1, PR + 4, PR + 3))
    k("v_fma_f32 v%d, -v%d, v%d, v%d" % (Z0, PR + 5, PR + 3, TB + 2))
    k("v_fma_f32 v%d, -v%d, v%d, v%d" % (Z0 + 1, PR + 5, PR + 2, Z0 + 1))
    X, PH = T + 8, T + 12
    dst = (Wr(16), Wr(1), BS[256])
    k("s_mov_b32 s60, 0x41800000"); k("s_mov_b32 s61, 0x43800000")
    k("v_mul_f32 v%d, s60, v%d" % (PH, TB + 1)); k("v_mul_f32 v%d, s61, v%d" % (PH + 2, TB + 1))
    k("v_mul_f32 v%d, s60, v%d" % (X, TB)); k("v_mul_f32 v%d, s61, v%d" % (X + 2, TB))
    for i in range(3):
        k("v_fract_f32 v%d, v%d" % (PH + i, TB + 1 if i == 1 else PH + i))
    for i in range(3):
        k("v_exp_f32 v%d, v%d" % (X + i, TB if i == 1 else X + i))
        k("v_cos_f32 v%d, v%d" % (dst[i], PH + i))
        k("v_sin_f32 v%d, v%d" % (dst[i] + 1, PH + i))
    for i in range(3):
        k("v_mul_f32 v%d, v%d, v%d" % (dst[i], dst[i], X + i))
        k("v_mul_f32 v%d, v%d, v%d" % (dst[i] + 1, dst[i] + 1, X + i))
    def cmul(D, A, B, conj=False):
        assert D != A and D != B
        if opt.get("pk"):
            k("v_pk_mul_f32 %s, %s, %s op_sel:[0,0] op_sel_hi:[1,0]" % (vr(D, 2), vr(A, 2), vr(B, 2)))
            k("v_pk_fma_f32 %s, %s, %s, %s op_sel:[1,1,0] op_sel_hi:[0,1,1] %s:[0,1,0]" % (vr(D, 2), vr(A, 2), vr(B, 2), vr(D, 2), "neg_hi" if conj else "neg_lo"))
        else:
            k("v_mul_f32 v%d, v%d, v%d" % (D, A, B))
            k("v_mul_f32 v%d, v%d, v%d" % (D + 1, A + 1, B))
            k("v_fma_f32 v%d, %sv%d, v%d, v%d" % (D, "" if conj else "-", A + 1, B + 1, D))
            k("v_fma_f32 v%d, %sv%d, v%d, v%d" % (D + 1, "-" if conj else "", A, B + 1, D + 1))
    def cvt(p, R):
        k("v_cvt_pk_bf16_f32 v%d, v%d, v%d" % (p, R, R + 1))
    def wr2(q, h, p0, p1):
        k.lg("ds_write2_b32 v%d, v%d, v%d offset0:%d offset1:%d" % (34 + q, p0, p1, 136 * h, 136 * h + 68))
    rs = {}
    def rd(t):
        for ks in range(4):
            rs[(t, ks)] = k.lg("ds_read_b128 %s, v38 offset:%d" % (vr(FRG[t] + 4 * ks, 4), 64 * ks))
    def mm(t, kss):
        for ks in kss:
            k.wait_lg(rs[(t, ks)])
            k("v_mfma_f32_16x16x32_bf16 %s, %s, %s, %s" % (vr(VA + 4 * t, 4), vr(FRG[t] + 4 * ks, 4), vr(FRG[3] + 4 * ks, 4), vr(VA + 4 * t, 4) if ks else "0"))
    slot = [0]
    def hk():
        for fn in hooks.get(slot[0], []):
            fn()
        slot[0] += 1
    hk()
    for a in range(16):
        z = ZR + 2 * (a % 4)
        if a:
            cmul(z, ZR + 2 * ((a - 1) % 4), Wr(16), True)
        cvt(PK + a, z)
        if a % 2:
            wr2(a // 4, (a // 2) % 2, PK + a - 1, PK + a)
        if a % 4 == 3 and a < 15:
            hk()
    rd(3)
    src = {2: (1, 1), 3: (2, 1), 4: (2, 2)}
    for j in range(5, 9):
        src[j] = (4, j - 4)
    for j in range(9, 16):
        src[j] = (8, j - 8)
    for m in range(16):
        if m == 0:
            k("v_mov_b32 v%d, 0x3f80" % PK)
        else:
            if m > 1:
                cmul(Wr(m), Wr(src[m][0]), Wr(src[m][1]))
            cvt(PK + m, Wr(m))
        if m % 2:
            wr2(m // 4, (m // 2) % 2, PK + m - 1, PK + m)
        if m % 4 == 3:
            hk()
    rd(0)
    nt = [0]
    def prod(p, A, B):
        d = TP + 2 * (nt[0] % 4); nt[0] += 1
        cmul(d, A, B); cvt(p, d)
    bsrc = {512: (256, 256), 768: (512, 256), 1024: (512, 512), 1280: (1024, 256), 1536: (1024, 512), 1792: (1024, 768)}
    rows = [(512, 0), (512, 4), (512, 8), (512, 12), (768, 0), (768, 4), (768, 8), (768, 12),
            (1024, 0), (1024, 8), (1280, 0), (1280, 8), (1536, 0), (1536, 8), (1792, 0), (1792, 8)]
    for m, (b, o) in enumerate(rows):
        if o == 0:
            cmul(BS[b], BS[bsrc[b][0]], BS[bsrc[b][1]]); cvt(PK + m, BS[b])
        else:
            prod(PK + m, BS[b], Wr(o))
        if m % 2:
            wr2(m // 4, (m // 2) % 2, PK + m - 1, PK + m)
        if m in (5, 7, 9, 11):
            mm(0, [(m - 5) // 2])
        if m % 4 == 3:
            hk()
    rd(2)
    prod(PK + 9, BS[1792], Wr(16))
    cvt(PK, BS[256])
    for j in range(1, 9):
        prod(PK + j, BS[256], Wr(2 * j))
        if j % 2:
            wr2(j // 2, 0, PK + j - 1, PK + j)
        else:
            wr2(j // 2 - 1, 1, PK + j, PK + 9)
        if j >= 5:
            mm(2, [j - 5])
        if j in (2, 4, 6):
            hk()
    rd(1)
    hk()
    mm(1, range(4))
    hk()
    assert slot[0] == 17, slot


def role_b(k, opt):
    bw = S_RW
    if opt.get("no_b"):
        k("s_endpgm")
    if opt.get("bprio", 3):
        k("s_setprio %d" % opt.get("bprio", 3))
    k("s_lshl_b32 s60, s%d, 17" % S_RB); k("s_lshl_b32 s61, s%d, 15" % bw); k("s_add_u32 s60, s60, s61")
    k("s_lshl_b32 s61, s%d, 6" % S_HP); k("s_add_u32 s60, s60, s61")
    k.srd(R_A, S_U, 32768 - 960, off_sgpr=60)
    k("v_lshrrev_b32 v%d, 2, v%d" % (T, V_LANE))
    k("v_and_b32 v%d, 3, v%d" % (T + 1, V_LANE))
    k("v_lshlrev_b32 v%d, 10, v%d" % (T + 2, T))
    k("v_lshl_add_u32 v%d, v%d, 4, v%d" % (T + 2, T + 1, T + 2))
    k("s_lshl_b32 s68, s%d, 11" % bw); k("s_add_u32 s68, s68, %d" % BREG)
    SU = {}
    k("v_mov_b32 v%d, v%d" % (T + 56, T + 2))
    def uld():
        k("s_mov_b32 m0, s68")
        k.vm("buffer_load_dwordx4 v%d, s[%d:%d], 0 offen lds" % (T + 56, R_A, R_A + 3))
        k("s_add_u32 m0, s68, 1024")
        k("s_mov_b32 s60, 16384")
        SU["s"] = k.vm("buffer_load_dwordx4 v%d, s[%d:%d], s60 offen lds" % (T + 56, R_A, R_A + 3))
    if opt.get("bar") != 4:
        uld()
    if opt.get("bcut") == 1:
        k("s_barrier") if opt.get("bar") == 1 and 1 < 3 else 0
        k("s_waitcnt vmcnt(0)"); k("s_endpgm")
    k("s_and_b32 s%d, s%d, 1" % (S_NH, bw))
    k("s_lshr_b32 s%d, s%d, 1" % (S_DI, bw))
    k("s_lshl_b32 s%d, s%d, 5" % (S_D, S_HP)); k("s_lshl_b32 s60, s%d, 1" % S_RB); k("s_add_u32 s%d, s%d, s60" % (S_D, S_D))
    k("s_lshl_b32 s60, s%d, 1" % S_D)
    k("s_load_dword s66, s[%d:%d], s60" % (S_LDT, S_LDT + 1))
    k("s_mov_b32 s67, s%d" % S_D)
    k("s_add_u32 s%d, s%d, s%d" % (S_D, S_D, S_DI))
    k("s_mul_i32 s%d, s%d, %d" % (S_PB, S_DI, DSTRIDE)); k("s_add_u32 s%d, s%d, %d" % (S_PB, S_PB, BREG))
    k("s_lshl_b32 s60, s%d, 8" % S_D); k("s_lshl_b32 s61, s%d, 7" % S_NH); k("s_add_u32 s60, s60, s61")
    k("v_lshlrev_b32 v%d, 1, v%d" % (T + 3, V_LANE))
    PR = 28
    for i, sp in enumerate((S_ARE, S_AIM, S_BRE, S_BIM, S_CRE, S_CIM)):
        r = (R_B, R_C)[i % 2]
        k.srd(r, sp, 131072)
        s_par = k.vm("buffer_load_ushort v%d, v%d, s[%d:%d], s60 offen" % (PR + i, T + 3, r, r + 3))
    if opt.get("bcut") == 2:
        k("s_barrier") if opt.get("bar") == 1 and 2 < 3 else 0
        k("s_waitcnt vmcnt(0)"); k("s_endpgm")
    US = opt.get("us", 0)
    UA = T + 40
    if opt.get("bar") == 1 and US != 2:
        k("s_barrier")
    k("v_lshlrev_b32 v7, 4, v%d" % V_LANE)
    SEN = 52
    for j in range(4):
        k("v_mov_b32 v%d, -1" % (SEN + j))
    SE = vr(SEN, 4)
    def clear_kv():
        k("s_lshl_b32 s60, s%d, 4" % S_HP); k("s_add_u32 s60, s60, s%d" % S_RB); k("s_mul_i32 s60, s60, %d" % KVP_STRIDE)
        k("s_add_u32 s60, s60, %d" % WS_KVP)
        k("s_mul_i32 s61, s%d, %d" % (bw, KVP_STRIDE // 4)); k("s_add_u32 s61, s61, s60")
        k("s_mov_b32 exec_hi, 15")
        k.vm("buffer_store_dwordx4 %s, v7, s[%d:%d], s61 offen sc1" % (SE, R_WS, R_WS + 3))
        k("s_mov_b32 exec_hi, -1")
    k("v_and_b32 v%d, 0x30, v%d" % (UA + 4, V_LANE))
    k("v_and_b32 v%d, 0xf0, v7" % (T + 4))
    k("v_lshl_add_u32 v%d, v%d, 8, v%d" % (UA + 4, UA + 4, T + 4))
    k("s_lshl_b32 s72, s%d, 17" % S_HP); k("s_add_u32 s72, s72, %d" % (WS_UT + 4096 - 256))
    k("s_lshl_b32 s61, s%d, 8" % S_RB); k("s_sub_u32 s72, s72, s61")
    k("s_lshl_b32 s61, s%d, 15" % bw); k("s_add_u32 s72, s72, s61")
    k("s_add_u32 s73, s72, 16384")
    if US:
        for j in range(2):
            k.vm("buffer_store_dwordx4 %s, v%d, s[%d:%d], s%d offen sc1" % (SE, UA + 4, R_WS, R_WS + 3, 72 + j))
        clear_kv()
    flag_addr(k, V_FA, T + 5)
    k("s_mov_b32 exec_hi, 0")
    k.vm("buffer_load_dword v%d, v%d, s[%d:%d], 0 offen sc1" % (V_OLD, V_FA, R_WS, R_WS + 3))
    k("s_mov_b32 exec_hi, -1")
    if US == 2:
        k("s_barrier")
    k.srd(R_B, S_DSK, 1024)
    k("v_and_b32 v%d, 0x30, v%d" % (T + 4, V_LANE))
    k("s_lshl_b32 s60, s%d, 6" % S_HP)
    k.vm("buffer_load_dwordx4 %s, v%d, s[%d:%d], s60 offen" % (vr(V_DS, 4), T + 4, R_B, R_B + 3))
    SE2 = T + 32
    def clear_o():
        k("s_lshl_b32 s60, s%d, 2" % S_RB); k("s_add_u32 s60, s60, s%d" % bw); k("s_lshl_b32 s60, s60, 4"); k("s_add_u32 s60, s60, s%d" % S_HP)
        k("s_lshl_b32 s60, s60, 11"); k("s_add_u32 s60, s60, %d" % WS_OF); k("s_add_u32 s61, s60, 32768")
        for j in range(4):
            k("v_mov_b32 v%d, -1" % (SE2 + j))
        for j in range(4):
            k("buffer_store_dwordx4 %s, v7, s[%d:%d], s%d offen offset:%d sc1" % (vr(SE2, 4), R_WS, R_WS + 3, 60 + j // 2, 1024 * (j % 2)))
    def rbp(chk, loop=False, nv=0):
        Ls = k.lbl("rbs"); Li = k.lbl("rbi"); Lt = k.lbl("rbt")
        k("s_cmp_eq_u32 s76, 0")
        k("s_cbranch_scc1 %s" % Ls)
        k("s_mov_b32 exec_lo, 0xffff0000"); k("s_mov_b32 exec_hi, 0")
        if chk:
            k("s_waitcnt vmcnt(%d)" % nv)
            k.label(Lt)
            k("v_cmp_eq_u32 vcc, v%d, v%d" % (T + 12, V_OLD))
            k("s_nop 1")
            k("s_cbranch_vccnz %s" % Li)
            k("s_mov_b32 s76, 0")
            k("s_mov_b64 exec, s[74:75]")
            k("v_mov_b32 v%d, %d" % (T + 13, SYNC + 40)); k("v_mov_b32 v%d, 1" % (T + 14))
            k("v_add_u32 v%d, 2, v%d" % (T + 15, V_OLD))
            k("ds_write_b32 v%d, v%d" % (T + 13, T + 14))
            k("buffer_store_dword v%d, v%d, s[%d:%d], 0 offen sc1" % (T + 15, V_FA, R_WS, R_WS + 3))
            k("s_branch %s" % Ls)
            k.label(Li)
        k("buffer_load_dword v%d, v%d, s[%d:%d], 0 offen sc1" % (T + 12, V_FA, R_WS, R_WS + 3))
        if loop:
            k("s_waitcnt vmcnt(0)")
            k("s_add_u32 s76, s76, 1")
            k("s_cmp_lt_u32 s76, %d" % LIM_GLB)
            k("s_cbranch_scc1 %s" % Lt)
        k.label(Ls)
        k("s_mov_b64 exec, -1")
    k("v_mov_b32 v%d, %d" % (V_SY, SYNC + 16))
    k("s_lshl_b32 s60, s%d, 2" % bw); k("s_add_u32 s60, s60, %d" % (SYNC + 16))
    k("v_mov_b32 v%d, s60" % V_OWN)
    k("v_xor_b32 v%d, 4, v%d" % (V_PAR, V_OWN))
    k.stamp()
    k("v_and_b32 v%d, 3, v%d" % (T, V_LANE))
    k("v_bfe_u32 v%d, v%d, 2, 2" % (T + 1, V_LANE))
    k("v_and_b32 v%d, 0x30, v%d" % (T + 2, V_LANE))
    k("s_movk_i32 s60, %d" % UCS)
    k("v_mul_lo_u32 v%d, v%d, s60" % (T + 3, T))
    k("v_lshlrev_b32 v%d, 7, v%d" % (T + 1, T + 1))
    k("v_sub_u32 v%d, v%d, v%d" % (T + 3, T + 3, T + 1))
    k("v_add_u32 v%d, v%d, v%d" % (T + 3, T + 3, T + 2))
    k("s_lshl_b32 s61, s%d, 8" % S_NH); k("s_add_u32 s61, s61, s%d" % S_PB)
    k("s_add_u32 s60, s61, 384")
    k("v_add_u32 v%d, s60, v%d" % (T + 3, T + 3))
    k("v_and_b32 v%d, 15, v%d" % (T + 4, V_LANE))
    k("v_lshl_add_u32 v%d, v%d, 3, v%d" % (T + 4, T + 4, T + 2))
    k("s_add_u32 s60, s61, %d" % KBO)
    k("v_add_u32 v%d, s60, v%d" % (T + 4, T + 4))
    k("v_and_b32 v%d, 1, v%d" % (T + 6, V_LANE))
    k("v_and_b32 v%d, 62, v%d" % (T + 5, V_LANE))
    k("v_lshlrev_b32 v%d, 3, v%d" % (T + 5, T + 5))
    k("v_lshl_add_u32 v%d, v%d, 9, v%d" % (T + 5, T + 6, T + 5))
    k("v_xor_b32 v%d, 0x300, v%d" % (T + 5, T + 5))
    k("s_xor_b32 s71, s%d, 1" % S_NH); k("s_lshl_b32 s71, s71, 11")
    k("s_add_u32 s60, s71, s%d" % S_PB)
    k("v_add_u32 v%d, s60, v%d" % (T + 6, T + 5))
    CA, CB, CY, CU = T + 27, T + 28, T + 29, T + 47
    for dst, src in ((CA, T + 3), (CB, T + 4), (CY, T + 5), (CU, T + 6)):
        k("v_mov_b32 v%d, v%d" % (dst, src))
    k("v_and_b32 v%d, 15, v%d" % (T, V_LANE))
    k("v_bfe_u32 v%d, v%d, 2, 2" % (T + 1, V_LANE))
    k("v_and_b32 v%d, 3, v%d" % (T + 2, V_LANE))
    for _ in range(0 if opt.get('kg') else 1):
        k("v_cvt_f32_u32 v%d, v%d" % (V_LF, T))
        k("v_lshlrev_b32 v%d, 4, v%d" % (T + 3, T))
        k("v_cvt_f32_u32 v%d, v%d" % (V_LF + 3, T + 3))
        k("v_lshlrev_b32 v%d, 2, v%d" % (T + 3, T + 1))
        k("v_lshl_add_u32 v%d, v%d, 1, v%d" % (T + 3, T + 2, T + 3))
        k("v_add_u32 v%d, 256, v%d" % (T + 3, T + 3))
        k("v_mov_b32 v%d, 1808" % (T + 4))
        k("v_cmp_eq_u32 vcc, 3, v%d" % (T + 2))
        k("v_cndmask_b32 v%d, v%d, v%d, vcc" % (T + 3, T + 3, T + 4))
        k("v_cvt_f32_u32 v%d, v%d" % (V_LF + 1, T + 3))
        k("v_lshlrev_b32 v%d, 8, v%d" % (T + 3, T + 1))
        k("v_lshl_add_u32 v%d, v%d, 2, v%d" % (T + 3, T + 2, T + 3))
        k("v_add_u32 v%d, 512, v%d" % (T + 3, T + 3))
        k("v_lshlrev_b32 v%d, 9, v%d" % (T + 4, T + 1))
        k("v_bfe_u32 v%d, v%d, 1, 1" % (T + 5, V_LANE))
        k("v_lshl_add_u32 v%d, v%d, 8, v%d" % (T + 4, T + 5, T + 4))
        k("v_and_b32 v%d, 1, v%d" % (T + 5, V_LANE))
        k("v_lshl_add_u32 v%d, v%d, 3, v%d" % (T + 4, T + 5, T + 4))
        k("v_cmp_lt_u32 vcc, 1, v%d" % (T + 1))
        k("v_cndmask_b32 v%d, v%d, v%d, vcc" % (T + 3, T + 3, T + 4))
        k("v_cvt_f32_u32 v%d, v%d" % (V_LF + 2, T + 3))
    STG = BREG + DSTRIDE
    if opt.get("kg"):
        k("s_mul_i32 s60, s%d, 4352" % bw); k("s_add_u32 s60, s60, %d" % STG)
        k("v_lshl_add_u32 v34, v%d, 2, s60" % V_LANE)
        for q in range(1, 4):
            k("v_add_u32 v%d, %d, v34" % (34 + q, 1088 * q))
        k("v_mul_u32_u24 v38, 272, v%d" % T)
        k("v_and_b32 v39, 0x30, v%d" % V_LANE)
        k("v_add3_u32 v38, v38, v39, s60")
    UA = T + 40
    UDt = T + 48
    TT = BREG + 8192
    k("v_lshrrev_b32 v%d, 4, v%d" % (T, V_LANE))
    k("v_lshl_add_u32 v%d, v%d, 3, v%d" % (UA, T, T + 1))
    k("v_sub_u32 v%d, 27, v%d" % (UA, UA))
    k("v_lshlrev_b32 v%d, 6, v%d" % (UA, UA))
    k("v_lshl_add_u32 v%d, v%d, 3, v%d" % (UA, T + 2, UA))
    k("v_add_u32 v%d, s68, v%d" % (UA, UA))
    k("v_and_b32 v%d, 15, v%d" % (T + 4, V_LANE))
    k("v_lshlrev_b32 v%d, 6, v%d" % (UA + 1, T + 4))
    k("v_lshl_add_u32 v%d, v%d, 4, v%d" % (UA + 1, T, UA + 1))
    k("v_add_u32 v%d, s68, v%d" % (UA + 1, UA + 1))
    k("s_movk_i32 s60, 272")
    k("v_mul_lo_u32 v%d, v%d, s60" % (UA + 2, T + 4))
    k("v_lshl_add_u32 v%d, v%d, 4, v%d" % (UA + 2, T, UA + 2))
    k("s_lshl_b32 s61, s%d, 6" % bw); k("s_sub_u32 s61, %d, s61" % (TT + 192))
    k("v_add_u32 v%d, s61, v%d" % (UA + 2, UA + 2))
    k("v_mul_lo_u32 v%d, v%d, s60" % (UA + 3, T))
    k("v_lshl_add_u32 v%d, v%d, 4, v%d" % (UA + 3, T + 4, UA + 3))
    k("s_mul_i32 s61, s%d, %d" % (bw, 8 * 272)); k("s_add_u32 s61, s61, %d" % TT)
    k("v_add_u32 v%d, s61, v%d" % (UA + 3, UA + 3))
    k("v_mov_b32 v%d, %d" % (UA + 5, SYNC + 44))
    def ut1():
        k.wait_vm(SU["s"])
        sq = []
        for j in range(2):
            for t in range(2):
                sq.append(k.lg("ds_read_b64_tr_b16 %s, v%d offset:%d" % (vr(UDt + 4 * j + 2 * t, 2), UA, 32 * j + 256 * (1 - t))))
        for j in range(2):
            k.lg("ds_read_b128 %s, v%d offset:%d" % (vr(V_UF + 4 * j, 4), UA + 1, 1024 * j))
        for j in range(2):
            k.wait_lg(sq[2 * j + 1])
            k.lg("ds_write_b128 v%d, %s offset:%d" % (UA + 2, vr(UDt + 4 * j, 4), 16 * 272 * j))
        k("v_mov_b32 v%d, 1" % (UA + 6))
        k("s_mov_b64 exec, 1")
        k.lg("ds_add_u32 v%d, v%d" % (UA + 5, UA + 6))
        k("s_mov_b64 exec, -1")
    def ut2():
        k.wait_words(UA + 5, 0, 1, 4, PT)
        sq = [k.lg("ds_read_b128 %s, v%d offset:%d" % (vr(UDt + 4 * j, 4), UA + 3, 4 * 272 * j)) for j in range(2)]
        for j in range(2):
            k.wait_lg(sq[j])
            for w in range(4 if US else 0):
                k("v_min_u32 v%d, -2, v%d" % (UDt + 4 * j + w, UDt + 4 * j + w))
            k.vm("buffer_store_dwordx4 %s, v%d, s[%d:%d], s%d offen sc1" % (vr(UDt + 4 * j, 4), UA + 4, R_WS, R_WS + 3, 72 + j))
    W = 160
    def pub(second=False):
        P = T + 36
        k("s_waitcnt vmcnt(0)")
        k("v_mov_b32 v%d, %d" % (P, SYNC + (48 if second else 32))); k("v_mov_b32 v%d, 1" % (P + 1))
        k("s_mov_b64 exec, 1")
        sq = (k if second == 2 else k.lg)("ds_add_rtn_u32 v%d, v%d, v%d" % (P + 2, P, P + 1))
        k("s_mov_b64 exec, -1")
        if second:
            k("s_lshl_b32 s74, 0x10000, s%d" % S_HP)
        else:
            k("s_lshl_b32 s74, 1, s%d" % S_RB)
        k("s_mov_b32 s75, 0")
        k("v_add_u32 v%d, 1, v%d" % (P + 3, V_OLD))
        return sq
    def pubb(sq=None, cnt=3):
        P = T + 36
        if sq is None:
            k("s_waitcnt lgkmcnt(0)")
        else:
            k.wait_lg(sq)
        k("v_readfirstlane_b32 s60, v%d" % (P + 2))
        Ls = k.lbl("nopub")
        k("s_cmp_lg_u32 s60, %d" % cnt)
        k("s_cbranch_scc1 %s" % Ls)
        k("s_mov_b64 exec, s[74:75]")
        k("buffer_store_dword v%d, v%d, s[%d:%d], 0 offen sc1" % (P + 3, V_FA, R_WS, R_WS + 3))
        k("s_mov_b64 exec, -1")
        k.label(Ls)
    def unot():
        for j in range(8):
            k("v_not_b32 v%d, v%d" % (UDt + j, UDt + j))
    def pub1():
        pub(); pubb()
        if not US:
            unot()
    UL = 64
    def utg():
        k("s_lshl_b32 s60, s%d, 12" % S_D)
        k.srd(R_A, S_WS, 4096, off_sgpr=60, off_imm=WS_UT)
        k("s_mov_b32 s60, 16")
        for rd in range(4):
            k("buffer_load_dwordx4 %s, v7, s[%d:%d], 0 offen offset:%d sc1" % (vr(UL + 8 * rd, 4), R_A, R_A + 3, 1024 * rd))
            k("buffer_load_dwordx2 %s, v7, s[%d:%d], s60 offen offset:%d sc1" % (vr(UL + 8 * rd + 4, 2), R_A, R_A + 3, 1024 * rd))
    def ep(chk, iss):
        Ls = k.lbl("eps"); Li = k.lbl("epi")
        k("s_cmp_lg_u32 s77, 1")
        k("s_cbranch_scc1 %s" % Ls)
        k("s_mov_b64 exec, 0xffff")
        if chk:
            k("s_waitcnt vmcnt(0)")
            k("v_cmp_eq_u32 vcc, v%d, v%d" % (T + 30, V_OLD))
            k("s_nop 1")
            k("s_cbranch_vccnz %s" % Li)
            k("s_mov_b32 s77, 2")
            k("v_mov_b32 v%d, %d" % (T + 30, SYNC + 36)); k("v_mov_b32 v%d, 1" % (T + 31))
            k("ds_write_b32 v%d, v%d" % (T + 30, T + 31))
            k("s_mov_b64 exec, -1")
            utg()
            k("s_branch %s" % Ls)
            k.label(Li)
        if iss:
            k("buffer_load_dword v%d, v%d, s[%d:%d], 0 offen sc1" % (T + 30, V_FA, R_WS, R_WS + 3))
        k("s_mov_b64 exec, -1")
        k.label(Ls)
    k("s_mov_b32 s77, s%d" % S_NH)
    def clo():
        Ls = k.lbl("clo")
        k("s_cmp_eq_u32 s%d, 1" % S_NH)
        k("s_cbranch_scc1 %s" % Ls)
        clear_o()
        k.label(Ls)
    hooks = {}
    CCL = opt.get("c_cl", 0 if US else -1)
    hl = [("h_ut1", ut1, -1), ("h_ut2", ut2, 0), ("h_kvc", clear_kv, 0), ("h_pub", pub1, 15 if opt.get("kg") else 6),
          ("h_e1", lambda: ep(0, 1), 11), ("h_e2", lambda: ep(1, 1), 99), ("h_e3", lambda: ep(1, 0), 15), ("h_clo", clo, 16 if opt.get("kg") else 13)]
    if US:
        hl = [("h_ut1", ut1, -1), ("h_pub", pub1, -1), ("h_ut2", ut2, 0), ("h_not", unot, 5), ("h_clo", clo, 16)]
    if CCL >= 0 or opt.get("cgate"):
        hl = hl[:-1]
    def pfetch(ptr, rs):
        k("s_and_b32 s60, s%d, 3" % S_RB); k("s_lshl_b32 s60, s60, 1"); k("s_and_b32 s61, s%d, 1" % S_HP); k("s_add_u32 s60, s60, s61")
        k("s_lshl_b32 s60, s60, 2"); k("s_add_u32 s60, s60, s%d" % bw); k("s_mul_i32 s60, s60, %d" % (16 * rs))
        k("s_lshr_b32 s61, s%d, 1" % S_HP); k("s_lshl_b32 s61, s61, 7"); k("s_add_u32 s60, s60, s61")
        k("s_add_u32 s70, s%d, s60" % ptr); k("s_addc_u32 s71, s%d, 0" % (ptr + 1))
        for i in range(16):
            k("s_load_dword s69, s[70:71], %d" % (i * rs))
    def pft():
        k("s_lshl_b32 s60, s%d, 18" % S_RB); k("s_lshl_b32 s61, s%d, 16" % bw); k("s_add_u32 s60, s60, s61")
        k("s_add_u32 s70, s%d, s60" % S_OUT); k("s_addc_u32 s71, s%d, 0" % (S_OUT + 1))
        for i in range(4):
            k("s_load_dword s69, s[70:71], %d" % (i * 16384))
    hl = [("h_pft", pft, 99)] + hl
    hl = [("h_pfq", lambda: pfetch(S_W, 3072), 99), ("h_pfo", lambda: pfetch(S_WO, 1024), 99)] + hl
    for name, fn, dflt in hl:
        def wrap(fn=fn):
            if opt.get("hprio"):
                k("s_setprio %d" % opt["hprio"])
            fn()
            if opt.get("hprio"):
                k("s_setprio %d" % opt.get("bprio2", 0))
        hooks.setdefault(opt.get(name, dflt), []).append(wrap)
    if opt.get("bar") == 4:
        k("s_barrier")
        uld()
    for fn in hooks.get(-1, []):
        fn()
    if opt.get("bcut") == 4:
        k("s_barrier") if opt.get("bar") == 1 and 4 < 3 else 0
        k("s_waitcnt vmcnt(0)"); k("s_endpgm")
    k("s_setprio %d" % opt.get("bprio2", 0))
    k.stamp()
    k("s_waitcnt lgkmcnt(0)")
    k("s_lshl_b32 s60, s%d, 4" % S_DI); k("s_lshr_b32 s66, s66, s60"); k("s_lshl_b32 s66, s66, 16")
    k("s_mov_b32 s69, 0x3fb8aa3b")
    k("v_mov_b32 v%d, s66" % T)
    k("v_mul_f32 v%d, s69, v%d" % (T, T))
    k("v_exp_f32 v%d, v%d" % (T, T))
    k("v_cvt_pk_bf16_f32 v%d, v%d, v%d" % (T, T, T))
    k("v_and_b32 v%d, 0xffff0000, v%d" % (T, T))
    k.wait_vm(s_par)
    for i in range(6):
        k("v_lshlrev_b32 v%d, 16, v%d" % (PR + i, PR + i))
    for i in range(4):
        k("v_mul_f32 v%d, v%d, v%d" % (PR + i, PR + i, T))
    TB = T + 4
    k("v_mul_f32 v%d, s69, v%d" % (TB, PR))
    k("v_mul_f32 v%d, 0.15915494, v%d" % (TB + 1, PR + 1))
    k("v_mul_f32 v%d, v%d, v%d" % (TB + 2, PR + 4, PR + 2))
    VA = 40
    if opt.get('kg'):
        kgen2(k, opt, hooks, PR, TB, VA)
    for _ in range(0 if opt.get('kg') else 1):
        k("v_mul_f32 v%d, v%d, v%d" % (TB + 3, PR + 4, PR + 3))
        k("v_fma_f32 v%d, -v%d, v%d, v%d" % (TB + 2, PR + 5, PR + 3, TB + 2))
        k("v_fma_f32 v%d, v%d, v%d, v%d" % (TB + 3, PR + 5, PR + 2, TB + 3))
        k("s_lshl_b32 s60, s%d, 10" % S_NH); k("s_add_u32 s60, s60, s%d" % S_PB); k("s_add_u32 s60, s60, %d" % KBO)
        k("v_add_u32 v%d, s60, v7" % (T + 1))
        k.lg("ds_write_b128 v%d, %s" % (T + 1, vr(TB, 4)))
        k("v_and_b32 v%d, 0x30, v%d" % (T + 2, V_LANE))
        k("v_lshlrev_b32 v%d, 2, v%d" % (T + 2, T + 2))
        k("v_add_u32 v%d, s60, v%d" % (T + 2, T + 2))
        TAB = 64
        tseq = []
        for ks in range(4):
            for j in range(4):
                tseq.append(k.lg("ds_read_b128 %s, v%d offset:%d" % (vr(TAB + 16 * ks + 4 * j, 4), T + 2, 256 * ks + 16 * j)))
        FR = 128
        VA = 40
        for ks in range(4):
            if opt.get("kst"):
                k.stamp()
            F = FR + 16 * (ks % 2)
            for j in range(4):
                k.wait_lg(tseq[4 * ks + j])
                e = TAB + 16 * ks + 4 * j
                X, PHs, SN, CS = W, W + 4, W + 8, W + 12
                for t in range(4):
                    k("v_mul_f32 v%d, v%d, v%d" % (PHs + t, e + 1, V_LF + t))
                for t in range(4):
                    k("v_mul_f32 v%d, v%d, v%d" % (X + t, e, V_LF + t))
                for t in range(4):
                    k("v_fract_f32 v%d, v%d" % (PHs + t, PHs + t))
                for t in range(4):
                    k("v_exp_f32 v%d, v%d" % (X + t, X + t))
                for t in range(4):
                    k("v_sin_f32 v%d, v%d" % (SN + t, PHs + t))
                for t in range(4):
                    k("v_cos_f32 v%d, v%d" % (CS + t, PHs + t))
                for t in (3, 0, 1, 2):
                    k("v_mul_f32 v%d, v%d, v%d" % (SN + t, SN + t, X + t))
                for t in (3, 0, 1, 2):
                    k("v_mul_f32 v%d, v%d, v%d" % (CS + t, CS + t, X + t))
                k("v_mul_f32 v%d, v%d, v%d" % (W + 16, CS + 3, e + 2))
                k("v_mul_f32 v%d, -v%d, v%d" % (W + 17, CS + 3, e + 3))
                for t in range(3):
                    k("v_cvt_pk_bf16_f32 v%d, v%d, v%d" % (F + 4 * t + j, CS + t, SN + t))
                k("v_fma_f32 v%d, -v%d, v%d, v%d" % (W + 16, SN + 3, e + 3, W + 16))
                k("v_fma_f32 v%d, -v%d, v%d, v%d" % (W + 17, SN + 3, e + 2, W + 17))
                k("v_cvt_pk_bf16_f32 v%d, v%d, v%d" % (F + 12 + j, W + 16, W + 17))
                if j < 3:
                    for fn in hooks.get(4 * ks + j, []):
                        fn()
            for t in range(3):
                k("v_mfma_f32_16x16x32_bf16 %s, %s, %s, %s" % (vr(VA + 4 * t, 4), vr(F + 4 * t, 4), vr(F + 12, 4), vr(VA + 4 * t, 4) if ks else "0"))
            for fn in hooks.get(4 * ks + 3, []):
                fn()
    k.stamp()
    if opt.get("exp"):
        k.dump_stamps(32)
        return
    LN1 = k.lbl("nh1"); LJ = k.lbl("nhj")
    k("s_add_u32 s60, s%d, %d" % (S_PB, KBO + 1024))
    k("v_add_u32 v%d, s60, v7" % (T + 1))
    k("s_cmp_eq_u32 s%d, 1" % S_NH)
    k("s_cbranch_scc1 %s" % LN1)
    if opt.get("kg"):
        k.signal(V_OWN, T + 8, 1)
    k.wait_words(V_PAR, 0, 1, 1, PT)
    sq = [k.lg("ds_read_b128 %s, v%d offset:%d" % (vr(W + 4 * t, 4), T + 1, 1024 * t)) for t in range(3)]
    k("v_and_b32 v%d, 15, v%d" % (T + 2, V_LANE))
    k("v_lshrrev_b32 v%d, 4, v%d" % (T + 3, V_LANE))
    k("s_add_u32 s60, s%d, %d" % (S_PB, KBO))
    k("v_lshlrev_b32 v%d, 5, v%d" % (T + 2, T + 2))
    k("v_add_u32 v%d, s60, v%d" % (T + 2, T + 2))
    k("v_lshl_add_u32 v%d, v%d, 3, v%d" % (T + 4, T + 3, T + 2))
    k("v_lshl_add_u32 v%d, v%d, 9, v%d" % (T + 5, T + 3, T + 2))
    k("v_add_u32 v%d, %d, v%d" % (T + 5, 120 + 1024 - 4, T + 5))
    k("v_lshl_add_u32 v%d, v%d, 10, v%d" % (T + 6, T + 3, T + 2))
    k("v_add_u32 v%d, %d, v%d" % (T + 6, 120 - 8, T + 6))
    k("v_lshlrev_b32 v%d, 2, v%d" % (T + 7, V_LANE))
    k("v_add_u32 v%d, s60, v%d" % (T + 7, T + 7))
    k("v_mov_b32 v%d, 0" % (T + 8))
    for t in range(3):
        k.wait_lg(sq[t])
        for i in range(4):
            k("v_add_f32 v%d, v%d, v%d" % (VA + 4 * t + i, VA + 4 * t + i, W + 4 * t + i))
    Q = T + 16
    V0, V1, V2 = VA, VA + 4, VA + 8
    pk = [(V2, V2), (V2, V2 + 1), (V2 + 1, V2 + 1), (V2 + 2, V2 + 2), (V2 + 2, V2 + 3), (V2 + 3, V2 + 3),
          (V1, V1), (V1 + 1, V1 + 2), (V0, V0 + 1), (V0 + 2, V0 + 3), (V1 + 3, V1 + 3)]
    for i, (a, b) in enumerate(pk):
        k("v_cvt_pk_bf16_f32 v%d, v%d, v%d" % (Q + i, a, b))
    aa, ab, bb, cc, cd, dd = [Q + i for i in range(6)]
    k("s_mov_b32 s70, 0"); k("s_mov_b32 s71, -1")
    k("s_mov_b64 exec, s[70:71]")
    for run, (x, xy, y) in enumerate(((aa, ab, bb), (cc, cd, dd))):
        o = 128 * run
        for i, (p, q) in enumerate(((x, x), (x, x), (xy, y), (y, y))):
            k.lg("ds_write2_b32 v%d, v%d, v%d offset0:%d offset1:%d" % (T + 6, p, q, o + 2 * i, o + 2 * i + 1))
    k("s_mov_b32 exec_lo, -1"); k("s_mov_b32 exec_hi, 0")
    for i, (p, q) in enumerate(((aa, aa), (ab, bb), (cc, cc), (cd, dd))):
        k.lg("ds_write2_b32 v%d, v%d, v%d offset0:%d offset1:%d" % (T + 5, p, q, 2 * i, 2 * i + 1))
    k("s_mov_b64 exec, -1")
    k.lg("ds_write_b64 v%d, %s offset:%d" % (T + 4, vr(Q + 6, 2), 120 + 512))
    k.lg("ds_write_b64 v%d, %s offset:%d" % (T + 4, vr(Q + 8, 2), 120))
    k("s_mov_b64 exec, 0x8000")
    k.lg("ds_write_b32 v%d, v%d offset:%d" % (T + 2, Q + 10, 120 + 4088 - 480))
    k.lg("ds_write_b32 v%d, v%d offset:%d" % (T + 2, Q + 10, 120 + 4092 - 480))
    k("s_mov_b64 exec, 0x3fffffff")
    k.lg("ds_write_b32 v%d, v%d" % (T + 7, T + 8))
    k("s_mov_b64 exec, -1")
    k.signal(V_OWN, T + 8, 2)
    def pub2():
        pub(2); pubb(None, 1)
        k("s_cmp_eq_u32 s%d, 0" % bw); k("s_cselect_b32 s76, 1, 0")
        rbp(False)
    if CCL < 0:
        if opt.get("cgate"):
            k("v_mov_b32 v%d, %d" % (T + 9, SYNC))
            k.wait_words(T + 9, 0, 4, opt["cgate"], PT)
            clear_o()
    if CCL < 0 and "c_p2" not in opt:
        pub2()
    else:
        k("s_mov_b32 s76, 0")
    if opt.get("bwo"):
        k("s_lshr_b32 s60, s%d, 1" % S_HP); k("s_lshl_b32 s60, s60, 7")
        k("s_sub_u32 s61, %d, s60" % (512 * 1024))
        k.srd(R_C, S_WO, "s61", off_sgpr=60)
        k("v_lshrrev_b32 v%d, 3, v%d" % (T + 16, V_LANE))
        k("v_and_b32 v%d, 7, v%d" % (T + 17, V_LANE))
        k("v_bfe_u32 v%d, v%d, 4, 1" % (T + 18, V_LANE))
        k("v_lshlrev_b32 v%d, 2, v%d" % (T + 18, T + 18))
        k("v_xor_b32 v%d, v%d, v%d" % (T + 17, T + 17, T + 18))
        k("v_lshlrev_b32 v%d, 10, v%d" % (T + 16, T + 16))
        k("v_lshl_add_u32 v%d, v%d, 4, v%d" % (T + 16, T + 17, T + 16))
        k("s_lshl_b32 s60, s%d, 14" % S_DI); k("s_lshl_b32 s61, s%d, 11" % S_DI)
        k("v_mov_b32 v%d, %d" % (T + 9, SYNC))
        k.wait_words(T + 9, 0, 4, 8, PT)
        for part, i in [(0, i) for i in range(8)] + [(1, i) for i in range(4, 8)]:
            for a in range(2):
                k("s_add_u32 s66, s60, %d" % ((part * 256 + 32 * i + 8 * a) * 1024))
                k("s_add_u32 m0, s61, %d" % ((WV, WK)[part] + i * 4096 + a * 1024))
                k("buffer_load_dwordx4 v%d, s[%d:%d], s66 offen lds" % (T + 16, R_C, R_C + 3))
    k("s_branch %s" % LJ)
    k.label(LN1)
    k.settle(8)
    for t in range(3):
        k.lg("ds_write_b128 v%d, %s offset:%d" % (T + 1, vr(VA + 4 * t, 4), 1024 * t))
    k.signal(V_OWN, T + 8, 1)
    LW3 = k.lbl("w3"); LRD = k.lbl("rdy"); LUG = k.lbl("ug")
    k("s_cmp_eq_u32 s77, 2")
    k("s_cbranch_scc1 %s" % LUG)
    k("s_cmp_eq_u32 s%d, 3" % bw)
    k("s_cbranch_scc1 %s" % LW3)
    LP = k.lbl("poll"); LPD = k.lbl("polld")
    if opt.get("pgate"):
        k("v_mov_b32 v%d, %d" % (T + 9, SYNC))
        k.wait_words(T + 9, 0, 4, opt["pgate"], PT)
    k("s_mov_b32 s61, 0")
    k("s_mov_b64 exec, 0xffff")
    k.label(LP)
    k("buffer_load_dword v%d, v%d, s[%d:%d], 0 offen sc1" % (T + 8, V_FA, R_WS, R_WS + 3))
    k("s_waitcnt vmcnt(0)")
    k("v_cmp_eq_u32 vcc, v%d, v%d" % (T + 8, V_OLD))
    k("s_nop 1")
    k("s_cbranch_vccz %s" % LPD)
    if opt.get("slp1", k.slp):
        k("s_sleep %d" % opt.get("slp1", k.slp))
    k("s_add_u32 s61, s61, 1")
    k("s_cmp_lt_u32 s61, %d" % LIM_GLB)
    k("s_cbranch_scc1 %s" % LP)
    k.label(LPD)
    k("s_mov_b64 exec, 1")
    k("v_mov_b32 v%d, %d" % (T + 9, SYNC + 36)); k("v_mov_b32 v%d, 1" % (T + 10))
    k.lg("ds_write_b32 v%d, v%d" % (T + 9, T + 10))
    if US:
        k("s_mov_b64 exec, s[74:75]")
        k("v_add_u32 v%d, 2, v%d" % (T + 11, V_OLD))
        k("buffer_store_dword v%d, v%d, s[%d:%d], 0 offen sc1" % (T + 11, V_FA, R_WS, R_WS + 3))
    k("s_mov_b64 exec, -1")
    k("s_branch %s" % LRD)
    k.label(LW3)
    k.wait_words(V_SY, 20, 1, 1, PT)
    k.label(LRD)
    utg()
    k.label(LUG)
    k.stamp()
    k.nvm = 8
    sq = [1, 3, 5, 7]
    k("v_add_u32 v%d, s%d, v7" % (T + 2, S_PB))
    for j in range(4):
        k("v_mov_b32 v%d, 0" % (T + 4 + j))
    if opt.get("kg"):
        k.wait_words(V_SY, 0, 4, 1, PT)
    k("s_mov_b64 exec, 0xffffff")
    for c in range(4):
        k.lg("ds_write_b128 v%d, %s offset:%d" % (T + 2, vr(T + 4, 4), c * UCS + 4096))
    k("s_mov_b64 exec, -1")
    def ucons(rd):
        D = UL + 8 * rd
        O = 128 + 16 * (rd % 2)
        for j in range(5):
            k("v_alignbit_b32 v%d, v%d, v%d, 16" % (O + j, D + j + 1, D + j))
        for j in range(4):
            k("v_mov_b32 v%d, v%d" % (O + 8 + j, D + 1 + j))
            k("v_mov_b32 v%d, v%d" % (O + 12 + j, O + 1 + j))
        k.lg("ds_write_b128 v%d, %s offset:%d" % (T + 2, vr(D, 4), 3 * UCS + 1024 * rd))
        k.lg("ds_write_b128 v%d, %s offset:%d" % (T + 2, vr(O, 4), 2 * UCS + 1024 * rd))
        k.lg("ds_write_b128 v%d, %s offset:%d" % (T + 2, vr(O + 8, 4), 1 * UCS + 1024 * rd))
        k.lg("ds_write_b128 v%d, %s offset:%d" % (T + 2, vr(O + 12, 4), 0 * UCS + 1024 * rd))
    if US:
        uloads = [(UL + 8 * rd, 6, ["buffer_load_dwordx4 %s, v7, s[%d:%d], 0 offen offset:%d sc1" % (vr(UL + 8 * rd, 4), R_A, R_A + 3, 1024 * rd),
                                    "buffer_load_dwordx2 %s, v7, s[%d:%d], s60 offen offset:%d sc1" % (vr(UL + 8 * rd + 4, 2), R_A, R_A + 3, 1024 * rd)]) for rd in range(4)]
        k.pg_finish(uloads, sq, T + 12, ucons)
    else:
        for rd in range(4):
            k.wait_vm(sq[rd])
            ucons(rd)
        k("v_add_u32 v%d, 2, v%d" % (T + 11, V_OLD))
        k("s_mov_b64 exec, s[74:75]")
        k("buffer_store_dword v%d, v%d, s[%d:%d], 0 offen sc1" % (T + 11, V_FA, R_WS, R_WS + 3))
        k("s_mov_b64 exec, -1")
    k.signal(V_OWN, T + 8, 2)
    k("s_mov_b32 s76, 0")
    k.label(LJ)
    k.wait_words(V_PAR, 0, 1, 2, PT)
    k.stamp()
    UO = T + 56
    if opt.get("dump_k"):
        pass
    AC = 32
    AF = (64, 96); BF = (128, 160)
    def rdfr(ri):
        s = {}
        buf = ri % 2
        for i in range(8):
            s[("A", i)] = k.lg("ds_read_b128 %s, v%d offset:%d" % (vr(AF[buf] + 4 * i, 4), CA, 512 * (7 - i) + 64 * ri))
            k.lg("ds_read_b64 %s, v%d offset:%d" % (vr(BF[buf] + 4 * i, 2), CB, 512 * i + 64 * ri))
            s[("B", i)] = k.lg("ds_read_b64 %s, v%d offset:%d" % (vr(BF[buf] + 4 * i + 2, 2), CB, 512 * i + 64 * ri + 8))
        return s
    cur = rdfr(0)
    touched = set()
    c_pub = opt.get("c_pub", 44); c_rb = opt.get("c_rb", 80)
    for ri in range(4):
        buf = ri % 2
        pairs = sorted([(a, b) for a in range(8) for b in range(8) if a + b <= 7], key=lambda p: (max(p), p))
        order = []
        rem = pairs[:]
        while rem:
            for idx, p in enumerate(rem):
                if not order or (order[-1][0] + order[-1][1]) != (p[0] + p[1]) or idx == len(rem) - 1:
                    order.append(rem.pop(idx)); break
        nxt = None
        waited = -1
        for n, (a, b) in enumerate(order):
            if n == 2 and ri == CCL:
                clo()
            if n == 12 and ri == opt.get("c_p2", 2) and (CCL >= 0 or "c_p2" in opt):
                Lq = k.lbl("p2")
                k("s_cmp_eq_u32 s%d, 1" % S_NH)
                k("s_cbranch_scc1 %s" % Lq)
                pub2()
                k.label(Lq)
            if n == 12 and ri < 3:
                need = max(cur.values())
                if need > waited:
                    k.wait_lg(need); waited = need
                nxt = rdfr(ri + 1)
            if n == 4 and ri == 0:
                for j in range(2):
                    k.lg("ds_read_b128 %s, v%d offset:%d" % (vr(UO + 4 * j, 4), CU, 3 * UCS + 1024 * (1 - j)))
            if n == opt.get("rbn", 30) and ri == opt.get("bwo", 0) - 1:
                k("s_waitcnt vmcnt(0)")
                k("v_mov_b32 v%d, %d" % (T + 16, SYNC + 52)); k("v_mov_b32 v%d, 1" % (T + 17))
                k("s_mov_b64 exec, 1")
                k.lg("ds_add_u32 v%d, v%d" % (T + 16, T + 17))
                k("s_mov_b64 exec, -1")
            if n == opt.get("rbn", 30):
                rbp(True)
            need = max(cur[("A", b)], cur[("B", a)])
            if need > waited:
                k.wait_lg(need); waited = need
            q = a + b
            k("v_mfma_f32_16x16x32_bf16 %s, %s, %s, %s" % (vr(AC + 4 * q, 4), vr(AF[buf] + 4 * b, 4), vr(BF[buf] + 4 * a, 4), vr(AC + 4 * q, 4) if q in touched else "0"))
            touched.add(q)
        cur = nxt
    k.signal(V_OWN, T + 8, 3)
    k.stamp()
    k("s_mul_i32 s60, s%d, %d" % (S_NH, UCS)); k("s_add_u32 s60, s60, s%d" % S_PB)
    k("v_add_u32 v%d, s60, v7" % T)
    k("s_xor_b32 s61, s%d, 1" % S_NH); k("s_mul_i32 s61, s61, %d" % UCS); k("s_add_u32 s61, s61, s%d" % S_PB)
    k("v_add_u32 v%d, s61, v7" % (T + 1))
    k("s_xor_b32 s66, s%d, 1" % S_NH); k("s_lshl_b32 s66, s66, 11")
    k("s_lshl_b32 s60, s%d, 12" % S_D); k("s_add_u32 s60, s60, s66"); k("s_add_u32 s60, s60, %d" % WS_UT)
    k.wait_words(V_PAR, 0, 1, 3, PT)
    L1 = k.lbl("c1"); LJ2 = k.lbl("cj")
    k("s_cmp_eq_u32 s%d, 1" % S_NH)
    k("s_cbranch_scc1 %s" % L1)
    for nh in range(2):
        if nh == 1:
            k.label(L1)
        snd, keep = AC + 16 * (1 - nh), AC + 16 * nh
        for j in range(4):
            k.lg("ds_write_b128 v%d, %s offset:%d" % (T, vr(snd + 4 * j, 4), 1024 * j))
        k.signal(V_OWN, T + 8, 4)
        k.wait_words(V_PAR, 0, 1, 4, PT)
        sq = [k.lg("ds_read_b128 %s, v%d offset:%d" % (vr(64 + 4 * j, 4), T + 1, 1024 * j)) for j in range(4)]
        for j in range(4):
            k.wait_lg(sq[j])
            for i in range(4):
                k("v_add_f32 v%d, v%d, v%d" % (64 + 4 * j + i, 64 + 4 * j + i, keep + 4 * j + i))
        if nh == 0:
            k("s_branch %s" % LJ2)
    k.label(LJ2)
    for j in range(8):
        k("v_cvt_pk_bf16_f32 v%d, v%d, v%d" % (96 + j, 64 + 2 * j, 64 + 2 * j + 1))
    for j in range(8):
        k("v_min_u32 v%d, -2, v%d" % (96 + j, 96 + j))
    k("s_mov_b32 vcc_lo, 0x55555555"); k("s_mov_b32 vcc_hi, 0x55555555")
    for j in range(2):
        for w in range(2):
            k("v_cndmask_b32_dpp v%d, v%d, v%d, vcc quad_perm:[1,0,3,2] row_mask:0xf bank_mask:0xf" % (104 + 4 * j + w, 96 + 4 * j + 2 + w, 96 + 4 * j + w))
    k("s_not_b64 vcc, vcc")
    for j in range(2):
        for w in range(2):
            k("v_cndmask_b32_dpp v%d, v%d, v%d, vcc quad_perm:[1,0,3,2] row_mask:0xf bank_mask:0xf" % (104 + 4 * j + 2 + w, 96 + 4 * j + w, 96 + 4 * j + 2 + w))
    for j in range(2):
        for w in range(4):
            k("v_add3_u32 v%d, v%d, v%d, 1" % (104 + 4 * j + w, 104 + 4 * j + w, UO + 4 * j + w))
        k.vm("buffer_store_dwordx4 %s, v%d, s[%d:%d], s60 offen offset:%d sc1" % (vr(104 + 4 * j, 4), CY, R_WS, R_WS + 3, 1024 * (1 - j)))
    k.stamp()
    rbp(True, True, 2)
    k("v_lshrrev_b32 v%d, 4, v%d" % (T, V_LANE))
    k("v_and_b32 v%d, 15, v%d" % (T + 1, V_LANE))
    STG = BREG + 2 * UCS
    k("s_movk_i32 s66, 288")
    k("v_mul_lo_u32 v%d, v%d, s66" % (T + 3, T))
    k("v_lshl_add_u32 v%d, v%d, 4, v%d" % (T + 3, T + 1, T + 3))
    k("s_mul_i32 s66, s%d, %d" % (bw, 8 * 288 + 128)); k("s_add_u32 s66, s66, %d" % STG)
    k("v_add_u32 v%d, s66, v%d" % (T + 3, T + 3))
    k("s_movk_i32 s66, %d" % (8 * 288 + 128))
    k("v_mul_lo_u32 v%d, v%d, s66" % (T + 4, T))
    k("v_bfe_u32 v%d, v%d, 2, 2" % (T + 5, V_LANE))
    k("s_movk_i32 s66, 288")
    k("v_mul_lo_u32 v%d, v%d, s66" % (T + 5, T + 5))
    k("v_add_u32 v%d, v%d, v%d" % (T + 4, T + 4, T + 5))
    k("v_and_b32 v%d, 3, v%d" % (T + 5, V_LANE))
    k("v_lshl_add_u32 v%d, v%d, 3, v%d" % (T + 4, T + 5, T + 4))
    k("s_lshl_b32 s66, s%d, 6" % bw); k("s_add_u32 s66, s66, %d" % STG)
    k("v_add_u32 v%d, s66, v%d" % (T + 4, T + 4))
    k("v_lshlrev_b32 v%d, 11, v%d" % (T + 5, T + 1))
    k("v_lshl_add_u32 v%d, v%d, 4, v%d" % (T + 5, T, T + 5))
    k("s_lshl_b32 s66, s%d, 18" % S_RB); k("s_lshl_b32 s67, s%d, 16" % bw); k("s_add_u32 s66, s66, s67")
    k("s_lshl_b32 s67, s%d, 6" % S_HP); k("s_add_u32 s66, s66, s67"); k("s_add_u32 s66, s66, 1024")
    k("s_add_u32 s67, s66, 32768")
    k.srd(R_D, S_OUT, 2048 * 2048)
    loads = [(64 + 4 * j, 4, ["buffer_load_dwordx4 %s, v%d, s[%d:%d], s%d offen sc1" % (vr(64 + 4 * j, 4), UA + 4, R_WS, R_WS + 3, 72 + j)]) for j in range(2)]
    def dec(p):
        for w in range(4):
            k("v_add_u32 v%d, v%d, v%d" % (64 + 4 * p + w, 64 + 4 * p + w, UDt + 4 * p + w))
    if opt.get("ydly"):
        k("s_sleep %d" % opt.get("ydly"))
    if opt.get("udp", 0) == 1:
        gs = k.pg_issue(loads)
    UD = 208
    for j in range(2):
        for i in range(4):
            k("v_lshlrev_b32 v%d, 16, v%d" % (T + 8, V_UF + 4 * j + i))
            k("v_and_b32 v%d, 0xffff0000, v%d" % (T + 9, V_UF + 4 * j + i))
            k("v_lshlrev_b32 v%d, 16, v%d" % (T + 10, V_DS + i))
            k("v_and_b32 v%d, 0xffff0000, v%d" % (T + 11, V_DS + i))
            k("v_mul_f32 v%d, v%d, v%d" % (T + 8, T + 8, T + 10))
            k("v_mul_f32 v%d, v%d, v%d" % (T + 9, T + 9, T + 11))
            k("v_cvt_pk_bf16_f32 v%d, v%d, v%d" % (T + 8, T + 8, T + 9))
            k("v_lshlrev_b32 v%d, 16, v%d" % (UD + 8 * j + 2 * i, T + 8))
            k("v_and_b32 v%d, 0xffff0000, v%d" % (UD + 8 * j + 2 * i + 1, T + 8))
    if opt.get("udp", 0) == 0:
        gs = k.pg_issue(loads)
    k.pg_finish(loads, gs, 72, lambda p: None, dec)
    k.stamp()
    k.wait_words(V_SY, 0, 2, 3, PT)
    for j in range(2):
        k.lg("ds_write_b128 v%d, %s offset:%d" % (T + 3, vr(64 + 4 * j, 4), 4 * 288 * j))
    k.signal(V_OWN, T + 8, 5)
    k.wait_words(V_SY, 0, 4, 5, PT)
    sq = []
    for j in range(2):
        for t in range(2):
            sq.append(k.lg("ds_read_b64_tr_b16 %s, v%d offset:%d" % (vr(80 + 4 * j + 2 * t, 2), T + 4, 32 * j + 4 * 288 * t)))
    for j in range(2):
        k.wait_lg(sq[2 * j + 1])
        for i in range(4):
            y = 80 + 4 * j + i
            k("v_lshlrev_b32 v%d, 16, v%d" % (T + 8, y))
            k("v_and_b32 v%d, 0xffff0000, v%d" % (T + 9, y))
            k("v_add_f32 v%d, v%d, v%d" % (T + 8, T + 8, UD + 8 * j + 2 * i))
            k("v_add_f32 v%d, v%d, v%d" % (T + 9, T + 9, UD + 8 * j + 2 * i + 1))
            k("v_cvt_pk_bf16_f32 v%d, v%d, v%d" % (96 + 4 * j + i, T + 8, T + 9))
        k.vm("buffer_store_dwordx4 %s, v%d, s[%d:%d], s%d offen%s" % (vr(96 + 4 * j, 4), T + 5, R_D, R_D + 3, 66 + j, OUTF[opt.get("outf", 0)]))
    if k.dbg or not opt.get("nofin"):
        k("s_waitcnt vmcnt(0)")
    k.stamp()
    k.dump_stamps(32)
```

```python
import sys
from common import *
from role_a import role_a
from role_b import role_b

def build(opt):
    k = K(dbg=opt.get("dbg", 0))
    k.slp = opt.get("slp", 0)
    hdr = open("concat_heads__linear_kernel_hedgehog__ssm_conv_s4__prompt.s.ref").read().split("; Override")[0]
    k.raw(hdr.rstrip("\n"))
    k.raw("; @launch grid=(256,1,1) block=(512,1,1) lds=%d" % LDS_TOTAL)
    k.raw('.amdgcn_target "amdgcn-amd-amdhsa--gfx950"')
    k.raw(".text"); k.raw(".globl %s" % NAME); k.raw(".p2align 8"); k.raw(".type %s,@function" % NAME)
    k.label(NAME)
    k.ool = opt.get("ool", 0)
    k("s_cmp_ge_u32 s2, 256")
    k("s_cbranch_scc1 L_end")
    k("s_load_dwordx16 s[4:19], s[0:1], 0")
    k("s_load_dwordx16 s[20:35], s[0:1], 64")
    if opt.get("dbg"):
        for i in range(16):
            k("s_mov_b32 s%d, 0" % (S_STAMP + i))
        k.stamp()
    if opt.get("cpf"):
        if opt["cpf"] == 1:
            k("v_lshrrev_b32 v2, 6, v0")
            k("v_readfirstlane_b32 s%d, v2" % S_WAVE)
            k("s_bfe_u32 s60, s2, 0x30003")
            k("s_cmp_lg_u32 s60, s%d" % S_WAVE)
        else:
            k("s_cmp_ge_u32 s2, %d" % opt["cpf"])
        k("s_cbranch_scc1 L_nopf")
        k("s_getpc_b64 s[62:63]")
        k.raw("L_pc:")
        k("v_lshlrev_b32 v98, 6, v0")
        k("v_min_u32 v98, L_end-L_pc, v98")
        k("v_mov_b32 v99, s63")
        k("v_add_co_u32 v98, vcc, s62, v98")
        k("v_addc_co_u32 v99, vcc, 0, v99, vcc")
        k("global_load_dword v100, v[98:99], off")
        k.raw("L_nopf:")
    k("v_lshrrev_b32 v2, 6, v0")
    k("v_and_b32 v1, 63, v0")
    k("v_readfirstlane_b32 s%d, v2" % S_WAVE)
    k("v_and_b32 v3, 15, v0"); k("v_lshlrev_b32 v3, 2, v3"); k("v_add_u32 v3, %d, v3" % SYNC); k("v_mov_b32 v4, 0")
    k("ds_write_b32 v3, v4")
    wg_map(k, opt.get("map", 0))
    k("s_and_b32 s%d, s%d, 3" % (S_RW, S_WAVE))
    k("s_waitcnt lgkmcnt(0)")
    if not opt.get("bar"):
        k("s_barrier")
    k.srd(R_WS, S_WS, WS_SIZE)
    k("s_cmp_ge_u32 s%d, 4" % S_WAVE)
    k("s_cbranch_scc1 L_roleB")
    ns = k.nstamp
    role_a(k, opt)
    k("s_endpgm")
    k.label("L_roleB", clear=True)
    k.nvm = 0; k.nlg = 0; k.nstamp = ns
    role_b(k, opt)
    if opt.get("ool"):
        k("s_endpgm")
        k.lines += getattr(k, "deferred", [])
    k.label("L_end")
    k("s_endpgm")
    k.raw('.section .rodata,"a"\n.p2align 6\n.amdhsa_kernel %s' % NAME)
    k.raw("""  .amdhsa_next_free_vgpr 256
  .amdhsa_next_free_sgpr 102
  .amdhsa_accum_offset 256
  .amdhsa_group_segment_fixed_size 0
  .amdhsa_kernarg_size 128
  .amdhsa_user_sgpr_count 2
  .amdhsa_user_sgpr_kernarg_segment_ptr 1
  .amdhsa_system_sgpr_workgroup_id_x 1
.end_amdhsa_kernel""")
    return k.text()

if __name__ == "__main__":
    opt = {}
    for a in sys.argv[2:]:
        kk, v = a.split("="); opt[kk] = int(v, 0)
    open(sys.argv[1], "w").write(build(opt))
```
